```python
import torch

def _softmax(x, axis=-1):
    return torch.softmax(x, dim=axis)
def _gelu(x):
    return torch.nn.functional.gelu(x, approximate="tanh")
def _silu(x):
    return torch.nn.functional.silu(x)
def _sigmoid(x):
    return torch.sigmoid(x)
def _layernorm(x, axis=-1, eps=1e-5):
    m = x.mean(dim=axis, keepdim=True)
    v = x.var(dim=axis, keepdim=True, unbiased=False)
    return (x - m) / torch.sqrt(v + eps)
def _scatter_add(tgt, idx, src, axis=0):
    return tgt.clone().index_add_(axis, idx, src)
def _segment_sum(src, seg, n):
    out = torch.zeros((n,) + src.shape[1:], dtype=src.dtype)
    return out.index_add_(0, seg, src)
def _pad(x, pw):
    flat = tuple(v for pair in reversed(pw) for v in pair)
    return torch.nn.functional.pad(x, flat)

kernel_name = 'gated_mix__mha_block__sliding_local_dilated__prompt'

def setup_inputs():

    _w = (lambda a: (lambda t: t.to(torch.bfloat16) if t.is_floating_point() else t)(torch.as_tensor(a)))
    def _A_setup():
        B, S, D, H = 1, 2048, 512, 32
        return {
            "x": _w((lambda *s: torch.randn(*s, dtype=torch.bfloat16) * 0.05)(B, S, D)),
            "wqkv": _w((lambda *s: torch.randn(*s, dtype=torch.bfloat16) * 1.6)(D, 3 * D)),
            "wo": _w((lambda *s: torch.randn(*s, dtype=torch.bfloat16) * 0.1)(D, D)),
        }
    _A_in = _A_setup()

    def _B_setup():
        B, S, D = 1, 2048, 512
        return {
            "x": _w((lambda *s: torch.randn(*s, dtype=torch.bfloat16) * 0.05)(B, S, D)),
            "wqkv": _w((lambda *s: torch.randn(*s, dtype=torch.bfloat16) * 1.6)(D, 3 * D)),
            "wo": _w((lambda *s: torch.randn(*s, dtype=torch.bfloat16) * 0.05)(D, D)),
        }
    _B_in = _B_setup()

    return {
        "A_x": _A_in["x"],
        "A_wqkv": _A_in["wqkv"],
        "A_wo": _A_in["wo"],
        "B_x": _B_in["x"],
        "B_wqkv": _B_in["wqkv"],
        "B_wo": _B_in["wo"],
        "gate_w": _w((lambda *s: torch.randn(*s, dtype=torch.bfloat16) * 0.05)(512) * 16.0),
    }

def reference(A_x, A_wqkv, A_wo, B_x, B_wqkv, B_wo, gate_w):
    def _A_ref(x, wqkv, wo):
        B, S, D = x.shape
        H = 32
        Dh = D // H
        qkv = (lambda x, *d: x.permute(*d))((x @ wqkv).reshape(B, S, 3, H, Dh), 2, 0, 3, 1, 4)
        q, k, v = qkv[0], qkv[1], qkv[2]
        scores = torch.einsum("bhqd,bhkd->bhqk", q, k) * (Dh ** -0.5)
        p = _softmax(scores, axis=-1)
        o = torch.einsum("bhqk,bhkd->bhqd", p, v)
        return (lambda x, *d: x.permute(*d))(o, 0, 2, 1, 3).reshape(B, S, D) @ wo

    def _B_ref(x, wqkv, wo):
        B, S, D = x.shape
        H = 32; Dh = D // H
        W, dil = 8, 2
        qkv = (lambda x, *d: x.permute(*d))((x @ wqkv).reshape(B, S, 3, H, Dh), 2, 0, 3, 1, 4)
        q, k, v = qkv[0], qkv[1], qkv[2]
        scale = Dh ** -0.5
        pos = torch.arange(S)
        off = torch.arange(W) * dil
        idx = pos[:, None] - off[None, :]
        mask = idx >= 0
        idx_c = torch.where(mask, idx, 0).reshape(-1)
        kg = k[:, :, idx_c, :].reshape(B, H, S, W, Dh)
        vg = v[:, :, idx_c, :].reshape(B, H, S, W, Dh)
        logits = torch.einsum("bhsd,bhswd->bhsw", q, kg) * scale
        logits = torch.where(mask[None, None, :, :], logits, -1e9)
        attn = _softmax(logits, axis=-1)
        o = torch.einsum("bhsw,bhswd->bhsd", attn, vg)
        return (lambda x, *d: x.permute(*d))(o, 0, 2, 1, 3).reshape(B, S, D) @ wo

    x = A_x
    g = _sigmoid((x * gate_w).sum(-1, keepdims=True))
    a = _A_ref(x, A_wqkv, A_wo)
    b = _B_ref(x, B_wqkv, B_wo)
    return g * a + (1 - g) * b
```

```python
import re

class Asm:
    def __init__(self):
        self.lines = []
    def __call__(self, s):
        for l in s.strip("\n").split("\n"):
            l = l.rstrip()
            if l.strip():
                self.lines.append(l if l.endswith(":") or l.lstrip().startswith(".") or l.lstrip().startswith(";") else "  " + l.strip())
        return self
    def label(self, n):
        self.lines.append(n + ":")
    def text(self):
        return "\n".join(self.lines) + "\n"

def v(i, n=1):
    return f"v{i}" if n == 1 else f"v[{i}:{i+n-1}]"
def s(i, n=1):
    return f"s{i}" if n == 1 else f"s[{i}:{i+n-1}]"
def a(i, n=1):
    return f"a{i}" if n == 1 else f"a[{i}:{i+n-1}]"

REG = re.compile(r"\b([vsa])(\d+)\b|\b([vsa])\[(\d+):(\d+)\]|\b(vcc|exec|m0|scc)\b")
def regs_of(op):
    out = set()
    for m in REG.finditer(op):
        if m.group(1):
            out.add((m.group(1), int(m.group(2))))
        elif m.group(3):
            for i in range(int(m.group(4)), int(m.group(5)) + 1):
                out.add((m.group(3), i))
        else:
            out.add((m.group(6), 0))
    return out

TRANS = ("v_exp_", "v_log_", "v_rcp_", "v_rsq_", "v_sqrt_", "v_sin_", "v_cos_")
def split_ops(rest):
    ops, depth, cur = [], 0, ""
    for ch in rest:
        if ch == "[": depth += 1
        if ch == "]": depth -= 1
        if ch == "," and depth == 0:
            ops.append(cur.strip()); cur = ""
        else:
            cur += ch
    if cur.strip(): ops.append(cur.strip())
    return ops

class Ins:
    def __init__(self, text):
        self.text = text
        t = text.split(";")[0].strip()
        p = t.split(None, 1)
        self.op = p[0]
        rest = p[1] if len(p) > 1 else ""
        self.ops = split_ops(rest)
        op = self.op
        self.mfma = op.startswith(("v_mfma", "v_smfmac"))
        self.valu = op.startswith("v_") and not self.mfma
        self.salu = op.startswith("s_")
        self.vmem = op.startswith(("buffer_", "global_", "flat_"))
        self.ds = op.startswith("ds_")
        self.trans = op.startswith(TRANS)
        self.dpp = "dpp" in op or "row_" in rest or "quad_perm" in rest
        self.perml = op.startswith("v_permlane")
        self.lds_dma = self.vmem and (" lds" in (" " + rest) or "_lds_" in op)
        self.dst, self.src = set(), set()
        o = self.ops
        self.states = 1
        if op == "s_nop":
            self.states = int(o[0], 0) + 1
        if self.mfma:
            self.dst = regs_of(o[0]); self.srcA = regs_of(o[1]); self.srcB = regs_of(o[2]); self.srcC = regs_of(o[3])
            if op.startswith("v_smfmac"):
                self.srcB |= self.srcC; self.srcC = set(self.dst)
            self.src = self.srcA | self.srcB | self.srcC
            self.passes = 8 if "32x32" in op else 4
        elif self.valu:
            if op.startswith("v_cmp"):
                self.dst = regs_of(o[0]); self.src = set().union(*[regs_of(x) for x in o[1:]])
                if op.startswith("v_cmpx"): self.dst |= {("exec", 0)}
            elif self.perml and "swap" in op:
                self.dst = regs_of(o[0]) | regs_of(o[1]); self.src = set(self.dst)
            elif op.startswith(("v_add_co", "v_sub_co", "v_addc_co", "v_subb_co", "v_subrev_co", "v_mad_u64")):
                self.dst = regs_of(o[0]) | regs_of(o[1]); self.src = set().union(*[regs_of(x) for x in o[2:]])
            elif op == "v_nop":
                pass
            else:
                self.dst = regs_of(o[0]); self.src = set().union(set(), *[regs_of(x) for x in o[1:]])
                if op.startswith(("v_fmac", "v_dot2c", "v_pk_fmac", "v_writelane")) or "UNUSED_PRESERVE" in rest or self.dpp:
                    self.src |= self.dst
                if op.startswith("v_cndmask") and len(o) == 3: self.src |= {("vcc", 0)}
        elif self.vmem:
            allr = [regs_of(x) for x in o]
            if "store" in op or "atomic" in op or self.lds_dma or op.startswith(("buffer_inv", "buffer_wbl2")):
                self.src = set().union(set(), *allr)
                if "atomic" in op and "sc0" in rest: self.dst = regs_of(o[0])
                self.store_data = regs_of(o[0]) if op.startswith("buffer_") else (regs_of(o[1]) if len(o) > 1 else set())
                self.wide = ("x4" in op or "x3" in op) and "store" in op
            else:
                self.dst = allr[0]; self.src = set().union(set(), *allr[1:])
            if self.lds_dma: self.src |= {("m0", 0)}
        elif self.ds:
            allr = [regs_of(x) for x in o]
            if op.startswith(("ds_read", "ds_bpermute", "ds_permute", "ds_swizzle")) or "_rtn" in op:
                self.dst = allr[0]; self.src = set().union(set(), *allr[1:])
            else:
                self.src = set().union(set(), *allr)
        elif self.salu:
            if op.startswith(("s_cmp", "s_cbranch", "s_branch", "s_waitcnt", "s_barrier", "s_nop", "s_endpgm", "s_setprio", "s_sleep", "s_bitcmp")):
                self.src = set().union(set(), *[regs_of(x) for x in o])
            else:
                self.dst = regs_of(o[0]) if o else set(); self.src = set().union(set(), *[regs_of(x) for x in o[1:]])
                if "saveexec" in op: self.dst |= {("exec", 0)}

def vg(rs): return {r for r in rs if r[0] in "va"}
def sg(rs): return {r for r in rs if r[0] == "s" or r[0] in ("vcc",)}

def need(p, c):
    n = 0
    def up(k):
        nonlocal n
        n = max(n, k)
    if p.mfma:
        P = p.passes
        if c.mfma:
            if p.dst & (c.srcA | c.srcB): up({4: 8, 8: 12}[P])
            if p.dst & c.srcC and not (p.dst == c.srcC and p.passes == c.passes): up({4: 6, 8: 10}[P])
            if p.dst & c.dst and not (p.dst == c.srcC): up({4: 8, 8: 12}[P])
        elif c.valu or c.vmem or c.ds:
            if p.dst & (c.src | c.dst): up({4: 8, 8: 12}[P])
            if c.valu and (p.srcC & c.dst): up({4: 3, 8: 7}[P])
    if p.valu:
        if c.mfma and vg(p.dst) & c.src: up(2)
        if c.mfma and ("exec", 0) in p.dst: up(4)
        if p.trans and c.valu and not c.trans and p.dst & c.src: up(1)
        if p.trans and (c.vmem or c.ds) and p.dst & c.src: up(1)
        if c.valu and c.dpp and vg(p.dst) & c.src: up(2)
        if c.perml and vg(p.dst) & c.src: up(2)
        if c.op.startswith(("v_readlane", "v_readfirstlane")) and vg(p.dst) & c.src: up(1)
        if c.vmem and sg(p.dst) & c.src: up(5)
        if c.valu and sg(p.dst) & c.src: up(2)
        if c.op.startswith(("v_readlane", "v_writelane")) and sg(p.dst) & c.src: up(4)
        if ("exec", 0) in p.dst and c.valu and c.dpp: up(5)
        if ("exec", 0) in p.dst and (c.perml or c.op.startswith(("v_readlane", "v_readfirstlane", "v_writelane"))): up(4)
        if "sdwa" in p.op or "op_sel" in p.text:
            if c.valu and p.dst & (c.src | c.dst): up(1)
        if c.salu and sg(p.dst) & c.src: up(1)
    if p.salu:
        if ("m0", 0) in p.dst and c.lds_dma: up(1)
    if p.vmem and getattr(p, "wide", False):
        if (c.valu or c.mfma) and p.store_data & c.dst: up(2)
        elif p.store_data & c.dst: up(1)
    return n

def check_seq(ins, where="", edge=None):
    errs = []
    for j, c in enumerate(ins):
        dist = 0
        for i in range(j - 1, max(-1, j - 24), -1):
            p = ins[i]
            if p.op in ("s_branch", "s_endpgm") and i != edge: break
            n = need(p, c)
            if n > dist:
                errs.append(f"{where}: need {n} have {dist}:\n    P: {p.text.strip()}\n    C: {c.text.strip()}")
            dist += p.states
            if dist >= 20: break
    return errs

def check(text):
    lines = [l for l in text.split("\n")]
    ins, labels = [], {}
    for l in lines:
        t = l.split(";")[0].strip()
        if not t or t.startswith("."): continue
        if t.endswith(":"):
            labels[t[:-1]] = len(ins); continue
        ins.append(Ins(l))
    errs = check_seq(ins, "linear")
    for j, c in enumerate(ins):
        if c.op.startswith(("s_cbranch", "s_branch")):
            tgt = labels.get(c.ops[0])
            if tgt is None: continue
            seq = ins[max(0, j - 24): j + 1] + ins[tgt: tgt + 24]
            for e in check_seq(seq, f"edge->{c.ops[0]}", edge=j - max(0, j - 24)):
                if e.replace(f"edge->{c.ops[0]}", "linear") not in errs:
                    errs.append(e)
    return errs
```

```python
import sys
from asmlib import Asm, v, s, check

NAME = "gated_mix__mha_block__sliding_local_dilated__prompt"
QF, KVF, OF, GF = 0, 4 << 20, 12 << 20, 16 << 20
WS_BYTES = 268435456
CSCALE = 0x3EB8AA3B
LOG2E = 0x3FB8AA3B
NEGBIG = 0xF149F2CA
TS = 2080

def header(A, name):
    A(f".globl {name}\n.p2align 8\n.type {name},@function")
    A.label(name)

def srd(A, d, base, nbytes):
    A(f"s_mov_b32 s{d}, s{base}\ns_mov_b32 s{d+1}, s{base+1}\ns_mov_b32 s{d+2}, {nbytes}\ns_mov_b32 s{d+3}, 0x20000")

def descr(name, vgpr, sgpr=96):
    acc = (vgpr + 3) // 4 * 4
    return f""".section .rodata,"a"
.p2align 6
.amdhsa_kernel {name}
  .amdhsa_next_free_vgpr {vgpr}
  .amdhsa_next_free_sgpr {sgpr}
  .amdhsa_accum_offset {acc}
  .amdhsa_group_segment_fixed_size 0
  .amdhsa_kernarg_size 80
  .amdhsa_user_sgpr_count 2
  .amdhsa_user_sgpr_kernarg_segment_ptr 1
  .amdhsa_system_sgpr_workgroup_id_x 1
.end_amdhsa_kernel
"""

def k1():
    A = Asm()
    header(A, "proj_kernel")
    A("""
    s_cmp_ge_u32 s2, 256
    s_cbranch_scc1 Lk1_end
    s_load_dwordx4 s[4:7], s[0:1], 0
    s_load_dwordx2 s[8:9], s[0:1], 32
    s_load_dwordx2 s[10:11], s[0:1], 48
    s_load_dwordx2 s[12:13], s[0:1], 72
    v_lshrrev_b32 v1, 6, v0
    s_and_b32 s41, s2, 7
    v_readfirstlane_b32 s32, v1
    v_and_b32 v1, 63, v0
    s_lshr_b32 s42, s2, 3
    s_and_b32 s33, s41, 1
    s_lshl_b32 s33, s33, 3
    s_and_b32 s43, s42, 7
    s_add_u32 s33, s33, s43          ; rtile
    s_lshr_b32 s34, s41, 1
    s_lshl_b32 s34, s34, 2
    s_lshr_b32 s43, s42, 3
    s_add_u32 s34, s34, s43          ; cg
    s_lshr_b32 s35, s34, 3           ; br
    s_and_b32 s36, s34, 7            ; hg
    s_lshl_b32 s37, s33, 17
    s_lshl_b32 s43, s32, 14
    s_add_u32 s37, s37, s43
    s_mul_i32 s38, s32, 8*3072
    s_lshl_b32 s43, s36, 7
    s_add_u32 s38, s38, s43
    s_lshl_b32 s39, s32, 11
    s_lshl_b32 s40, s32, 10
    s_add_u32 s40, s40, 65536
    ; x DMA voffsets: row=lane/8, chunk=(lane%8)^(lane/16)
    v_lshrrev_b32 v9, 3, v1
    v_and_b32 v10, 7, v1
    v_lshrrev_b32 v11, 4, v1
    v_xor_b32 v12, v10, v11
    v_lshlrev_b32 v12, 4, v12
    v_lshl_add_u32 v2, v9, 10, v12
    v_xor_b32 v3, 64, v2
    v_add_u32 v3, 8192, v3
    ; W DMA voffset: row=lane/8, chunk=(lane%8)^(((row>>1)&1)<<2)
    v_and_b32 v12, 1, v11
    v_lshlrev_b32 v12, 2, v12
    v_xor_b32 v12, v10, v12
    v_lshlrev_b32 v12, 4, v12
    v_mul_u32_u24 v4, 3072, v9
    v_add_u32 v4, v4, v12
    v_lshlrev_b32 v15, 4, v1         ; lane*16
    s_waitcnt lgkmcnt(0)
    """)
    srd(A, 16, 4, 2048 * 1024)
    A("s_cmp_eq_u32 s35, 0\ns_cselect_b32 s20, s6, s8\ns_cselect_b32 s21, s7, s9\ns_mov_b32 s22, 512*3072\ns_mov_b32 s23, 0x20000")
    srd(A, 24, 12, WS_BYTES)
    srd(A, 28, 10, 1024)
    A("""
    s_lshl_b32 s44, s2, 3
    s_add_u32 s44, s44, s32
    s_lshl_b32 s43, s44, 10
    buffer_load_dwordx4 v[112:115], v15, s[16:19], s43 offen
    buffer_load_dwordx4 v[116:119], v15, s[28:31], 0 offen
    """)
    def dma(st):
        sl = st % 4
        A(f"s_add_u32 s43, s37, {st*128}")
        A(f"s_add_u32 m0, s39, {sl*16384}")
        A(f"s_add_u32 s45, s38, {st*64*3072}")
        A("buffer_load_dwordx4 v2, s[16:19], s43 offen lds")
        A(f"s_add_u32 m0, s39, {sl*16384+1024}")
        A(f"s_add_u32 s46, s38, {st*64*3072+1024}")
        A("buffer_load_dwordx4 v3, s[16:19], s43 offen lds")
        A(f"s_add_u32 m0, s40, {sl*24576}")
        A(f"s_add_u32 s47, s38, {st*64*3072+2048}")
        A("buffer_load_dwordx4 v4, s[20:23], s45 offen lds")
        A(f"s_add_u32 m0, s40, {sl*24576+8192}")
        A("s_nop 0")
        A("buffer_load_dwordx4 v4, s[20:23], s46 offen lds")
        A(f"s_add_u32 m0, s40, {sl*24576+16384}")
        A("s_nop 0")
        A("buffer_load_dwordx4 v4, s[20:23], s47 offen lds")
    for st in range(4):
        dma(st)
    A("""
    s_and_b32 s48, s32, 3            ; rt
    s_lshr_b32 s49, s32, 2           ; ch
    v_and_b32 v9, 31, v1
    v_lshrrev_b32 v10, 5, v1         ; hh
    v_bfe_u32 v11, v9, 1, 3          ; f(row)
    v_xor_b32 v11, v11, v10          ; hh ^ f
    s_lshl_b32 s43, s48, 12
    v_lshl_add_u32 v12, v9, 7, s43   ; (rt*32+row)*128
    """)
    for ks in range(4):
        A(f"v_xor_b32 v13, {2*ks}, v11\nv_lshl_add_u32 v{5+ks}, v13, 4, v12")
    A("""
    v_bfe_u32 v9, v1, 2, 2           ; r
    v_lshl_add_u32 v12, v10, 3, v9   ; 8hh + r
    v_lshlrev_b32 v12, 7, v12
    v_lshrrev_b32 v9, 1, v9
    v_xor_b32 v9, s49, v9            ; ch ^ (r>>1)
    v_lshl_add_u32 v12, v9, 6, v12
    v_bfe_u32 v9, v1, 4, 1           ; sel
    v_lshl_add_u32 v12, v9, 5, v12
    v_and_b32 v9, 3, v1
    v_lshl_add_u32 v12, v9, 3, v12
    v_add_u32 v13, 65536, v12
    v_add_u32 v14, 65536+49152, v12  ; slots 2,3
    """)
    for i in range(48):
        A(f"v_mov_b32 v{32+i}, 0")
    A("s_waitcnt vmcnt(20)")
    for i in range(4):
        A(f"""
        v_lshlrev_b32 v16, 16, v{112+i}
        v_and_b32 v17, 0xffff0000, v{112+i}
        v_lshlrev_b32 v18, 16, v{116+i}
        v_and_b32 v19, 0xffff0000, v{116+i}
        v_mul_f32 v16, v16, v18
        v_mul_f32 v17, v17, v19
        v_cvt_pk_bf16_f32 v16, v16, v17
        v_and_b32 v17, 0xffff0000, v16
        v_lshlrev_b32 v16, 16, v16
        v_add_f32 v{20+i}, v16, v17
        """)
    A("""
    v_add_f32 v20, v20, v21
    v_add_f32 v22, v22, v23
    v_add_f32 v20, v20, v22
    s_nop 1
    v_add_f32_dpp v20, v20, v20 row_shr:1 row_mask:0xf bank_mask:0xf bound_ctrl:0
    s_nop 1
    v_add_f32_dpp v20, v20, v20 row_shr:2 row_mask:0xf bank_mask:0xf bound_ctrl:0
    s_nop 1
    v_add_f32_dpp v20, v20, v20 row_shr:4 row_mask:0xf bank_mask:0xf bound_ctrl:0
    s_nop 1
    v_add_f32_dpp v20, v20, v20 row_shr:8 row_mask:0xf bank_mask:0xf bound_ctrl:0
    s_nop 1
    v_readlane_b32 s50, v20, 15
    v_readlane_b32 s51, v20, 31
    v_readlane_b32 s52, v20, 47
    v_readlane_b32 s53, v20, 63
    s_nop 1
    v_mov_b32 v20, s50
    v_add_f32 v20, s51, v20
    v_mov_b32 v21, s52
    v_add_f32 v21, s53, v21
    v_add_f32 v20, v20, v21
    v_cvt_pk_bf16_f32 v20, v20, v20
    v_lshlrev_b32 v20, 16, v20
    """)
    A(f"v_mul_f32 v20, {hex(LOG2E ^ 0x80000000)}, v20")
    A("""
    v_exp_f32 v20, v20
    s_nop 0
    v_add_f32 v20, 1.0, v20
    v_rcp_f32 v20, v20
    s_nop 0
    v_cvt_pk_bf16_f32 v20, v20, v20
    v_lshlrev_b32 v120, 16, v20
    v_sub_f32 v21, 1.0, v120
    v_cvt_pk_bf16_f32 v21, v21, v21
    v_lshlrev_b32 v121, 16, v21
    """)
    def reads(st, ks, buf):
        sl = st % 4
        b = 80 + 16 * buf
        A(f"ds_read_b128 {v(b,4)}, v{5+ks} offset:{sl*16384}")
        wb = 13 if sl < 2 else 14
        for seg in range(3):
            for t in range(2):
                off = (sl % 2) * 24576 + seg * 8192 + ks * 2048 + t * 512
                A(f"ds_read_b64_tr_b16 {v(b+4+4*seg+2*t,2)}, v{wb} offset:{off}")
    def mm(buf):
        b = 80 + 16 * buf
        A(f"v_mfma_f32_32x32x16_bf16 v[32:47], {v(b+4,4)}, {v(b,4)}, v[32:47]")
        A(f"v_mfma_f32_32x32x16_bf16 v[48:63], {v(b+8,4)}, {v(b,4)}, v[48:63]")
        A(f"v_mfma_f32_32x32x16_bf16 v[64:79], {v(b,4)}, {v(b+12,4)}, v[64:79]")
    for st in range(8):
        n = 15 if st == 0 else min(10, (7 - st) * 5)
        A(f"s_waitcnt vmcnt({n})\ns_barrier")
        reads(st, 0, 0)
        reads(st, 1, 1)
        if 1 <= st <= 4:
            dma(st + 3)
        A("s_waitcnt lgkmcnt(7)"); mm(0)
        reads(st, 2, 0)
        A("s_waitcnt lgkmcnt(7)"); mm(1)
        reads(st, 3, 1)
        A("s_waitcnt lgkmcnt(7)"); mm(0)
        A("s_waitcnt lgkmcnt(0)"); mm(1)
    A("""
    s_lshl_b32 s43, s33, 2
    s_add_u32 s43, s43, s48          ; t
    s_lshl_b32 s45, s35, 5
    s_lshl_b32 s46, s36, 2
    s_add_u32 s45, s45, s46
    s_lshl_b32 s46, s49, 1
    s_add_u32 s45, s45, s46          ; br*32+head0
    s_lshl_b32 s45, s45, 6
    s_add_u32 s45, s45, s43          ; *64 + t
    s_lshl_b32 s46, s45, 10          ; Q off
    s_add_u32 s47, s46, 65536
    s_lshl_b32 s50, s45, 11
    """)
    A(f"s_add_u32 s50, s50, {KVF}\ns_add_u32 s51, s50, 131072\ns_mov_b32 s52, {hex(CSCALE)}")
    A("""
    v_bfe_u32 v9, v1, 4, 1
    v_lshlrev_b32 v9, 17, v9
    v_lshl_add_u32 v9, v10, 9, v9
    v_and_b32 v11, 15, v1
    v_lshl_add_u32 v9, v11, 5, v9    ; V voffset
    """)
    for i in range(8):
        A(f"""
        v_cvt_pk_bf16_f32 v16, v{32+2*i}, v{33+2*i}
        v_and_b32 v17, 0xffff0000, v16
        v_lshlrev_b32 v16, 16, v16
        v_mul_f32 v16, s52, v16
        v_mul_f32 v17, s52, v17
        v_cvt_pk_bf16_f32 v{80+i}, v16, v17
        """)
    A("buffer_store_dwordx4 v[80:83], v15, s[24:27], s46 offen")
    A("buffer_store_dwordx4 v[84:87], v15, s[24:27], s47 offen")
    for i in range(8):
        A(f"v_cvt_pk_bf16_f32 v{88+i}, v{48+2*i}, v{49+2*i}")
    A("buffer_store_dwordx4 v[88:91], v15, s[24:27], s50 offen")
    A("buffer_store_dwordx4 v[92:95], v15, s[24:27], s51 offen")
    for i in range(8):
        A(f"v_cvt_pk_bf16_f32 v{96+i}, v{64+2*i}, v{65+2*i}")
    A("buffer_store_dwordx4 v[96:99], v9, s[24:27], s50 offen offset:1024")
    A("buffer_store_dwordx4 v[100:103], v9, s[24:27], s50 offen offset:1040")
    A(f"""
    s_lshl_b32 s44, s44, 3
    s_add_u32 s44, s44, {GF}
    v_mov_b32 v16, 0
    s_mov_b64 exec, 1
    buffer_store_dwordx2 v[120:121], v16, s[24:27], s44 offen
    """)
    A.label("Lk1_end")
    A("s_endpgm")
    return A.text(), descr("proj_kernel", 128)

def k2():
    A = Asm()
    header(A, "attn_kernel")
    Q, C, SA, SB, P, O, KF, V1, V2 = 16, 32, 48, 64, 80, 96, 20, 24, 28
    A("""
    s_cmp_ge_u32 s2, 256
    s_cbranch_scc1 Lk2_end
    s_load_dwordx2 s[12:13], s[0:1], 72
    v_lshrrev_b32 v1, 6, v0
    s_and_b32 s41, s2, 7
    v_readfirstlane_b32 s20, v1
    v_and_b32 v1, 63, v0
    s_lshr_b32 s42, s2, 3
    s_lshl_b32 s21, s41, 2
    s_lshr_b32 s43, s42, 3
    s_add_u32 s21, s21, s43          ; h
    s_and_b32 s22, s42, 7            ; rb
    s_lshl_b32 s23, s22, 3
    s_add_u32 s23, s23, s20          ; t
    v_lshlrev_b32 v2, 4, v1          ; lane*16
    v_lshrrev_b32 v3, 5, v1          ; hh
    v_and_b32 v4, 15, v1
    v_lshlrev_b32 v4, 5, v4
    v_lshl_add_u32 v4, v3, 9, v4
    v_and_b32 v5, 31, v1             ; q
    v_lshlrev_b32 v6, 3, v5          ; g offset
    s_lshl_b32 s24, s21, 6           ; h*64
    s_add_u32 s25, s24, s23          ; h*64+t
    s_lshl_b32 s26, s25, 10
    """)
    A(f"""
    s_add_u32 s27, s26, {32*64*1024}
    s_lshl_b32 s28, s25, 11
    s_add_u32 s28, s28, {KVF + 32*64*2048} ; KVB(t)
    s_sub_u32 s29, s28, 2048
    s_cmp_eq_u32 s23, 0
    s_cselect_b32 s29, s28, s29      ; KVB(t-1)
    s_lshl_b32 s30, s23, 8
    s_add_u32 s30, s30, {GF}
    s_add_u32 s31, s24, s20
    s_lshl_b32 s31, s31, 11
    s_add_u32 s31, s31, {KVF}
    s_mul_i32 s32, s20, {TS}
    """)
    for i in range(124, 136):
        A(f"v_mov_b32 v{i}, 0x3f803f80")
    A("s_waitcnt lgkmcnt(0)")
    srd(A, 16, 12, WS_BYTES)
    A(f"""
    buffer_load_dwordx4 v[112:115], v2, s[16:19], s27 offen
    buffer_load_dwordx4 v[116:119], v2, s[16:19], s28 offen
    buffer_load_dwordx4 v[120:123], v2, s[16:19], s29 offen
    s_mov_b32 s34, 0x0000ffff
    s_mov_b32 s35, 0x0000ffff
    s_mov_b64 exec, s[34:35]
    buffer_load_dwordx4 v[124:127], v4, s[16:19], s28 offen offset:1024
    buffer_load_dwordx4 v[128:131], v4, s[16:19], s28 offen offset:1040
    buffer_load_dwordx4 v[132:135], v4, s[16:19], s29 offen offset:1040
    s_mov_b64 exec, -1
    buffer_load_dwordx2 v[136:137], v6, s[16:19], s30 offen
    buffer_load_dwordx4 {v(Q,4)}, v2, s[16:19], s26 offen
    """)
    for i in range(8):
        A(f"s_add_u32 m0, s32, {i*8*TS}\ns_add_u32 s33, s31, {i*8*2048}")
        A("buffer_load_dwordx4 v2, s[16:19], s33 offen lds")
        A("buffer_load_dwordx4 v2, s[16:19], s33 offen offset:1024 lds")
    A(f"""
    v_lshrrev_b32 v7, 1, v1
    v_mul_u32_u24 v7, {8*TS}, v7
    v_and_b32 v8, 1, v1
    v_lshl_add_u32 v7, v8, 4, v7
    v_add_u32 v7, s32, v7
    v_mov_b32 v8, 0x3f803f80
    v_mov_b32 v9, 0x3f803f80
    v_mov_b32 v10, 0x3f803f80
    v_mov_b32 v11, 0x3f803f80
    s_mov_b64 exec, 0xffff
    ds_write_b128 v7, v[8:11] offset:2048
    s_mov_b64 exec, -1
    """)
    A(f"""
    v_mov_b32 v12, v2
    v_add_u32 v13, 1024, v4
    v_mov_b32 v14, 2048
    v_cmp_gt_u32 vcc, 16, v5
    s_nop 1
    v_cndmask_b32 v13, v14, v13, vcc
    """)
    A(f"""
    v_lshlrev_b32 v7, 2, v3
    v_sub_u32 v7, v5, v7
    v_add_u32 v7, 18, v7
    v_mov_b32 v8, 0x5555
    v_mov_b32 v9, 0
    v_lshlrev_b64 v[8:9], v7, v[8:9]
    s_cmp_eq_u32 s23, 0
    s_cselect_b32 s36, 0, -1
    v_and_b32 v8, s36, v8
    v_not_b32 v8, v8
    v_not_b32 v9, v9
    s_mov_b32 s37, {hex(NEGBIG)}
    """)
    for i in range(16):
        pos = 8 * (i // 4) + i % 4
        A(f"v_bfe_i32 v{SA+i}, v9, {pos}, 1\nv_and_b32 v{SA+i}, s37, v{SA+i}")
    for i in range(16):
        pos = 8 * (i // 4) + i % 4
        if i < 8:
            A(f"v_mov_b32 v{SB+i}, 0")
        else:
            A(f"v_bfe_i32 v{SB+i}, v8, {pos}, 1\nv_and_b32 v{SB+i}, s37, v{SB+i}")
    A("s_waitcnt vmcnt(21)")
    A(f"v_mfma_f32_32x32x16_bf16 {v(SA,16)}, v[116:119], v[112:115], {v(SA,16)}")
    A(f"v_mfma_f32_32x32x16_bf16 {v(SB,16)}, v[120:123], v[112:115], {v(SB,16)}")
    A("s_nop 11")
    regs = [SA + i for i in range(16)] + [SB + i for i in range(8, 16)]
    A(f"v_max3_f32 v7, v{regs[0]}, v{regs[1]}, v{regs[2]}")
    for i in range(3, 23, 2):
        A(f"v_max3_f32 v7, v7, v{regs[i]}, v{regs[i+1]}")
    A(f"v_max_f32 v7, v7, v{regs[23]}")
    A("v_mov_b32 v8, v7\ns_nop 1\nv_permlane32_swap_b32 v7, v8\nv_max_f32 v7, v7, v8")
    for r in regs:
        A(f"v_sub_f32 v{r}, v{r}, v7")
    for r in regs:
        A(f"v_exp_f32 v{r}, v{r}")
    A("s_nop 0")
    for i in range(12):
        A(f"v_cvt_pk_bf16_f32 v{P+i}, v{regs[2*i]}, v{regs[2*i+1]}")
    A("s_waitcnt vmcnt(17)")
    A(f"v_mfma_f32_32x32x16_bf16 {v(O,16)}, v[124:127], {v(P,4)}, 0")
    A(f"v_mfma_f32_32x32x16_bf16 {v(O,16)}, v[128:131], {v(P+4,4)}, {v(O,16)}")
    A(f"v_mfma_f32_32x32x16_bf16 {v(O,16)}, v[132:135], {v(P+8,4)}, {v(O,16)}")
    A(f"""
    s_lshl_b32 s38, s23, 6
    s_add_u32 s38, s38, s21
    s_lshl_b32 s38, s38, 10
    s_add_u32 s38, s38, {OF}
    s_add_u32 s39, s38, 32768
    s_nop 7
    v_rcp_f32 v7, v{O+8}
    s_nop 0
    v_mul_f32 v7, v7, v137
    """)
    for i in range(8):
        A(f"v_mul_f32 v{O+i}, v{O+i}, v7")
    for i in range(4):
        A(f"v_cvt_pk_bf16_f32 v{112+i}, v{O+2*i}, v{O+2*i+1}")
    A("s_waitcnt vmcnt(12) lgkmcnt(0)")
    A("buffer_store_dwordx4 v[112:115], v2, s[16:19], s39 offen")
    A("s_barrier")
    A(f"ds_read_b128 {v(KF,4)}, v12")
    A("s_mov_b32 s40, 0")
    A("s_waitcnt lgkmcnt(0)")
    A(f"v_mfma_f32_32x32x16_bf16 {v(SA,16)}, {v(KF,4)}, {v(Q,4)}, 0")
    A("s_nop 11")
    A(f"v_max3_f32 v7, v{SA}, v{SA+1}, v{SA+2}")
    for i in range(3, 15, 2):
        A(f"v_max3_f32 v7, v7, v{SA+i}, v{SA+i+1}")
    A(f"v_max_f32 v7, v7, v{SA+15}")
    A.label("Lk2_restart")
    A("v_mov_b32 v8, v7\ns_nop 1\nv_permlane32_swap_b32 v7, v8\nv_max_f32 v7, v7, v8")
    for i in range(16):
        A(f"v_sub_f32 v{C+i}, 0, v7")
    for i in range(16):
        A(f"v_mov_b32 v{O+i}, 0")
    for i in range(4):
        A(f"v_mov_b32 v{P+4+i}, 0")
    A(f"v_mov_b32 v12, v2")
    A(f"v_subrev_u32 v13, s41, v13" if False else "")
    A(f"ds_read_b128 {v(KF,4)}, v12")
    A(f"ds_read_b128 {v(V2,4)}, v13 offset:16")
    A(f"ds_read_b128 {v(V1,4)}, v13")
    A("s_waitcnt lgkmcnt(2)")
    A(f"v_mfma_f32_32x32x16_bf16 {v(SA,16)}, {v(KF,4)}, {v(Q,4)}, {v(C,16)}")
    A(f"ds_read_b128 {v(KF,4)}, v12 offset:{TS}")
    A("s_waitcnt lgkmcnt(0)")
    A("s_nop 9")
    A("s_mov_b32 s41, 0")
    def tile(j):
        Sa, Sb = (SA, SB) if j % 2 == 0 else (SB, SA)
        ex = lambda i: A(f"v_exp_f32 v{Sa+i}, v{Sa+i}")
        cv = lambda i: A(f"v_cvt_pk_bf16_f32 v{P+i}, v{Sa+2*i}, v{Sa+2*i+1}")
        A("s_waitcnt lgkmcnt(2)")
        A(f"v_mfma_f32_32x32x16_bf16 {v(Sb,16)}, {v(KF,4)}, {v(Q,4)}, {v(C,16)}")
        A(f"ds_read_b128 {v(KF,4)}, v12 offset:{(j+2)*TS}")
        for i in range(5): ex(i)
        A("s_waitcnt lgkmcnt(2)")
        A(f"v_mfma_f32_32x32x16_bf16 {v(O,16)}, {v(V2,4)}, {v(P+4,4)}, {v(O,16)}")
        A(f"ds_read_b128 {v(V2,4)}, v13 offset:{j*TS+16}")
        for i in range(5, 8): ex(i)
        for i in range(4): cv(i)
        for i in range(8, 10): ex(i)
        A("s_waitcnt lgkmcnt(2)")
        A(f"v_mfma_f32_32x32x16_bf16 {v(O,16)}, {v(V1,4)}, {v(P,4)}, {v(O,16)}")
        A(f"ds_read_b128 {v(V1,4)}, v13 offset:{(j+1)*TS}")
        for i in range(10, 16): ex(i)
        for i in range(4, 8): cv(i)
    A(".p2align 6")
    A.label("Lk2_loop")
    for j in range(8):
        tile(j)
    A(f"v_add_u32 v12, {8*TS}, v12\nv_add_u32 v13, {8*TS}, v13")
    A("s_add_u32 s41, s41, 1")
    A("s_or_b32 s42, s41, s40")
    A("s_cmp_lg_u32 s42, 1")
    A("s_cbranch_scc1 Lk2_nobar")
    A("s_waitcnt vmcnt(0)\ns_barrier")
    A.label("Lk2_nobar")
    A("s_cmp_lt_u32 s41, 8\ns_cbranch_scc1 Lk2_loop")
    A("s_waitcnt lgkmcnt(0)")
    A(f"v_mfma_f32_32x32x16_bf16 {v(O,16)}, {v(V2,4)}, {v(P+4,4)}, {v(O,16)}")
    A(f"v_subrev_u32 v13, {64*TS}, v13")
    A("s_mov_b32 s43, 0x53800000      ; 2^40")
    A("s_nop 10")
    A("s_cmp_lg_u32 s40, 0\ns_cbranch_scc1 Lk2_fin")
    A(f"v_cmp_ngt_f32 vcc, s43, v{O+8}")
    A("s_nop 1\ns_cbranch_vccz Lk2_fin")
    A("s_mov_b32 s40, 16\nv_mov_b32 v12, v2\ns_mov_b32 s41, 0")
    A(f"v_mov_b32 v7, 0xff800000")
    A.label("Lk2_maxloop")
    A(f"ds_read_b128 {v(KF,4)}, v12")
    A(f"v_add_u32 v12, {TS}, v12")
    A("s_waitcnt lgkmcnt(0)")
    A(f"v_mfma_f32_32x32x16_bf16 {v(SA,16)}, {v(KF,4)}, {v(Q,4)}, 0")
    A("s_nop 11")
    for i in range(0, 16, 2):
        A(f"v_max3_f32 v7, v7, v{SA+i}, v{SA+i+1}")
    A("s_add_u32 s41, s41, 1\ns_cmp_lt_u32 s41, 64\ns_cbranch_scc1 Lk2_maxloop")
    A("s_branch Lk2_restart")
    A.label("Lk2_fin")
    A(f"v_rcp_f32 v7, v{O+8}\ns_nop 0\nv_mul_f32 v7, v7, v136")
    for i in range(8):
        A(f"v_mul_f32 v{O+i}, v{O+i}, v7")
    for i in range(4):
        A(f"v_cvt_pk_bf16_f32 v{112+i}, v{O+2*i}, v{O+2*i+1}")
    A("buffer_store_dwordx4 v[112:115], v2, s[16:19], s38 offen")
    A.label("Lk2_end")
    A("s_endpgm")
    return A.text(), descr("attn_kernel", 144)

def k3():
    A = Asm()
    header(A, "oproj_kernel")
    A("""
    s_cmp_ge_u32 s2, 256
    s_cbranch_scc1 Lk3_end
    s_load_dwordx2 s[4:5], s[0:1], 16
    s_load_dwordx2 s[6:7], s[0:1], 40
    s_load_dwordx2 s[8:9], s[0:1], 56
    s_load_dwordx2 s[12:13], s[0:1], 72
    v_lshrrev_b32 v1, 6, v0
    s_and_b32 s41, s2, 7
    v_readfirstlane_b32 s32, v1
    v_and_b32 v1, 63, v0
    s_lshr_b32 s42, s2, 3
    s_and_b32 s33, s41, 3
    s_lshl_b32 s33, s33, 3
    s_and_b32 s43, s42, 7
    s_add_u32 s33, s33, s43          ; rt2 (0..31)
    s_lshr_b32 s34, s41, 2
    s_lshl_b32 s34, s34, 2
    s_lshr_b32 s43, s42, 3
    s_add_u32 s34, s34, s43          ; ct2 (0..7)
    s_lshr_b32 s35, s32, 2
    s_bfe_u32 s36, s32, 0x10001      ; (w/2)%2
    s_and_b32 s37, s32, 1            ; w%2
    ; O dma source: OF + (((2*rt2+rt')*2+br')*32 + 2*(w%2))*1024
    s_lshl_b32 s38, s33, 1
    s_add_u32 s38, s38, s35
    s_lshl_b32 s38, s38, 1
    s_add_u32 s38, s38, s36
    s_lshl_b32 s38, s38, 4
    s_add_u32 s38, s38, s37
    s_lshl_b32 s38, s38, 11
    """)
    A(f"s_add_u32 s38, s38, {OF}")
    A("""
    s_and_b32 s39, s32, 3
    s_lshl_b32 s39, s39, 14
    s_lshl_b32 s43, s34, 7
    s_add_u32 s39, s39, s43
    s_lshl_b32 s40, s32, 11
    v_lshlrev_b32 v2, 4, v1
    v_lshrrev_b32 v9, 3, v1
    v_and_b32 v10, 7, v1
    v_bfe_u32 v11, v1, 4, 1
    v_lshlrev_b32 v11, 2, v11
    v_xor_b32 v10, v10, v11
    v_lshlrev_b32 v10, 4, v10
    v_lshl_add_u32 v3, v9, 10, v10
    s_waitcnt lgkmcnt(0)
    """)
    A("s_cmp_eq_u32 s35, 0\ns_cselect_b32 s20, s4, s6\ns_cselect_b32 s21, s5, s7\ns_mov_b32 s22, 512*1024\ns_mov_b32 s23, 0x20000")
    srd(A, 24, 12, WS_BYTES)
    srd(A, 16, 8, 2048 * 1024)
    def dma(st):
        sl = st % 4
        A(f"s_add_u32 m0, s40, {sl*16384}")
        A(f"s_add_u32 s43, s38, {st*4096}")
        A("buffer_load_dwordx4 v2, s[24:27], s43 offen lds")
        A("buffer_load_dwordx4 v2, s[24:27], s43 offen offset:1024 lds")
        A(f"s_add_u32 m0, s40, {65536+sl*16384}")
        A(f"s_add_u32 s44, s39, {st*65536}")
        A("buffer_load_dwordx4 v3, s[20:23], s44 offen lds")
        A(f"s_add_u32 m0, s40, {65536+sl*16384+1024}")
        A(f"s_add_u32 s44, s39, {st*65536+8192}")
        A("buffer_load_dwordx4 v3, s[20:23], s44 offen lds")
    for st in range(4):
        dma(st)
    A("""
    v_lshrrev_b32 v10, 5, v1         ; hh
    s_lshl_b32 s43, s36, 1
    s_add_u32 s43, s43, s35
    s_lshl_b32 s43, s43, 12
    v_add_u32 v5, s43, v2
    v_bfe_u32 v9, v1, 2, 2           ; r
    v_lshl_add_u32 v12, v10, 2, v9
    v_lshlrev_b32 v12, 7, v12
    v_lshrrev_b32 v9, 1, v9
    v_xor_b32 v9, s37, v9
    v_lshl_add_u32 v12, v9, 6, v12
    v_bfe_u32 v9, v1, 4, 1
    v_lshl_add_u32 v12, v9, 5, v12
    v_and_b32 v9, 3, v1
    v_lshl_add_u32 v12, v9, 3, v12
    s_lshl_b32 s43, s35, 13
    s_add_u32 s43, s43, 65536
    v_add_u32 v6, s43, v12
    """)
    for i in range(16):
        A(f"v_mov_b32 v{32+i}, 0")
    for st in range(8):
        sl = st % 4
        n = 12 if st == 0 else min(8, (7 - st) * 4)
        A(f"s_waitcnt vmcnt({n})\ns_barrier")
        for hq in range(4):
            b = 48 + 8 * hq
            A(f"ds_read_b128 {v(b,4)}, v5 offset:{sl*16384 + hq*1024}")
            A(f"ds_read_b64_tr_b16 {v(b+4,2)}, v6 offset:{sl*16384 + hq*2048}")
            A(f"ds_read_b64_tr_b16 {v(b+6,2)}, v6 offset:{sl*16384 + hq*2048 + 1024}")
        if 1 <= st <= 4:
            dma(st + 3)
        for hq in range(4):
            b = 48 + 8 * hq
            A(f"s_waitcnt lgkmcnt({9-3*hq})")
            A(f"v_mfma_f32_32x32x16_bf16 v[32:47], {v(b+4,4)}, {v(b,4)}, v[32:47]")
    A("""
    s_and_b32 s43, s32, 3
    s_lshl_b32 s43, s43, 12
    s_add_u32 s43, s43, 131072
    v_add_u32 v7, s43, v2
    s_nop 9
    s_cmp_eq_u32 s35, 0
    s_cbranch_scc1 Lk3_a
    ds_write_b128 v7, v[32:35]
    ds_write_b128 v7, v[36:39] offset:1024
    ds_write_b128 v7, v[40:43] offset:2048
    ds_write_b128 v7, v[44:47] offset:3072
    s_waitcnt lgkmcnt(0)
    s_barrier
    s_endpgm
    """)
    A.label("Lk3_a")
    A("""
    s_barrier
    ds_read_b128 v[48:51], v7
    ds_read_b128 v[52:55], v7 offset:1024
    ds_read_b128 v[56:59], v7 offset:2048
    ds_read_b128 v[60:63], v7 offset:3072
    v_and_b32 v9, 31, v1
    v_lshlrev_b32 v9, 10, v9
    v_lshl_add_u32 v9, v10, 4, v9
    s_lshl_b32 s43, s33, 1
    s_add_u32 s43, s43, s36
    s_lshl_b32 s43, s43, 15
    s_lshl_b32 s44, s34, 7
    s_add_u32 s43, s43, s44
    s_lshl_b32 s44, s37, 6
    s_add_u32 s43, s43, s44
    s_waitcnt lgkmcnt(0)
    """)
    for i in range(16):
        A(f"v_add_f32 v{32+i}, v{32+i}, v{48+i}")
    for i in range(8):
        A(f"v_cvt_pk_bf16_f32 v{64+i}, v{32+2*i}, v{33+2*i}")
    A("""
    s_nop 1
    v_permlane32_swap_b32 v64, v66
    v_permlane32_swap_b32 v65, v67
    v_permlane32_swap_b32 v68, v70
    v_permlane32_swap_b32 v69, v71
    buffer_store_dwordx4 v[64:67], v9, s[16:19], s43 offen
    buffer_store_dwordx4 v[68:71], v9, s[16:19], s43 offen offset:32
    """)
    A.label("Lk3_end")
    A("s_endpgm")
    return A.text(), descr("oproj_kernel", 80)

def main():
    ref = open(f"cdna_kernels/{NAME}.s.ref").read().split("\n")
    head = [l for l in ref if l.startswith(";") and "@launch" not in l and "Override" not in l and "grid=ceil" not in l]
    head += ["; @launch kernel=proj_kernel grid=(256,1,1) block=(512,1,1) lds=163840",
             f"; @launch kernel=attn_kernel grid=(256,1,1) block=(512,1,1) lds={66*TS}",
             "; @launch kernel=oproj_kernel grid=(256,1,1) block=(512,1,1) lds=147456"]
    out = "\n".join(head) + '\n.amdgcn_target "amdgcn-amd-amdhsa--gfx950"\n.text\n'
    ds = ""
    for f in (k1, k2, k3):
        t, d = f()
        errs = check(t)
        for e in errs: print("HAZARD", f.__name__, e)
        out += t
        ds += d
    out += ds
    path = sys.argv[1] if len(sys.argv) > 1 else f"cdna_kernels/{NAME}.s"
    open(path, "w").write(out)
    print("wrote", path, len(out))
main()
```

```python
import sys, os
from asmlib import Asm, v, s, check

NAME = "gated_mix__mha_block__sliding_local_dilated__prompt"
KNAME = NAME + "_kernel"
OPT = dict(x.split("=") for x in os.environ.get("OPT", "").split(",") if x)
INSTR = os.environ.get("INSTR")
QF, KVF, OF, FL, WOF = 0, 2 << 20, 6 << 20, 10 << 20, 11 << 20
FA, FOA, FOB = FL, FL + 2048, FL + 2048 + 8192
WS_BYTES = 268435456
CSCALE = 0x3EB8AA3B
LOG2E = 0x3FB8AA3B
NEGBIG = 0xF149F2CA
ONES = 0x3f803f80
TS = 2080
L_X, L_H, L_W, L_G, L_WT = 0, 65536, 81920, 155648, 156672
L_EX = 163840 - 256 - 12 * TS
L_GV = 163840 - 256
L_RED = 65536
SPIN_MAX = 1 << 18

class G(Asm):
    def __init__(self):
        super().__init__()
        self.vm, self.lg = [], []
    def vmem(self, text, tag=None):
        self(text); self.vm.append(tag)
    def lds(self, text, tag=None):
        self(text); self.lg.append(tag)
    def _n(self, q, tags):
        if isinstance(tags, str): tags = [tags]
        idx = [i for i, t in enumerate(q) if t in tags]
        if not idx: return None
        return len(q) - 1 - idx[-1]
    def wait(self, vm=None, lg=None):
        parts = []
        if vm is not None:
            n = 0 if vm == "all" else self._n(self.vm, vm)
            if n is not None:
                assert n <= 63
                parts.append(f"vmcnt({n})"); self.vm = self.vm[len(self.vm) - n:] if n else []
        if lg is not None:
            n = 0 if lg == "all" else self._n(self.lg, lg)
            if n is not None:
                n = min(n, 15)
                parts.append(f"lgkmcnt({n})"); self.lg = self.lg[len(self.lg) - n:] if n else []
        if parts: self("s_waitcnt " + " ".join(parts))

def srd(A, d, base, nbytes):
    A(f"s_mov_b32 s{d}, s{base}\ns_mov_b32 s{d+1}, s{base+1}\ns_mov_b32 s{d+2}, {nbytes}\ns_mov_b32 s{d+3}, 0x20000")

NST = [0]
def stamp(A):
    if INSTR:
        i = NST[0]; NST[0] += 1
        assert i < 14
        if i == 0: A("s_memrealtime s[98:99]")
        A(f"s_memtime s[{68+2*i}:{69+2*i}]"); A.wait(lg="all")

S_X, S_WA, S_WB, S_WS, S_DBG, S_T = 16, 20, 24, 28, 32, 36
sW, sRT64, sCG, sCH, sCGQ, sH, sT, sRT, sHD, sN = 40, 41, 42, 43, 44, 45, 46, 47, 48, 49
sXO, sWO, sM1, sRDY, sPASS, sIT = 50, 51, 52, 53, 54, 55
t0, t1, t2, t3, t4, t5 = 56, 57, 58, 59, 60, 61
sKV, sKVL, sWOB, sSTG = 62, 63, 64, 65
sEXP, sFL2 = 3, 14
MF16 = "v_mfma_f32_16x16x32_bf16"
MF32 = "v_mfma_f32_32x32x16_bf16"
WS = f"s[{S_WS}:{S_WS+3}]"

def interleave(A, main, fill, per=2, start=0):
    fill = list(fill)
    for i, m in enumerate(main):
        m()
        if i >= start:
            for _ in range(per):
                if fill: fill.pop(0)()
    for f in fill: f()

def kernel():
    A = G()
    A(f".globl {KNAME}\n.p2align 8\n.type {KNAME},@function")
    A.label(KNAME)
    A("s_cmp_ge_u32 s2, 256\ns_cbranch_scc1 Lend")
    stamp(A)
    A("""
    s_load_dwordx4 s[4:7], s[0:1], 0
    s_load_dwordx2 s[8:9], s[0:1], 16
    s_load_dwordx2 s[10:11], s[0:1], 32
    s_load_dwordx2 s[12:13], s[0:1], 40
    s_load_dwordx2 s[14:15], s[0:1], 48
    s_load_dwordx2 s[66:67], s[0:1], 56
    s_load_dwordx2 s[100:101], s[0:1], 64
    s_load_dwordx2 s[96:97], s[0:1], 72
    v_lshrrev_b32 v1, 6, v0
    s_and_b32 s56, s2, 7
    v_readfirstlane_b32 s40, v1
    v_and_b32 v1, 63, v0
    s_lshr_b32 s57, s2, 3
    """)
    A(f"""
    s_and_b32 s{sRT64}, s{t0}, 3
    s_lshl_b32 s{sRT64}, s{sRT64}, 3
    s_and_b32 s{t2}, s{t1}, 7
    s_add_u32 s{sRT64}, s{sRT64}, s{t2}
    s_lshr_b32 s{sCH}, s{t0}, 2
    s_lshr_b32 s{sCGQ}, s{t1}, 3
    s_lshl_b32 s{sCG}, s{sCH}, 2
    s_add_u32 s{sCG}, s{sCG}, s{sCGQ}
    s_lshl_b32 s{sH}, s{t0}, 2
    s_add_u32 s{sH}, s{sH}, s{sCGQ}
    s_lshl_b32 s{sT}, s{t2}, 3
    s_add_u32 s{sT}, s{sT}, s{sW}
    s_lshr_b32 s{sRT}, s{sW}, 2
    s_and_b32 s{sHD}, s{sW}, 3
    s_lshl_b32 s{sXO}, s{sRT64}, 16
    s_lshl_b32 s{t2}, s{sW}, 13
    s_add_u32 s{sXO}, s{sXO}, s{t2}
    s_mul_i32 s{sWO}, s{sW}, 8*3072
    s_lshl_b32 s{t2}, s{sCG}, 7
    s_add_u32 s{sWO}, s{sWO}, s{t2}
    s_lshl_b32 s{sM1}, s{sW}, 10
    s_and_b32 s{t3}, s{sW}, 1
    """)
    A(f"""
    v_lshlrev_b32 v2, 4, v1
    v_lshrrev_b32 v9, 3, v1
    v_and_b32 v10, 7, v1
    v_lshrrev_b32 v15, 4, v1                 ; g
    v_xor_b32 v12, v10, v15
    v_lshlrev_b32 v12, 4, v12
    v_lshl_add_u32 v4, v9, 10, v12
    v_xor_b32 v5, 64, v4
    s_lshl_b32 s{t2}, s{t3}, 6
    v_xor_b32 v3, s{t2}, v4
    v_and_b32 v12, 1, v15
    v_lshlrev_b32 v12, 5, v12
    v_xor_b32 v12, s{t2}, v12
    v_lshlrev_b32 v13, 4, v10
    v_xor_b32 v12, v12, v13
    v_mul_u32_u24 v6, 3072, v9
    v_add_u32 v6, v6, v12
    s_waitcnt lgkmcnt(0)
    """)
    srd(A, S_X, 4, 2048 * 1024)
    srd(A, S_WA, 6, 512 * 3072)
    srd(A, S_T, 14, 1024)
    srd(A, S_WS, 96, WS_BYTES)
    A(f"s_lshl_b32 s{t2}, s2, 3\ns_add_u32 s{t2}, s{t2}, s{sW}\ns_cmp_lg_u32 s{t2}, 7\ns_cbranch_scc1 Lnoscan1")
    A(f"s_mov_b32 s{t4}, {FL}")
    for i in range(11):
        if i % 4 == 0 and i: A(f"s_add_u32 s{t4}, s{t4}, 4096")
        A(f"buffer_load_dwordx4 {v(128+4*i,4)}, v2, {WS}, s{t4} offen offset:{(i%4)*1024} sc1")
    A.label("Lnoscan1")

    def dma_x(kc):
        def f():
            A(f"s_add_u32 m0, s{sM1}, {L_X + kc*8192}\ns_add_u32 s{t4}, s{sXO}, {kc*128}")
            A.vmem(f"buffer_load_dwordx4 v3, s[{S_X}:{S_X+3}], s{t4} offen lds", f"st{kc}")
        return f
    def dma_w(S, seg):
        def f():
            sr = S_WA if S < 8 else S_WB
            A(f"s_add_u32 m0, s{sM1}, {L_W + (S%3)*24576 + seg*8192}\ns_add_u32 s{t4}, s{sWO}, {(S%8)*64*3072 + seg*1024}")
            A.vmem(f"buffer_load_dwordx4 v6, s[{sr}:{sr+3}], s{t4} offen lds", f"st{S}")
        return f
    def dmas(S):
        return ([dma_x(S)] if S < 8 else []) + [dma_w(S, seg) for seg in range(3)]
    for f in dmas(0): f()
    A(f"s_mov_b32 m0, {L_G}\ns_nop 0")
    A.vmem(f"buffer_load_dwordx4 v2, s[{S_T}:{S_T+3}], 0 offen lds", "st0")
    for f in dmas(1): f()
    srd(A, S_WB, 10, 512 * 3072)
    srd(A, S_DBG, 100, 256)
    A(f"s_cmp_eq_u32 s{sCH}, 0\ns_cselect_b32 s{S_T}, s8, s12\ns_cselect_b32 s{S_T+1}, s9, s13\ns_mov_b32 s{S_T+2}, 512*1024")
    for f in dmas(2): f()
    A(f"""
    s_lshr_b32 s{t0}, s2, 3
    s_lshl_b32 s{t0}, s{t0}, 3
    s_add_u32 s{t0}, s{t0}, s{sW}            ; idx
    v_and_b32 v16, 15, v1
    v_lshlrev_b32 v16, 7, v16
    s_and_b32 s{t1}, s2, 3
    s_lshl_b32 s{t1}, s{t1}, 19
    s_lshl_b32 s{t2}, s{t0}, 11
    s_add_u32 s{t1}, s{t1}, s{t2}
    v_bfe_u32 v17, v1, 2, 3
    v_min_u32 v17, 5, v17
    v_lshlrev_b32 v17, 10, v17
    v_and_b32 v18, 3, v1
    v_lshl_add_u32 v17, v18, 7, v17
    s_mul_i32 s{t2}, s{t0}, 6144
    s_lshl_b32 s{t3}, s{sCH}, 9
    s_add_u32 s{sFL2}, s{t2}, s{t3}
    """)
    if not OPT.get("nopf"):
        A("s_mov_b64 exec, 0xffffff")
        A.vmem(f"buffer_load_dword v19, v17, s[{S_WA}:{S_WA+3}], s{sFL2} offen", "pf")
        A("s_mov_b64 exec, 0xffff")
        A.vmem(f"buffer_load_dword v19, v16, s[{S_X}:{S_X+3}], s{t1} offen", "pf")
        A("s_mov_b64 exec, -1")
    A(f"""
    v_and_b32 v14, 15, v1
    v_lshrrev_b32 v16, 1, v14
    v_xor_b32 v16, v16, v15
    v_lshlrev_b32 v16, 4, v16
    v_lshl_add_u32 v16, v14, 7, v16
    s_lshl_b32 s{t2}, s{sRT}, 12
    v_add_u32 v7, s{t2}, v16
    v_xor_b32 v8, 64, v7
    v_add_u32 v9, {L_H}, v16
    v_xor_b32 v10, 64, v9
    v_lshlrev_b32 v11, 4, v15
    v_add_u32 v11, {L_G}, v11
    v_bfe_u32 v18, v1, 2, 2                  ; r
    v_lshl_add_u32 v12, v15, 3, v18
    v_lshlrev_b32 v12, 7, v12
    v_bfe_u32 v18, v1, 3, 2
    v_xor_b32 v18, s{sHD}, v18
    v_lshl_add_u32 v12, v18, 5, v12
    v_and_b32 v18, 3, v1
    v_lshl_add_u32 v12, v18, 3, v12
    v_add_u32 v12, {L_W}, v12
    v_add_u32 v13, 49152, v12
    v_mov_b32 v20, 0
    v_and_b32 v24, 31, v1
    v_lshlrev_b32 v24, 2, v24
    """)
    A(f"""
    v_lshrrev_b32 v26, 2, v1
    v_lshlrev_b32 v26, 10, v26
    v_lshl_add_u32 v26, v18, 4, v26
    v_lshrrev_b32 v27, 5, v1
    v_bfe_u32 v16, v1, 2, 2
    v_lshl_add_u32 v27, v27, 2, v16
    v_lshlrev_b32 v27, 6, v27
    v_bfe_u32 v16, v1, 4, 1
    v_lshl_add_u32 v27, v16, 5, v27
    v_lshl_add_u32 v27, v18, 3, v27
    s_add_u32 s{t2}, s{sM1}, {L_WT}
    v_add_u32 v27, s{t2}, v27
    """)
    for i in range(32, 92):
        A(f"v_mov_b32 v{i}, 0")
    A(f"s_lshl_b32 s{t2}, s2, 3\ns_add_u32 s{t2}, s{t2}, s{sW}\ns_cmp_lg_u32 s{t2}, 7\ns_cbranch_scc1 Lnoscan2")
    A(f"s_waitcnt vmcnt({len(A.vm)})\ns_mov_b32 s{t4}, 0")
    A.label("Lscan")
    A(f"s_add_u32 s{t4}, s{t4}, 1\ns_mov_b64 exec, -1")
    for i in range(44):
        A(f"v_cmpx_ne_u32 vcc, s{t4}, v{128+i}")
    A("s_nop 1\ns_cmp_eq_u64 exec, -1\ns_cbranch_scc0 Lscan")
    A(f"v_mov_b32 v21, s{t4}\ns_mov_b64 exec, 1")
    A(f"buffer_store_dword v21, v20, s[{S_DBG}:{S_DBG+3}], 0 offen sc1")
    A("s_mov_b64 exec, -1")
    A.label("Lnoscan2")

    FB = [96, 112]
    XF = lambda S, u, sub: 128 + 8 * (2 * (S % 8) + u) + 4 * sub
    def reads(S, u):
        if OPT.get("nord"): return []
        b = FB[u]; kc = S % 8
        tg = f"r{S}_{u}"
        L = []
        rd = lambda text, tag: L.append(lambda: A.lds(text, tag))
        wb, so = (12, (S % 3) * 24576) if S % 3 < 2 else (13, 0)
        def wr(seg):
            for t in range(2):
                rd(f"ds_read_b64_tr_b16 {v(b+4*seg+2*t,2)}, v{wb} offset:{so + seg*8192 + u*4096 + t*512}", f"{tg}w{seg}")
        if S < 8:
            rd(f"ds_read_b128 {v(XF(S,u,0),4)}, v{7+u} offset:{kc*8192}", tg + "x0")
            wr(0)
            rd(f"ds_read_b128 {v(XF(S,u,1),4)}, v{7+u} offset:{kc*8192+2048}", tg + "x1")
            wr(1); wr(2)
            rd(f"ds_read_b128 {v(b+12,4)}, v11 offset:{kc*128+u*64}", tg + "e")
        else:
            wr(0); wr(1); wr(2)
            rd(f"ds_read_b128 {v(b+12,4)}, v{9+u} offset:{kc*2048}", tg + "e")
        return L
    def mms(S, u, rt):
        b = FB[u]; ac = 32 if S < 8 else 64
        tg = f"r{S}_{u}"
        L = []
        def mm(d, a_, b_, tags):
            def f():
                A.wait(lg=[tg + t for t in tags])
                if not OPT.get("nomm"): A(f"{MF16} {v(d,4)}, {v(a_,4)}, {v(b_,4)}, {v(d,4)}")
            L.append(f)
        for sub in range(2): mm(ac + 4 * sub, b, XF(S, u, sub), ["w0", f"x{sub}"])
        for sub in range(2): mm(ac + 8 + 4 * sub, b + 4, XF(S, u, sub), ["w1"])
        for sub in range(2): mm(ac + 16 + 4 * sub, XF(S, u, sub), b + 8, ["w2"])
        if S < 8:
            for sub in range(2): mm(56 + 4 * sub, b + 12, XF(S, u, sub), ["e"])
        elif rt == 0: mm(88, b + 4, b + 12, ["e"])
        else: mm(88, b + 12, b + 8, ["e"])
        return L

    def pack_qkv(ac, dq, dk, dv):
        A(f"s_mov_b32 s{t5}, {hex(CSCALE)}")
        for i in range(4):
            A(f"""
            v_cvt_pk_bf16_f32 v18, v{ac+2*i}, v{ac+2*i+1}
            v_and_b32 v19, 0xffff0000, v18
            v_lshlrev_b32 v18, 16, v18
            v_mul_f32 v18, s{t5}, v18
            v_mul_f32 v19, s{t5}, v19
            v_cvt_pk_bf16_f32 v{dq+i}, v18, v19
            """)
        for i in range(4):
            A(f"v_cvt_pk_bf16_f32 v{dk+i}, v{ac+8+2*i}, v{ac+8+2*i+1}")
        for i in range(4):
            A(f"v_cvt_pk_bf16_f32 v{dv+i}, v{ac+16+2*i}, v{ac+16+2*i+1}")
        A(f"""
        v_permlane16_swap_b32 v{dq}, v{dq+2}
        v_permlane16_swap_b32 v{dq+1}, v{dq+3}
        v_permlane16_swap_b32 v{dk}, v{dk+2}
        v_permlane16_swap_b32 v{dk+1}, v{dk+3}
        v_permlane32_swap_b32 v{dv}, v{dv+2}
        v_permlane32_swap_b32 v{dv+1}, v{dv+3}
        """)

    def a_epilogue(rt):
        pack_qkv(32, 92, 32, 36)
        A(f"""
        s_lshl_b32 s{t0}, s{sCG}, 2
        s_add_u32 s{t0}, s{t0}, s{sHD}
        s_lshl_b32 s{t0}, s{t0}, 6
        s_lshl_b32 s{t1}, s{sRT64}, 1
        s_add_u32 s{t1}, s{t1}, s{sRT}
        s_add_u32 s{t0}, s{t0}, s{t1}
        s_lshl_b32 s{t1}, s{t0}, 11
        s_add_u32 s{t1}, s{t1}, {KVF}
        s_lshl_b32 s{t0}, s{t0}, 10
        """)
        A.vmem(f"buffer_store_dwordx4 v[32:35], v2, {WS}, s{t1} offen sc1", "ast")
        A.vmem(f"buffer_store_dwordx4 v[36:39], v2, {WS}, s{t1} offen offset:1024 sc1", "ast")
        A.vmem(f"buffer_store_dwordx4 v[92:95], v2, {WS}, s{t0} offen sc1", "ast")
        if rt == 0:
            A(f"""
            s_lshl_b32 s{t0}, s{sCGQ}, 2
            s_add_u32 s{t0}, s{t0}, s{sHD}
            s_lshl_b32 s{t0}, s{t0}, 1
            s_add_u32 s{t0}, s{t0}, s{sCH}
            s_lshl_b32 s{t0}, s{t0}, 5
            s_add_u32 s{t0}, s{t0}, s{sRT64}
            s_lshl_b32 s{t0}, s{t0}, 10
            s_add_u32 s{t0}, s{t0}, {WOF}
            """)
            A.wait(lg="wt")
            A.vmem(f"buffer_store_dwordx4 v[28:31], v2, {WS}, s{t0} offen sc1", "ast")
        A.vmem(f"buffer_load_dword v21, v20, s[{S_DBG}:{S_DBG+3}], 0 offen sc1", "nonce")
    def gate_fin():
        A(f"""
        v_and_b32 v18, 16, v1
        v_cmp_eq_u32 vcc, 0, v18
        s_nop 1
        v_cndmask_b32 v18, v60, v56, vcc
        v_cvt_pk_bf16_f32 v18, v18, v18
        v_lshlrev_b32 v18, 16, v18
        v_mul_f32 v18, {hex(LOG2E ^ 0x80000000)}, v18
        v_exp_f32 v18, v18
        s_nop 0
        v_add_f32 v18, 1.0, v18
        v_rcp_f32 v18, v18
        s_nop 0
        v_cvt_pk_bf16_f32 v18, v18, v18
        v_lshlrev_b32 v22, 16, v18               ; g
        v_sub_f32 v18, 1.0, v22
        v_cvt_pk_bf16_f32 v18, v18, v18
        v_lshlrev_b32 v23, 16, v18               ; 1-g
        s_lshl_b32 s{t2}, s{sRT}, 7
        s_add_u32 s{t2}, s{t2}, {L_GV}
        v_add_u32 v19, s{t2}, v24
        """)
        A.lds("ds_write_b32 v19, v22")

    def get_nonce(lbl):
        A(f"s_mov_b32 s{t5}, 0")
        A.label(lbl)
        A(f"""
        v_readfirstlane_b32 s{sN}, v21
        s_add_u32 s{t5}, s{t5}, 1
        s_cmp_lg_u32 s{sN}, 0
        s_cbranch_scc1 {lbl}_ok
        s_cmp_gt_u32 s{t5}, {SPIN_MAX}
        s_cbranch_scc1 {lbl}_ok
        s_sleep 2
        buffer_load_dword v21, v20, s[{S_DBG}:{S_DBG+3}], 0 offen sc1
        s_waitcnt vmcnt(0)
        s_branch {lbl}
        """)
        A.label(lbl + "_ok")

    Q, KF, V1, V2 = 28, 96, 100, 104
    SP, SA, SB, P, O, C = 32, 48, 112, 64, 80, 32
    def pre_masks():
        A(f"""
        v_lshrrev_b32 v3, 5, v1
        v_and_b32 v5, 31, v1
        v_lshlrev_b32 v18, 2, v3
        v_sub_u32 v18, v5, v18
        v_add_u32 v18, 18, v18
        v_mov_b32 v16, 0x5555
        v_mov_b32 v17, 0
        v_lshlrev_b64 v[16:17], v18, v[16:17]
        s_or_b32 s{t2}, s{sRT64}, s{sRT}
        s_cmp_eq_u32 s{t2}, 0
        s_cselect_b32 s{t2}, 0, -1
        v_and_b32 v16, s{t2}, v16
        v_not_b32 v16, v16
        v_not_b32 v17, v17
        s_mov_b32 s{t3}, {hex(NEGBIG)}
        """)
        for i in range(16):
            pos = 8 * (i // 4) + i % 4
            A(f"v_bfe_i32 v{SA+i}, v17, {pos}, 1\nv_and_b32 v{SA+i}, s{t3}, v{SA+i}")
    def pre_masks2():
        A(f"s_mov_b32 s{t3}, {hex(NEGBIG)}")
        for i in range(8, 16):
            pos = 8 * (i // 4) + i % 4
            A(f"v_bfe_i32 v{SP+i}, v16, {pos}, 1\nv_and_b32 v{SP+i}, s{t3}, v{SP+i}")
        for i in range(8): A(f"v_mov_b32 v{SP+i}, 0")
    def pre_addr(rt):
        A(f"""
        v_lshlrev_b32 v7, 8, v3
        v_lshl_add_u32 v7, v14, 4, v7
        v_add_u32 v7, 1024, v7
        v_add_u32 v8, 512, v7
        v_and_b32 v19, 27, v5
        v_cmp_eq_u32 vcc, 16, v19
        v_mov_b32 v19, 2064
        v_mov_b32 v18, 2048
        v_cndmask_b32 v19, v19, v18, vcc
        v_cmp_gt_u32 vcc, 16, v5
        s_mul_i32 s{t0}, s{sHD}, {3*TS}
        s_add_u32 s{t0}, s{t0}, {L_EX}
        v_cndmask_b32 v7, v19, v7, vcc
        v_cndmask_b32 v8, v19, v8, vcc
        s_add_u32 s{sEXP}, s{t0}, {rt*TS}
        v_add_u32 v11, s{sEXP}, v2
        v_lshrrev_b32 v19, 1, v15
        v_and_b32 v18, 1, v15
        """)
        if rt == 0:
            A(f"v_lshlrev_b32 v4, 9, v19\nv_lshl_add_u32 v4, v18, 3, v4\ns_add_u32 s{t0}, s{t0}, 256")
        else:
            A(f"v_lshlrev_b32 v4, 8, v18\nv_lshl_add_u32 v4, v19, 3, v4\ns_add_u32 s{t0}, s{t0}, 1536")
        A(f"""
        v_lshl_add_u32 v4, v14, 4, v4
        v_add_u32 v4, s{t0}, v4
        s_lshl_b32 s{t0}, s{sH}, 6
        s_add_u32 s{t0}, s{t0}, s{sW}
        s_lshl_b32 s{t0}, s{t0}, 11
        s_add_u32 s{sKV}, s{t0}, {KVF}
        s_mul_i32 s{sSTG}, s{sW}, {TS}
        s_mov_b32 s{sRDY}, 0
        v_lshrrev_b32 v18, 1, v1
        v_and_b32 v19, 1, v1
        v_mul_u32_u24 v26, {8*TS}, v18
        v_lshl_add_u32 v26, v19, 4, v26
        v_add_u32 v26, s{sSTG}, v26
        v_mul_u32_u24 v27, {TS}, v18
        v_lshl_add_u32 v27, v19, 4, v27
        v_add_u32 v27, {L_EX+2048}, v27
        v_cmp_eq_u32 vcc, 0, v19
        v_mov_b32 v92, {hex(ONES)}
        s_lshl_b32 s{t0}, s{sRT64}, 1
        s_add_u32 s{t0}, s{t0}, s{sRT}
        v_cndmask_b32 v92, 0, v92, vcc
        v_mov_b32 v93, v92
        v_mov_b32 v94, v92
        v_mov_b32 v95, v92
        s_lshl_b32 s{t0}, s{t0}, 6
        s_lshl_b32 s{t1}, s{sCG}, 2
        s_add_u32 s{t0}, s{t0}, s{t1}
        s_add_u32 s{t0}, s{t0}, s{sHD}
        s_lshl_b32 s{t0}, s{t0}, 10
        s_add_u32 s{sWOB}, s{t0}, {OF + 32768}
        """)

    def stage(S, rt=None):
        sfx = "" if rt is None else f"_{rt}"
        interleave(A, mms(S, 0, rt), reads(S, 1), per=2)
        if S == 8: a_epilogue(rt)
        if S == 9: gate_fin()
        if S == 11: pre_masks()
        if S == 12: pre_masks2()
        if S == 13: pre_addr(rt)
        if S < 15: A.wait(vm=f"st{S+1}", lg="all")
        else: A.wait(lg="all")
        A("s_barrier")
        fill = reads(S + 1, 0) if S < 15 else []
        extra = []
        if S + 3 < 16 and not OPT.get("nodma"): extra += dmas(S + 3)
        if S == 3 and not OPT.get("nopf"):
            def pfb():
                A("s_mov_b64 exec, 0xffffff")
                A.vmem(f"buffer_load_dword v19, v17, s[{S_WB}:{S_WB+3}], s{sFL2} offen", "pf")
                A("s_mov_b64 exec, -1")
            extra.append(pfb)
        if S == 4:
            def halo():
                A(f"""
                s_lshl_b32 s{t0}, s{sRT64}, 16
                s_sub_u32 s{t1}, s{t0}, 16384
                s_cmp_eq_u32 s{sRT64}, 0
                s_cselect_b32 s{t0}, s{t0}, s{t1}
                s_lshl_b32 s{t1}, s{sW}, 7
                s_add_u32 s{t0}, s{t0}, s{t1}
                s_lshl_b32 s{t1}, s{sM1}, 1
                s_add_u32 m0, s{t1}, {L_H}
                s_add_u32 s{t2}, s{t0}, 8192
                """)
                A.vmem(f"buffer_load_dwordx4 v4, s[{S_X}:{S_X+3}], s{t0} offen lds", "st8")
                A(f"s_add_u32 m0, s{t1}, {L_H+1024}\ns_nop 0")
                A.vmem(f"buffer_load_dwordx4 v5, s[{S_X}:{S_X+3}], s{t2} offen lds", "st8")
                A(f"""
                s_cmp_lg_u32 s{sRT}, 0
                s_cbranch_scc1 Lnowt
                s_lshl_b32 s{t0}, s{sRT64}, 14
                s_lshl_b32 s{t1}, s{sCGQ}, 8
                s_add_u32 s{t0}, s{t0}, s{t1}
                s_lshl_b32 s{t1}, s{sHD}, 6
                s_add_u32 m0, s{sM1}, {L_WT}
                s_add_u32 s{t0}, s{t0}, s{t1}
                buffer_load_dwordx4 v26, s[{S_T}:{S_T+3}], s{t0} offen lds
                """)
                A.label("Lnowt")
            extra.append(halo)
        if S == 10:
            def pub():
                get_nonce("Lnonce" + sfx)
                if rt == 0:
                    A(f"s_cmp_lg_u32 s{sW}, 0\ns_cbranch_scc1 Lnofa")
                    A(f"""
                    s_lshl_b32 s{t0}, s{sCG}, 8
                    s_lshl_b32 s{t1}, s{sRT64}, 2
                    s_add_u32 s{t0}, s{t0}, s{t1}
                    s_add_u32 s{t0}, s{t0}, {FA}
                    s_mov_b64 exec, 1
                    buffer_store_dword v21, v20, {WS}, s{t0} offen sc1
                    s_mov_b64 exec, -1
                    """)
                    A.label("Lnofa")
            pub()
        if S == 14:
            def poll():
                A(f"s_and_b32 s{t0}, s2, 7\ns_lshl_b32 s{t0}, s{t0}, 8\ns_add_u32 s{sKVL}, s{t0}, {FA}")
                A.vmem(f"buffer_load_dword v25, v24, {WS}, s{sKVL} offen sc1", "poll")
            extra.append(poll)
        m = mms(S, 1, rt)
        fl = list(fill)
        ex = list(extra)
        for i, f in enumerate(m):
            f()
            if fl:
                for _ in range(3):
                    if fl: fl.pop(0)()
            elif ex:
                ex.pop(0)()
        for f in fl + ex: f()

    A.wait(vm="st0"); A("s_barrier")
    stamp(A)
    for f in reads(0, 0): f()
    for S in range(8):
        stage(S)
    stamp(A)
    A(f"s_cmp_lg_u32 s{sRT}, 0\ns_cbranch_scc1 LB1")
    save = (list(A.vm), list(A.lg))
    A.lds("ds_read_b64_tr_b16 v[28:29], v27", "wt")
    A.lds("ds_read_b64_tr_b16 v[30:31], v27 offset:512", "wt")
    for S in range(8, 16):
        stage(S, 0)
    A("s_branch LBdone")
    A.label("LB1")
    A.vm, A.lg = list(save[0]), list(save[1])
    for S in range(8, 16):
        stage(S, 1)
    A.label("LBdone")
    stamp(A)

    def kv_first():
        A(f"s_lshl_b32 s{t0}, s{sH}, 6\ns_add_u32 s{t1}, s{t0}, s{sT}\ns_lshl_b32 s{t1}, s{t1}, 10")
        A(f"buffer_load_dwordx4 {v(Q,4)}, v2, {WS}, s{t1} offen sc1")
        for i in range(2):
            A(f"s_add_u32 m0, s{sSTG}, {i*8*TS}\ns_add_u32 s{t4}, s{sKV}, {i*8*2048}")
            A(f"buffer_load_dwordx4 v2, {WS}, s{t4} offen sc1 lds")
            A(f"buffer_load_dwordx4 v2, {WS}, s{t4} offen offset:1024 sc1 lds")
    A.wait(vm="poll")
    A(f"v_cmp_ne_u32 vcc, s{sN}, v25\ns_nop 1\ns_cbranch_vccnz Lnotrdy")
    kv_first()
    A(f"s_mov_b32 s{sRDY}, 1")
    A.label("Lnotrdy")
    A("s_mov_b64 exec, 0xffff")
    A.lds("ds_write_b128 v26, v[92:95] offset:2048")
    A("s_mov_b64 exec, 0xffffff")
    A.lds("ds_write_b128 v27, v[92:95]")
    A("s_mov_b64 exec, -1\ns_nop 2")
    for i in range(4): A(f"v_cvt_pk_bf16_f32 v{104+i}, v{72+2*i}, v{73+2*i}")
    for i in range(4): A(f"v_cvt_pk_bf16_f32 v{108+i}, v{80+2*i}, v{81+2*i}")
    A("v_cvt_pk_bf16_f32 v96, v88, v89\nv_cvt_pk_bf16_f32 v97, v90, v91")
    A("""
    v_permlane16_swap_b32 v104, v106
    v_permlane16_swap_b32 v105, v107
    v_permlane32_swap_b32 v108, v110
    v_permlane32_swap_b32 v109, v111
    """)
    A.lds("ds_write_b64 v4, v[96:97]")
    A.lds(f"ds_write_b128 v11, v[104:107] offset:{TS}")
    A.lds(f"ds_write_b128 v11, v[108:111] offset:{TS+1024}")
    A(f"s_mov_b32 s{t5}, {hex(CSCALE)}")
    for i in range(4):
        A(f"""
        v_cvt_pk_bf16_f32 v18, v{64+2*i}, v{64+2*i+1}
        v_and_b32 v19, 0xffff0000, v18
        v_lshlrev_b32 v18, 16, v18
        v_mul_f32 v18, s{t5}, v18
        v_mul_f32 v19, s{t5}, v19
        v_cvt_pk_bf16_f32 v{100+i}, v18, v19
        """)
    A(f"v_add_u32 v26, s{sEXP}, v7\nv_add_u32 v27, s{sEXP}, v8")
    A("v_permlane16_swap_b32 v100, v102\nv_permlane16_swap_b32 v101, v103")
    A(f"s_lshl_b32 s{t2}, s{sCH}, 7\ns_add_u32 s{t2}, s{t2}, {L_GV}\nv_add_u32 v19, s{t2}, v24")
    A(f"{MF32} {v(SA,16)}, v[104:107], v[100:103], {v(SA,16)}")
    A.wait(lg="all"); A("s_barrier")
    A.lds("ds_read_b128 v[96:99], v11", "kp")
    A.lds(f"ds_read_b128 v[108:111], v26 offset:{TS}", "vb")
    A.lds(f"ds_read_b128 v[88:91], v27 offset:{TS}", "vb")
    A.lds("ds_read_b128 v[92:95], v27", "vb")
    A.lds("ds_read_b32 v22, v19", "vb")
    A("s_nop 4")
    regs = [SA + i for i in range(16)] + [SP + i for i in range(8, 16)]
    A(f"v_max3_f32 v9, v{regs[0]}, v{regs[1]}, v{regs[2]}")
    for i in range(3, 9, 2): A(f"v_max3_f32 v9, v9, v{regs[i]}, v{regs[i+1]}")
    A.wait(lg="kp")
    A(f"{MF32} {v(SP,16)}, v[96:99], v[100:103], {v(SP,16)}")
    for i in range(9, 15, 2): A(f"v_max3_f32 v9, v9, v{regs[i]}, v{regs[i+1]}")
    A("s_nop 8")
    for i in range(15, 23, 2): A(f"v_max3_f32 v9, v9, v{regs[i]}, v{regs[i+1]}")
    A(f"v_max_f32 v9, v9, v{regs[23]}")
    A("v_mov_b32 v10, v9\ns_nop 1\nv_permlane32_swap_b32 v9, v10\nv_max_f32 v9, v9, v10")
    for r in regs: A(f"v_sub_f32 v{r}, v{r}, v9")
    for k in range(3):
        for r in regs[8*k:8*k+8]: A(f"v_exp_f32 v{r}, v{r}")
        A("s_nop 0")
        for i in range(4*k, 4*k+4): A(f"v_cvt_pk_bf16_f32 v{P+i}, v{regs[2*i]}, v{regs[2*i+1]}")
        A.wait(lg="all"); A("s_nop 0")
        A(f"{MF32} {v(SB,16)}, {['v[108:111]','v[88:91]','v[92:95]'][k]}, {v(P+4*k,4)}, {v(SB,16) if k else 0}")
    stamp(A)
    A(f"s_cmp_lg_u32 s{sRDY}, 0\ns_cbranch_scc1 Lrdy\ns_mov_b32 s{t5}, 0")
    A.label("Lpoll1")
    A(f"""
    buffer_load_dword v25, v24, {WS}, s{sKVL} offen sc1
    s_add_u32 s{t5}, s{t5}, 1
    s_waitcnt vmcnt(0)
    v_cmp_ne_u32 vcc, s{sN}, v25
    s_cmp_gt_u32 s{t5}, {SPIN_MAX}
    s_cbranch_scc1 Lpoll1_ok
    s_cbranch_vccz Lpoll1_ok
    s_sleep 1
    s_branch Lpoll1
    """)
    A.label("Lpoll1_ok")
    kv_first()
    A.label("Lrdy")
    srd(A, S_T, 66, 2048 * 1024)
    for i in range(16): A(f"v_mov_b32 v{O+i}, 0" if i < 8 else "s_nop 0" if i < 9 else "")
    A(f"v_rcp_f32 v9, v{SB+8}\ns_nop 0\nv_mul_f32 v9, v9, v23")
    for i in range(8): A(f"v_mul_f32 v{SB+i}, v{SB+i}, v9")
    for i in range(4): A(f"v_cvt_pk_bf16_f32 v{108+i}, v{SB+2*i}, v{SB+2*i+1}")
    for i in range(8, 16): A(f"v_mov_b32 v{O+i}, 0")
    for i in range(4): A(f"v_mov_b32 v{P+4+i}, 0")
    A.wait(vm="all")
    A.vmem(f"buffer_store_dwordx4 v[108:111], v2, {WS}, s{sWOB} offen sc1", "obst")
    A("s_barrier")
    stamp(A)
    A.lds(f"ds_read_b128 {v(KF,4)}, v2", "k")
    A.lds(f"ds_read_b128 {v(V2,4)}, v8", "v2")
    A.lds(f"ds_read_b128 {v(V1,4)}, v7", "v1")
    A(f"s_mov_b32 s{sPASS}, 0")
    A(f"""
    s_lshl_b32 s{t0}, s{sCGQ}, 2
    s_add_u32 s{t0}, s{t0}, s{sHD}
    s_lshl_b32 s{t0}, s{t0}, 16
    s_lshl_b32 s{t1}, s{sRT}, 14
    s_add_u32 s{t0}, s{t0}, s{t1}
    s_add_u32 s{sWO}, s{t0}, {WOF}
    s_lshl_b32 s{t0}, s{sRT64}, 1
    s_add_u32 s{t0}, s{t0}, s{sCH}
    s_lshl_b32 s{t0}, s{t0}, 16
    s_add_u32 s{t0}, s{t0}, s{t1}
    s_add_u32 s{sXO}, s{t0}, {OF + 32768}
    v_mov_b32 v14, v2
    v_mov_b32 v15, v7
    v_mov_b32 v16, v8
    """)
    A.wait(lg="k")
    A(f"{MF32} {v(SA,16)}, {v(KF,4)}, {v(Q,4)}, 0")
    A(f"""
    v_lshlrev_b32 v12, 10, v3
    v_add_u32 v12, v12, v24
    s_lshl_b32 s{t0}, s{sCGQ}, 8
    s_add_u32 s{sFL2}, s{t0}, {FA}
    v_and_b32 v13, 7, v1
    v_lshlrev_b32 v13, 2, v13
    s_lshl_b32 s{t0}, s{sRT64}, 5
    s_add_u32 s{sEXP}, s{t0}, {FOB}
    s_nop 3
    """)
    A(f"v_max3_f32 v9, v{SA}, v{SA+1}, v{SA+2}")
    for i in range(3, 15, 2): A(f"v_max3_f32 v9, v9, v{SA+i}, v{SA+i+1}")
    A(f"v_max_f32 v9, v9, v{SA+15}")
    def setup_pass(first):
        A("v_mov_b32 v10, v9\ns_nop 1\nv_permlane32_swap_b32 v9, v10\nv_max_f32 v9, v9, v10")
        if first:
            A.lds(f"ds_read_b128 {v(KF,4)}, v2 offset:{TS}", "k")
            for i in range(16): A(f"v_sub_f32 v{SA+i}, v{SA+i}, v9")
            for i in range(16): A(f"v_sub_f32 v{C+i}, 0, v9")
            A.wait(lg="all")
        else:
            A.lds(f"ds_read_b128 {v(V2,4)}, v8", "v2")
            A.lds(f"ds_read_b128 {v(V1,4)}, v7", "v1")
            for i in range(16): A(f"v_sub_f32 v{C+i}, 0, v9")
            for i in range(16): A(f"v_mov_b32 v{O+i}, 0")
            for i in range(4): A(f"v_mov_b32 v{P+4+i}, 0")
            A(f"{MF32} {v(SA,16)}, {v(KF,4)}, {v(Q,4)}, {v(C,16)}")
            A.lds(f"ds_read_b128 {v(KF,4)}, v2 offset:{TS}", "k")
            A.wait(lg="all")
            A("s_nop 9")
    setup_pass(True)
    A("s_nop 0")
    def tile(j, jo, hooks=None):
        hooks = hooks or {}
        Sa, Sb = (SA, SB) if j % 2 == 0 else (SB, SA)
        ex = lambda i: A(f"v_exp_f32 v{Sa+i}, v{Sa+i}")
        cv = lambda i: A(f"v_cvt_pk_bf16_f32 v{P+i}, v{Sa+2*i}, v{Sa+2*i+1}")
        A.wait(lg="v2")
        A(f"{MF32} {v(Sb,16)}, {v(KF,4)}, {v(Q,4)}, {v(C,16)}")
        A.lds(f"ds_read_b128 {v(KF,4)}, v14 offset:{(jo+2)*TS}", "k")
        for i in range(5): ex(i)
        A(f"{MF32} {v(O,16)}, {v(V2,4)}, {v(P+4,4)}, {v(O,16)}")
        A.lds(f"ds_read_b128 {v(V2,4)}, v16 offset:{jo*TS}", "v2")
        for f in hooks.get(0, []): f()
        for i in range(5, 8): ex(i)
        for i in range(4): cv(i)
        for i in range(8, 10): ex(i)
        A.wait(lg="v1")
        A(f"{MF32} {v(O,16)}, {v(V1,4)}, {v(P,4)}, {v(O,16)}")
        A.lds(f"ds_read_b128 {v(V1,4)}, v15 offset:{(jo+1)*TS}", "v1")
        for f in hooks.get(1, []): f()
        for i in range(10, 14): ex(i)
        for f in hooks.get(2, []): f()
        for i in range(14, 16): ex(i)
        for i in range(4, 8): cv(i)
    WB_, OB_, ACB = 128, 192, 72
    ACB = 240
    NOB = 12
    def h_kv(i):
        def f():
            A(f"s_add_u32 m0, s{sSTG}, {i*8*TS}\ns_add_u32 s{t4}, s{sKV}, {i*8*2048}")
            A.vmem(f"buffer_load_dwordx4 v2, {WS}, s{t4} offen sc1 lds", "kv")
            A.vmem(f"buffer_load_dwordx4 v2, {WS}, s{t4} offen offset:1024 sc1 lds", "kv")
        return f
    def h_poll():
        A.vmem(f"buffer_load_dword v25, v12, {WS}, s{sFL2} offen sc1", "mp")
        A.vmem(f"buffer_load_dword v17, v13, {WS}, s{sEXP} offen sc1", "mp")
    def h_check():
        A(f"s_mov_b32 s{t5}, 0")
        A.wait(vm="mp")
        A.label("Lpollm")
        A(f"""
        v_cmp_ne_u32 vcc, s{sN}, v25
        v_cmp_ne_u32 s[{t0}:{t0+1}], s{sN}, v17
        s_add_u32 s{t5}, s{t5}, 1
        s_or_b64 vcc, vcc, s[{t0}:{t0+1}]
        s_cbranch_scc0 Lpollm_ok
        s_cmp_gt_u32 s{t5}, {SPIN_MAX}
        s_cbranch_scc1 Lpollm_ok
        s_sleep 4
        buffer_load_dword v25, v12, {WS}, s{sFL2} offen sc1
        buffer_load_dword v17, v13, {WS}, s{sEXP} offen sc1
        s_waitcnt vmcnt(0)
        s_branch Lpollm
        """)
        A.label("Lpollm_ok")
    def ld(dst, sb, off, tag):
        def f():
            A(f"s_add_u32 s{t4}, s{sb}, {off}")
            A.vmem(f"buffer_load_dwordx4 {v(dst,4)}, v2, {WS}, s{t4} offen sc1", tag)
        return f
    def h_bmm(n):
        def f():
            A.wait(vm=[f"wb{n}", f"ob{n}"])
            A(f"{MF32} {v(ACB,16)}, {v(WB_+4*n,4)}, {v(OB_+4*(n%NOB),4)}, {v(ACB,16) if n else 0}")
        return f
    hooks = {j: {0: [], 1: [], 2: []} for j in range(64)}
    for i in range(2, 8): hooks[i - 2][0].append(h_kv(i))
    if not OPT.get("nowo"):
        T0 = 26
        hooks[T0 - 4][0].append(h_poll)
        hooks[T0][0].append(h_check)
        for n in range(16):
            hooks[T0 + n][0].append(ld(WB_ + 4 * n, sWO, 32768 + n * 1024, f"wb{n}"))
            hooks[T0 + n][1].append(ld(OB_ + 4 * (n % NOB), sXO, n * 1024, f"ob{n}"))
            hooks[T0 + 8 + n][2].append(h_bmm(n))
            hooks[T0 + 9 + n][1].append(ld(WB_ + 4 * n, sWO, n * 1024, f"wa{n}"))
    prios = {0: 3, 10: 2, 14: 3, 40: 2, 54: 1, 61: 0}
    base = 0
    for j in range(64):
        if j in prios: A(f"s_setprio {prios[j]}")
        if j - base == 24:
            A(f"v_add_u32 v14, {24*TS}, v14\nv_add_u32 v15, {24*TS}, v15\nv_add_u32 v16, {24*TS}, v16")
            base = j
        tile(j, j - base, hooks[j])
        if j == 13:
            A.wait(vm="all"); A("s_barrier")
            A(f"s_cmp_lg_u32 s{sW}, 0\ns_cbranch_scc1 Lnofob")
            A(f"""
            s_lshl_b32 s{t1}, s{sCG}, 2
            s_add_u32 s{t0}, s{sEXP}, s{t1}
            s_mov_b64 exec, 1
            buffer_store_dword v21, v20, {WS}, s{t0} offen sc1
            s_mov_b64 exec, -1
            """)
            A.label("Lnofob")
    A.label("Lfinish")
    A.wait(lg="all")
    A("s_nop 0")
    A(f"{MF32} {v(O,16)}, {v(V2,4)}, {v(P+4,4)}, {v(O,16)}")
    A(f"""
    s_mov_b32 s{t3}, 0x53800000
    s_lshl_b32 s{t0}, s{sT}, 6
    s_add_u32 s{t0}, s{t0}, s{sH}
    s_lshl_b32 s{t0}, s{t0}, 10
    s_add_u32 s{t0}, s{t0}, {OF}
    s_lshl_b32 s{t1}, s{sT}, 5
    s_add_u32 s{t1}, s{t1}, s{sH}
    s_lshl_b32 s{t1}, s{t1}, 2
    s_add_u32 s{t1}, s{t1}, {FOA}
    s_nop 2
    s_cmp_lg_u32 s{sPASS}, 0
    s_cbranch_scc1 Lfin
    v_cmp_ngt_f32 vcc, s{t3}, v{O+8}
    s_nop 1
    {"" if OPT.get("nofb") else "s_cbranch_vccnz Lfallback"}
    """)
    A.label("Lfin")
    stamp(A)
    A(f"v_rcp_f32 v9, v{O+8}\ns_nop 0")
    for i in range(8): A(f"v_mul_f32 v{O+i}, v{O+i}, v9")
    for i in range(4): A(f"v_cvt_pk_bf16_f32 v{108+i}, v{O+2*i}, v{O+2*i+1}")
    A(f"buffer_store_dwordx4 v[108:111], v2, {WS}, s{t0} offen sc1")
    A(f"""
    s_lshl_b32 s{t0}, s{sRT64}, 1
    s_add_u32 s{t0}, s{t0}, s{sCH}           ; to
    s_lshl_b32 s{t3}, s{t0}, 16
    s_lshl_b32 s{t2}, s{sW}, 12
    s_add_u32 s{t3}, s{t3}, s{t2}
    s_add_u32 s{sKV}, s{t3}, {OF}
    s_mov_b32 m0, s{t2}
    s_lshl_b32 s{t3}, s{t0}, 7
    s_lshl_b32 s{t4}, s{sW}, 4
    s_add_u32 s{t3}, s{t3}, s{t4}
    s_add_u32 s{sKVL}, s{t3}, {FOA}
    s_lshl_b32 s{t3}, s{sRT}, 14
    v_add_u32 v14, s{t3}, v2
    v_and_b32 v24, 3, v1
    v_lshlrev_b32 v24, 2, v24
    s_lshl_b32 s{t3}, s{sHD}, 12
    s_add_u32 s{t3}, s{t3}, {L_RED}
    v_add_u32 v15, s{t3}, v2
    v_lshlrev_b32 v9, 10, v5
    v_lshl_add_u32 v9, v3, 4, v9
    s_lshl_b32 s{t0}, s{t0}, 15
    s_lshl_b32 s{t3}, s{sCGQ}, 8
    s_add_u32 s{t0}, s{t0}, s{t3}
    s_lshl_b32 s{t3}, s{sHD}, 6
    s_add_u32 s{t0}, s{t0}, s{t3}
    s_lshl_b32 s{t3}, s{sRT}, 5
    s_add_u32 s{t0}, s{t0}, s{t3}
    s_mov_b32 s{t5}, 0
    s_waitcnt vmcnt(0)
    s_mov_b64 exec, 1
    buffer_store_dword v21, v20, {WS}, s{t1} offen sc1
    s_mov_b64 exec, -1
    s_barrier
    """)
    stamp(A)
    A.label("Lpoll3")
    A(f"""
    buffer_load_dword v25, v24, {WS}, s{sKVL} offen sc1
    s_add_u32 s{t5}, s{t5}, 1
    s_waitcnt vmcnt(0)
    v_cmp_ne_u32 vcc, s{sN}, v25
    s_cmp_gt_u32 s{t5}, {SPIN_MAX}
    s_cbranch_scc1 Lpoll3_ok
    s_cbranch_vccnz Lpoll3
    """)
    A.label("Lpoll3_ok")
    stamp(A)
    for i in range(4):
        A(f"buffer_load_dwordx4 v2, {WS}, s{sKV} offen offset:{i*1024} sc1 lds")
    A("s_waitcnt vmcnt(0)\ns_barrier")
    stamp(A)
    ACA = 48
    A.lg = []
    for n in range(8):
        A.lds(f"ds_read_b128 {v(64+4*n,4)}, v14 offset:{n*1024}", f"o{n}")
    for n in range(16):
        A.wait(lg=f"o{n}")
        A(f"{MF32} {v(ACA,16)}, {v(WB_+4*n,4)}, {v(64+4*(n%8),4)}, {v(ACA,16) if n else 0}")
        if n + 8 < 16:
            A.lds(f"ds_read_b128 {v(64+4*n,4)}, v14 offset:{(n+8)*1024}", f"o{n+8}")
    A("s_nop 11")
    A(f"s_cmp_lg_u32 s{sRT}, 0\ns_cbranch_scc1 Lred1")
    for kh in range(2):
        snd, keep = (8, 0) if kh == 0 else (0, 8)
        if kh: A.label("Lred1")
        for i in range(8): A(f"v_fmac_f32 v{ACB+snd+i}, v22, v{ACA+snd+i}")
        A(f"ds_write_b128 v15, {v(ACB+snd,4)} offset:{snd*256}\nds_write_b128 v15, {v(ACB+snd+4,4)} offset:{snd*256+1024}")
        for i in range(8): A(f"v_fmac_f32 v{ACB+keep+i}, v22, v{ACA+keep+i}")
        A("s_waitcnt lgkmcnt(0)\ns_barrier")
        A(f"ds_read_b128 v[64:67], v15 offset:{keep*256}\nds_read_b128 v[68:71], v15 offset:{keep*256+1024}")
        A("s_waitcnt lgkmcnt(0)")
        for i in range(8): A(f"v_add_f32 v{64+i}, v{64+i}, v{ACB+keep+i}")
        if kh == 0: A("s_branch Lred2")
    A.label("Lred2")
    for i in range(4): A(f"v_cvt_pk_bf16_f32 v{72+i}, v{64+2*i}, v{65+2*i}")
    A("s_nop 1\nv_permlane32_swap_b32 v72, v74\nv_permlane32_swap_b32 v73, v75")
    A(f"buffer_store_dwordx4 v[72:75], v9, s[{S_T}:{S_T+3}], s{t0} offen")
    if INSTR:
        stamp(A)
        A("s_waitcnt vmcnt(0)")
        stamp(A)
        A("s_memrealtime s[100:101]\ns_waitcnt lgkmcnt(0)\ns_mov_b64 exec, 1")
        A(f"s_lshl_b32 s56, s2, 3\ns_add_u32 s56, s56, s{sW}\ns_lshl_b32 s56, s56, 6\ns_add_u32 s56, s56, {32<<20}")
        A("v_mov_b32 v0, 0")
        for i in range(NST[0]):
            A(f"v_mov_b32 v1, s{68+2*i}\nbuffer_store_dword v1, v0, {WS}, s56 offen offset:{4*i}")
        A(f"v_mov_b32 v1, s100\nbuffer_store_dword v1, v0, {WS}, s56 offen offset:60")
        A(f"v_mov_b32 v1, s98\nbuffer_store_dword v1, v0, {WS}, s56 offen offset:56")
    A.label("Lend")
    A("s_endpgm")
    A.label("Lfallback")
    A.lg = []; A.vm = []
    A(f"s_mov_b32 s{sPASS}, 1\nv_mov_b32 v14, v2\ns_mov_b32 s{sIT}, 0\nv_mov_b32 v9, 0xff800000")
    A.label("Lmaxloop")
    A(f"ds_read_b128 {v(KF,4)}, v14\nv_add_u32 v14, {TS}, v14\ns_waitcnt lgkmcnt(0)")
    A(f"{MF32} {v(SA,16)}, {v(KF,4)}, {v(Q,4)}, 0")
    A("s_nop 11")
    for i in range(0, 16, 2): A(f"v_max3_f32 v9, v9, v{SA+i}, v{SA+i+1}")
    A(f"s_add_u32 s{sIT}, s{sIT}, 1\ns_cmp_lt_u32 s{sIT}, 64\ns_cbranch_scc1 Lmaxloop")
    A(f"ds_read_b128 {v(KF,4)}, v2\ns_waitcnt lgkmcnt(0)")
    setup_pass(False)
    A("v_mov_b32 v14, v2\nv_mov_b32 v15, v7\nv_mov_b32 v16, v8")
    A(f"s_mov_b32 s{sIT}, 0")
    A.label("Lloop2")
    A.lg = ["k", "v2", "v1"]
    for j in range(2): tile(j, j)
    A(f"v_add_u32 v14, {2*TS}, v14\nv_add_u32 v15, {2*TS}, v15\nv_add_u32 v16, {2*TS}, v16")
    A(f"s_add_u32 s{sIT}, s{sIT}, 1\ns_cmp_lt_u32 s{sIT}, 32\ns_cbranch_scc1 Lloop2")
    A("s_branch Lfinish")
    return A.text()

def main():
    ref = open(f"cdna_kernels/{NAME}.s.ref").read().split("\n")
    head = [l for l in ref if l.startswith(";") and "@launch" not in l]
    head += ["; @launch grid=(256,1,1) block=(512,1,1) lds=163840"]
    out = "\n".join(head) + '\n.amdgcn_target "amdgcn-amd-amdhsa--gfx950"\n.text\n'
    t = kernel()
    for e in check(t): print("HAZARD", e)
    out += t + f""".section .rodata,"a"
.p2align 6
.amdhsa_kernel {KNAME}
  .amdhsa_next_free_vgpr 256
  .amdhsa_next_free_sgpr 102
  .amdhsa_accum_offset 256
  .amdhsa_group_segment_fixed_size 0
  .amdhsa_kernarg_size 80
  .amdhsa_user_sgpr_count 2
  .amdhsa_user_sgpr_kernarg_segment_ptr 1
  .amdhsa_system_sgpr_workgroup_id_x 1
.end_amdhsa_kernel
"""
    path = sys.argv[1] if len(sys.argv) > 1 else f"cdna_kernels/{NAME}.s"
    open(path, "w").write(out)
    print("wrote", path, len(out), "stamps", NST[0])
main()
```

```python
import sys, os, subprocess
from asmlib import Asm, v, s, check

NAME = "gated_mix__mha_block__sliding_local_dilated__prompt"
KNAME = NAME + "_kernel"
OPT = dict(x.split("=") for x in os.environ.get("OPT", "").split(",") if x)
INSTR = os.environ.get("INSTR")
QF, KVF, OF, FL, WOF = 0, 2 << 20, 6 << 20, 10 << 20, 11 << 20
FA, FOB = FL, FL + 2048
WS_BYTES = 268435456
CSCALE = 0x3EB8AA3B
LOG2E = 0x3FB8AA3B
NEGBIG = 0xF149F2CA
ONES = 0x3f803f80
TS = 2080
U = 8192
L_H, L_G, L_GP = 17 * U, 155648, 156672
L_EX = 163840 - 256 - 12 * TS
L_GV = 163840 - 256
L_WT = 139264
L_RED = 65536
SPIN_MAX = 1 << 18

class G(Asm):
    def __init__(self):
        super().__init__()
        self.vm, self.lg = [], []
    def vmem(self, text, tag=None):
        self(text); self.vm.append(tag)
    def lds(self, text, tag=None):
        self(text); self.lg.append(tag)
    def _n(self, q, tags):
        if isinstance(tags, str): tags = [tags]
        idx = [i for i, t in enumerate(q) if t in tags]
        if not idx: return None
        return len(q) - 1 - idx[-1]
    def wait(self, vm=None, lg=None):
        parts = []
        if vm is not None:
            n = 0 if vm == "all" else self._n(self.vm, vm)
            if n is not None:
                assert n <= 63
                parts.append(f"vmcnt({n})"); self.vm = self.vm[len(self.vm) - n:] if n else []
        if lg is not None:
            n = 0 if lg == "all" else self._n(self.lg, lg)
            if n is not None:
                n = min(n, 15)
                parts.append(f"lgkmcnt({n})"); self.lg = self.lg[len(self.lg) - n:] if n else []
        if parts: self("s_waitcnt " + " ".join(parts))

def srd(A, d, base, nbytes):
    A(f"s_mov_b32 s{d}, s{base}\ns_mov_b32 s{d+1}, s{base+1}\ns_mov_b32 s{d+2}, {nbytes}\ns_mov_b32 s{d+3}, 0x20000")

NST = [0]
def stamp(A, mode="1", idx=None):
    if INSTR and (INSTR == mode or NST[0] == 0):
        i = NST[0] if idx is None else idx
        NST[0] = max(NST[0], i + 1)
        assert i < 13
        if i == 0: A("s_memrealtime s[98:99]")
        A(f"{'s_memrealtime' if os.environ.get('RT') else 's_memtime'} s[{68+2*i}:{69+2*i}]"); A.wait(lg="all")

S_X, S_WA, S_WB, S_WS, S_DBG, S_T = 16, 20, 24, 28, 32, 36
sW, sRT64, sCG, sCH, sCGQ, sH, sT, sRT, sHD, sN = 40, 41, 42, 43, 44, 45, 46, 47, 48, 49
sXO, sWO, sM1, sRDY, sPASS, sIT = 50, 51, 52, 53, 54, 55
t0, t1, t2, t3, t4, t5 = 56, 57, 58, 59, 60, 61
sKV, sKVL, sWOB, sSTG = 62, 63, 64, 65
sEXP, sOA, sQA = 3, 14, 15
sROT, sWC = sPASS, sIT
sD1, sD2, sAK, sAQ = 4, 5, 6, 7
MF16 = "v_mfma_f32_16x16x32_bf16"
MF32 = "v_mfma_f32_32x32x16_bf16"
WS = f"s[{S_WS}:{S_WS+3}]"

def lanemask(fn):
    m = 0
    for l in range(64):
        if fn(l): m |= 1 << l
    return m

def kernel():
    A = G()
    A(f".globl {KNAME}\n.p2align 8\n.type {KNAME},@function")
    A.label(KNAME)
    A("s_cmp_ge_u32 s2, 256\ns_cbranch_scc1 Lend")
    stamp(A)
    A("""
    s_load_dwordx4 s[4:7], s[0:1], 0
    s_load_dwordx2 s[14:15], s[0:1], 48
    s_load_dwordx2 s[96:97], s[0:1], 72
    s_load_dwordx2 s[8:9], s[0:1], 16
    s_load_dwordx2 s[10:11], s[0:1], 32
    s_load_dwordx2 s[12:13], s[0:1], 40
    s_load_dwordx2 s[66:67], s[0:1], 56
    s_load_dwordx2 s[100:101], s[0:1], 64
    v_lshrrev_b32 v1, 6, v0
    s_and_b32 s56, s2, 7
    v_readfirstlane_b32 s40, v1
    v_and_b32 v1, 63, v0
    s_lshr_b32 s57, s2, 3
    """)
    A(f"""
    s_and_b32 s{sRT64}, s{t0}, 3
    s_lshl_b32 s{sRT64}, s{sRT64}, 3
    s_and_b32 s{t2}, s{t1}, 7
    s_add_u32 s{sRT64}, s{sRT64}, s{t2}
    s_lshr_b32 s{sCH}, s{t0}, 2
    s_lshr_b32 s{sCGQ}, s{t1}, 3
    s_lshl_b32 s{sCG}, s{sCH}, 2
    s_add_u32 s{sCG}, s{sCG}, s{sCGQ}
    s_lshl_b32 s{sH}, s{t0}, 2
    s_add_u32 s{sH}, s{sH}, s{sCGQ}
    s_lshl_b32 s{sT}, s{t2}, 3
    s_add_u32 s{sT}, s{sT}, s{sW}
    s_lshr_b32 s{sRT}, s{sW}, 2
    s_and_b32 s{sHD}, s{sW}, 3
    s_lshl_b32 s{sXO}, s{sRT64}, 16
    s_lshl_b32 s{t2}, s{sW}, 13
    s_add_u32 s{sXO}, s{sXO}, s{t2}
    s_mul_i32 s{sWO}, s{sW}, 8*3072
    s_lshl_b32 s{t2}, s{sCG}, 7
    s_add_u32 s{sWO}, s{sWO}, s{t2}
    s_lshl_b32 s{sM1}, s{sW}, 10
    s_and_b32 s{t3}, s{sW}, 1
    """)
    RM = OPT.get("rot", "4")
    if RM == "4": A(f"s_and_b32 s{sROT}, s{t1}, 3\ns_lshl_b32 s{sROT}, s{sROT}, 1\ns_add_u32 s{sROT}, s{sROT}, s{t0}")
    if RM == "0": A(f"s_mov_b32 s{sROT}, 0")
    if RM == "2": A(f"s_and_b32 s{sROT}, s{t1}, 1\ns_lshl_b32 s{sROT}, s{sROT}, 2\ns_add_u32 s{sROT}, s{sROT}, s{t0}")
    A(f"""
    v_lshlrev_b32 v2, 4, v1
    v_lshrrev_b32 v9, 3, v1
    v_and_b32 v10, 7, v1
    v_lshrrev_b32 v15, 4, v1                 ; g
    v_xor_b32 v12, v10, v15
    v_lshlrev_b32 v12, 4, v12
    v_lshl_add_u32 v4, v9, 10, v12
    v_xor_b32 v5, 64, v4
    s_lshl_b32 s{t2}, s{t3}, 6
    v_xor_b32 v3, s{t2}, v4
    v_and_b32 v12, 1, v15
    v_lshlrev_b32 v12, 5, v12
    v_xor_b32 v12, s{t2}, v12
    v_lshlrev_b32 v13, 4, v10
    v_xor_b32 v12, v12, v13
    v_mul_u32_u24 v6, 3072, v9
    v_add_u32 v6, v6, v12
    s_waitcnt lgkmcnt(0)
    """)
    srd(A, S_X, 4, 2048 * 1024)
    srd(A, S_WA, 6, 512 * 3072)
    def code_pf():
        if OPT.get("nocpf"): return
        A(f"""
        s_getpc_b64 s[{t0}:{t0+1}]
        """)
        A.label("Lpc")
        A(f"""
        s_lshr_b32 s{t2}, s2, 3
        s_cmp_gt_u32 s{t2}, {int(OPT.get("cpfj", 3))}
        s_cbranch_scc1 Lnocpf
        s_lshl_b32 s{t2}, s{sW}, 13
        v_lshl_add_u32 v18, v1, 7, s{t2}
        v_min_u32 v18, Lcode_end-Lpc-4, v18
        global_load_dword v31, v18, s[{t0}:{t0+1}]
        """)
        A.label("Lnocpf")
    A(f"s_lshl_b32 s{sD2}, s{sCH}, 10\ns_sub_u32 s{sD1}, 1536, s{sD2}\ns_add_u32 s{sD2}, s{sD1}, 1024")

    unit_of = {}
    free_units = list(range(4, 17))
    xfree = {0, 1, 2, 3}
    pending = []
    for S in range(16):
        if S < 8: pending.append(("x", S, 0))
        if S == 8: pending.append(("h", 8, 0))
        for seg in range(3): pending.append(("w", S, seg))
    def dma_item(it):
        kind, S, seg = it
        if kind == "x":
            xfree.remove(S % 4)
            A(f"""
            s_add_u32 s{t4}, s{sROT}, {S}
            s_and_b32 s{t4}, s{t4}, 7
            s_lshl_b32 s{t4}, s{t4}, 7
            s_add_u32 m0, s{sM1}, {(S%4)*U}
            s_add_u32 s{t4}, s{t4}, s{sXO}
            """)
            A.vmem(f"buffer_load_dwordx4 v3, s[{S_X}:{S_X+3}], s{t4} offen lds", f"st{S}")
        elif kind == "w":
            u = min(free_units)
            free_units.remove(u); unit_of[(S, seg)] = u
            sr = S_WA if S < 8 else S_WB
            if seg == 0:
                A(f"""
                s_add_u32 s{sWC}, s{sROT}, {S%8}
                s_and_b32 s{sWC}, s{sWC}, 7
                s_mul_i32 s{sWC}, s{sWC}, 196608
                s_add_u32 m0, s{sM1}, {u*U}
                s_add_u32 s{sWC}, s{sWC}, s{sWO}
                """)
                A.vmem(f"buffer_load_dwordx4 v6, s[{sr}:{sr+3}], s{sWC} offen lds", f"st{S}")
            else:
                A(f"s_add_u32 m0, s{sM1}, {u*U}\ns_add_u32 s{t4}, s{sWC}, {seg*1024 if S >= 8 else 's%d' % [0, sD1, sD2][seg]}")
                A.vmem(f"buffer_load_dwordx4 v6, s[{sr}:{sr+3}], s{t4} offen lds", f"st{S}")
        else:
            A(f"""
            s_lshl_b32 s{t0}, s{sRT64}, 16
            s_sub_u32 s{t1}, s{t0}, 16384
            s_cmp_eq_u32 s{sRT64}, 0
            s_cselect_b32 s{t0}, s{t0}, s{t1}
            s_add_u32 s{t1}, s{sW}, s{sROT}
            s_and_b32 s{t1}, s{t1}, 7
            s_lshl_b32 s{t3}, s{t1}, 7
            s_add_u32 s{t0}, s{t0}, s{t3}
            s_lshl_b32 s{t1}, s{sM1}, 1
            s_add_u32 m0, s{t1}, {L_H}
            s_add_u32 s{t2}, s{t0}, 8192
            """)
            A.vmem(f"buffer_load_dwordx4 v4, s[{S_X}:{S_X+3}], s{t0} offen lds", "hl")
            A(f"s_add_u32 m0, s{t1}, {L_H+1024}\ns_lshl_b32 s{t1}, s{sW}, 7")
            A.vmem(f"buffer_load_dwordx4 v5, s[{S_X}:{S_X+3}], s{t2} offen lds", "hl")
            A(f"s_add_u32 m0, s{t1}, {L_G}\ns_mov_b64 exec, 0xff")
            A.vmem(f"buffer_load_dwordx4 v2, s[{S_T}:{S_T+3}], s{t3} offen lds", "hl")
            A("s_mov_b64 exec, -1")
    state = {"minh": False}
    def next_dma():
        for i, it in enumerate(pending):
            if it[0] == "w" and not free_units: continue
            if it[0] == "x" and it[1] % 4 not in xfree: continue
            if it[0] == "h" and not state["minh"]: continue
            pending.pop(i); dma_item(it); return True
        return False
    if OPT.get("cpf1"): code_pf()
    for _ in range(4): next_dma()
    if not OPT.get("cpf1"): code_pf()
    srd(A, S_WS, 96, WS_BYTES)
    A(f"s_lshl_b32 s{t2}, s2, 3\ns_add_u32 s{t2}, s{t2}, s{sW}\ns_cmp_lg_u32 s{t2}, 7\ns_cbranch_scc1 Lnoscan1")
    A(f"s_mov_b32 s{t4}, {FL}")
    for i in range(3):
        A(f"buffer_load_dwordx4 {v(240+4*i,4)}, v2, {WS}, s{t4} offen offset:{i*1024} sc1")
    A.label("Lnoscan1")
    nscan = len(A.vm)
    A("s_barrier")
    for _ in range(4): next_dma()
    srd(A, S_T, 14, 1024)
    srd(A, S_WB, 10, 512 * 3072)
    srd(A, S_DBG, 100, 256)
    A(f"""
    v_and_b32 v14, 15, v1
    v_lshrrev_b32 v16, 1, v14
    v_xor_b32 v16, v16, v15
    v_lshlrev_b32 v16, 4, v16
    v_lshl_add_u32 v16, v14, 7, v16
    s_lshl_b32 s{t2}, s{sRT}, 12
    v_add_u32 v7, s{t2}, v16
    v_xor_b32 v8, 64, v7
    v_add_u32 v9, {L_H}, v16
    v_xor_b32 v10, 64, v9
    v_lshlrev_b32 v11, 4, v15
    s_lshl_b32 s{t2}, s{sHD}, 8
    s_add_u32 s{t2}, s{t2}, {L_G}
    v_add_u32 v11, s{t2}, v11
    v_bfe_u32 v18, v1, 2, 2                  ; r
    v_lshl_add_u32 v12, v15, 3, v18
    v_lshlrev_b32 v12, 7, v12
    v_bfe_u32 v18, v1, 3, 2
    v_xor_b32 v18, s{sHD}, v18
    v_lshl_add_u32 v12, v18, 5, v12
    v_and_b32 v18, 3, v1
    v_lshl_add_u32 v12, v18, 3, v12
    v_add_u32 v13, 65536, v12
    v_add_u32 v0, 131072, v12
    v_mov_b32 v20, 0
    v_and_b32 v24, 31, v1
    v_lshlrev_b32 v24, 2, v24
    """)
    NPRE = int(OPT.get("npre", 4))
    if NPRE >= 3:
        A("s_barrier")
        for _ in range(4): next_dma()
    A(f"""
    s_lshl_b32 s{t0}, s{sH}, 6
    s_add_u32 s{t1}, s{t0}, s{sT}
    s_lshl_b32 s{sQA}, s{t1}, 10
    s_add_u32 s{t0}, s{t0}, s{sW}
    s_lshl_b32 s{t0}, s{t0}, 11
    s_add_u32 s{sKV}, s{t0}, {KVF}
    s_mul_i32 s{sSTG}, s{sW}, {TS}
    s_mov_b32 s{sRDY}, 0
    s_lshl_b32 s{t0}, s{sT}, 6
    s_add_u32 s{t0}, s{t0}, s{sH}
    s_lshl_b32 s{t0}, s{t0}, 10
    s_add_u32 s{sOA}, s{t0}, {OF}
    s_lshl_b32 s{t2}, s{sRT64}, 1
    s_add_u32 s{t2}, s{t2}, s{sRT}
    s_lshl_b32 s{t1}, s{sCG}, 2
    s_add_u32 s{t1}, s{t1}, s{sHD}
    s_lshl_b32 s{t0}, s{t2}, 6
    s_add_u32 s{t0}, s{t0}, s{t1}
    s_lshl_b32 s{t0}, s{t0}, 10
    s_add_u32 s{sWOB}, s{t0}, {OF + 32768}
    s_lshl_b32 s{t0}, s{t1}, 6
    s_add_u32 s{t0}, s{t0}, s{t2}
    s_lshl_b32 s{sAQ}, s{t0}, 10
    s_xor_b32 s{t0}, s{t0}, 1024
    s_lshl_b32 s{t0}, s{t0}, 11
    s_add_u32 s{sAK}, s{t0}, {KVF}
    s_and_b32 s{sKVL}, s2, 3
    s_lshl_b32 s{sKVL}, s{sKVL}, 8
    s_add_u32 s{sKVL}, s{sKVL}, {FA}
    s_mul_i32 s{t0}, s{sHD}, {3*TS}
    s_mul_i32 s{t1}, s{sRT}, {TS}
    s_add_u32 s{t0}, s{t0}, s{t1}
    s_add_u32 s{sEXP}, s{t0}, {L_EX}
    """)
    A(f"""
    v_lshrrev_b32 v18, 5, v1
    v_lshlrev_b32 v16, 8, v18
    v_lshl_add_u32 v16, v14, 4, v16
    v_add_u32 v16, 1024, v16
    v_add_u32 v17, 512, v16
    v_mov_b32 v19, 2064
    v_mov_b32 v18, 2048
    s_mov_b32 vcc_lo, 0x00110000
    s_mov_b32 vcc_hi, 0x00110000
    v_cndmask_b32 v19, v19, v18, vcc
    s_mov_b32 vcc_lo, 0x0000ffff
    s_mov_b32 vcc_hi, 0x0000ffff
    v_cndmask_b32 v16, v19, v16, vcc
    v_cndmask_b32 v17, v19, v17, vcc
    v_lshrrev_b32 v18, 1, v1
    v_and_b32 v19, 1, v1
    v_mul_u32_u24 v26, {8*TS}, v18
    v_lshl_add_u32 v26, v19, 4, v26
    v_add_u32 v26, s{sSTG}, v26
    v_mul_u32_u24 v27, {TS}, v18
    v_lshl_add_u32 v27, v19, 4, v27
    v_add_u32 v27, {L_EX+2048}, v27
    v_mov_b32 v25, {L_GV}
    """)
    A(f"""
    v_lshrrev_b32 v19, 1, v15
    v_and_b32 v18, 1, v15
    v_lshlrev_b32 v28, 9, v19
    v_lshl_add_u32 v28, v18, 3, v28
    v_add_u32 v28, 256, v28
    v_lshlrev_b32 v29, 8, v18
    v_lshl_add_u32 v29, v19, 3, v29
    v_add_u32 v29, {1536 - TS + 65536}, v29
    v_subrev_u32 v29, 65536, v29
    s_cmp_eq_u32 s{sRT}, 0
    s_cselect_b64 vcc, -1, 0
    v_cndmask_b32 v28, v29, v28, vcc
    v_lshl_add_u32 v28, v14, 4, v28
    v_add_u32 v28, s{sEXP}, v28
    s_lshl_b32 s{t2}, s{sRT}, 9
    s_add_u32 s{t2}, s{t2}, {L_GP}
    s_lshl_b32 s{t3}, s{sHD}, 2
    s_add_u32 s{t3}, s{t3}, s{t2}
    v_lshl_add_u32 v29, v24, 2, s{t3}
    s_lshl_b32 s{t3}, s{sCH}, 9
    s_add_u32 s{t3}, s{t3}, {L_GP}
    v_mov_b32 v18, s{t2}
    v_mov_b32 v19, s{t3}
    s_mov_b32 vcc_lo, -1
    s_mov_b32 vcc_hi, 0
    v_cndmask_b32 v18, v19, v18, vcc
    v_lshl_add_u32 v30, v24, 2, v18
    """)
    A("v_mov_b32 v21, 0")
    A.lds("ds_write_b64 v25, v[20:21]")
    AC = 32
    SA, SB = 64, 80
    key = lambda i, hh: 8 * (i // 4) + 4 * hh + i % 4
    okd = lambda d: 0 <= d <= 14 and d % 2 == 0
    A(f"""
    v_mov_b32 v18, {hex(NEGBIG)}
    s_or_b32 s{t2}, s{sRT64}, s{sRT}
    s_cmp_eq_u32 s{t2}, 0
    s_cselect_b32 s{t2}, {hex(NEGBIG)}, 0
    v_mov_b32 v19, s{t2}
    """)
    for i in range(16):
        m = lanemask(lambda l: okd((l & 31) - key(i, l >> 5)))
        A(f"s_mov_b32 vcc_lo, {hex(m & 0xffffffff)}\ns_mov_b32 vcc_hi, {hex(m >> 32)}\nv_cndmask_b32 v{SA+i}, v18, v20, vcc")
    for i in range(8, 16):
        m = lanemask(lambda l: okd((l & 31) + 32 - key(i, l >> 5)))
        A(f"s_mov_b32 vcc_lo, {hex(m & 0xffffffff)}\ns_mov_b32 vcc_hi, {hex(m >> 32)}\nv_cndmask_b32 v{SB+i}, v18, v19, vcc")
    A(f"s_lshl_b32 s{t2}, s2, 3\ns_add_u32 s{t2}, s{t2}, s{sW}\ns_cmp_lg_u32 s{t2}, 7\ns_cbranch_scc1 Lnoscan2")
    A(f"s_waitcnt vmcnt({len(A.vm) - nscan})\ns_mov_b32 s{t4}, 0")
    A.label("Lscan")
    A(f"s_add_u32 s{t4}, s{t4}, 1\ns_mov_b64 exec, -1")
    for i in range(12):
        A(f"v_cmpx_ne_u32 vcc, s{t4}, v{240+i}")
    A("s_nop 1\ns_cmp_eq_u64 exec, -1\ns_cbranch_scc0 Lscan")
    A(f"v_mov_b32 v21, s{t4}\ns_mov_b64 exec, 1")
    A(f"buffer_store_dword v21, v20, s[{S_DBG}:{S_DBG+3}], 0 offen sc1")
    A("s_mov_b64 exec, -1")
    A.label("Lnoscan2")
    if NPRE >= 4:
        for _ in range(4): next_dma()

    FB = [96, 112]
    XF = lambda S, u, sub: 128 + 8 * (2 * (S % 8) + u) + 4 * sub
    def reads(S, u):
        if OPT.get("nord"): return []
        b = FB[u]; kc = S % 8
        tg = f"r{S}_{u}"
        L = []
        rd = lambda text, tag: L.append(lambda: A.lds(text, tag))
        def wr(seg):
            un = unit_of.get((S, seg), 8)
            wb, so = [12, 13, 0][un // 8], (un % 8) * U
            for t in range(2):
                rd(f"ds_read_b64_tr_b16 {v(b+4*seg+2*t,2)}, v{wb} offset:{so + u*4096 + t*512}", f"{tg}w{seg}")
        if S < 8:
            rd(f"ds_read_b128 {v(XF(S,u,0),4)}, v{7+u} offset:{(kc%4)*U}", tg + "x0")
            wr(0)
            rd(f"ds_read_b128 {v(XF(S,u,1),4)}, v{7+u} offset:{(kc%4)*U+2048}", tg + "x1")
            wr(1); wr(2)
        else:
            wr(0); wr(1); wr(2)
            rd(f"ds_read_b128 {v(b+12,4)}, v{9+u} offset:{kc*2048}", tg + "e")
        return L
    def mms(S, u, rt):
        b = FB[u]; ac = AC
        tg = f"r{S}_{u}"
        L = []
        def mm(d, a_, b_, tags):
            def f():
                A.wait(lg=[tg + t for t in tags])
                if not OPT.get("nomm"): A(f"{MF16} {v(d,4)}, {v(a_,4)}, {v(b_,4)}, {0 if (S % 8 == 0 and u == 0) else v(d,4)}")
            L.append(f)
        for sub in range(2): mm(ac + 4 * sub, b, XF(S, u, sub), ["w0", f"x{sub}"])
        for sub in range(2): mm(ac + 8 + 4 * sub, b + 4, XF(S, u, sub), ["w1", f"x{sub}"])
        for sub in range(2): mm(ac + 16 + 4 * sub, XF(S, u, sub), b + 8, ["w2", f"x{sub}"])
        if S < 8: pass
        elif rt == 0: mm(ac + 24, b + 4, b + 12, ["e"])
        else: mm(ac + 24, b + 12, b + 8, ["e"])
        if S % 8 == 7 and u == 1: L = L[2:] + L[0:2]
        return L

    def scale_q(ac, dq):
        A(f"s_mov_b32 s{t5}, {hex(CSCALE)}")
        for i in range(4):
            A(f"""
            v_cvt_pk_bf16_f32 v18, v{ac+2*i}, v{ac+2*i+1}
            v_and_b32 v19, 0xffff0000, v18
            v_lshlrev_b32 v18, 16, v18
            v_mul_f32 v18, s{t5}, v18
            v_mul_f32 v19, s{t5}, v19
            v_cvt_pk_bf16_f32 v{dq+i}, v18, v19
            """)
    GFR = [40, 44, 48, 52]
    GAC = [60, 84]
    def a_epilogue():
        A("s_nop 3")
        for i in range(4): A(f"v_cvt_pk_bf16_f32 v{80+i}, v{40+2*i}, v{41+2*i}")
        for i in range(4): A(f"v_cvt_pk_bf16_f32 v{56+i}, v{48+2*i}, v{49+2*i}")
        A("v_permlane16_swap_b32 v80, v82\nv_permlane16_swap_b32 v81, v83")
        A.vmem(f"buffer_store_dwordx4 v[80:83], v2, {WS}, s{sAK} offen sc1", "ast")
        A("v_permlane32_swap_b32 v56, v58\nv_permlane32_swap_b32 v57, v59")
        A.vmem(f"buffer_store_dwordx4 v[56:59], v2, {WS}, s{sAK} offen offset:1024 sc1", "ast")
        scale_q(32, 84)
        A("s_nop 1\nv_permlane16_swap_b32 v84, v86\nv_permlane16_swap_b32 v85, v87")
        A.vmem(f"buffer_store_dwordx4 v[84:87], v2, {WS}, s{sAQ} offen sc1", "ast")
        A.vmem(f"buffer_load_dword v21, v20, s[{S_DBG}:{S_DBG+3}], 0 offen sc1", "nonce")
    def gate_reads():
        for k in range(4):
            A.lds(f"ds_read_b128 {v(GFR[k],4)}, v11 offset:{k*64}", "gf")
    def gate_mm():
        A.wait(lg="gf")
        for hd in range(4):
            if hd < 3:
                A(f"s_cmp_lg_u32 s{sHD}, {hd}\ns_cbranch_scc1 Lg{hd}")
            for k in range(4):
                for sub in range(2):
                    A(f"{MF16} {v(GAC[sub],4)}, {v(GFR[k],4)}, {v(XF(2*hd + k//2, k%2, sub),4)}, {v(GAC[sub],4) if k else 0}")
            if hd < 3:
                A(f"s_branch Lgd")
                A.label(f"Lg{hd}")
        A.label(f"Lgd")
    def gate_part():
        A(f"""
        s_mov_b32 vcc_lo, 0x0000ffff
        s_mov_b32 vcc_hi, 0x0000ffff
        v_cndmask_b32 v18, v{GAC[1]}, v{GAC[0]}, vcc
        """)
        A.lds("ds_write_b32 v29, v18", "gp")
    def gate_fin():
        A.lds("ds_read_b128 v[84:87], v30", "gq")
        A(f"""
        v_mov_b32 v80, {hex(ONES)}
        s_mov_b32 vcc_lo, 0x55555555
        s_mov_b32 vcc_hi, 0x55555555
        v_cndmask_b32 v80, 0, v80, vcc
        v_mov_b32 v81, v80
        v_mov_b32 v82, v80
        v_mov_b32 v83, v80
        v_lshrrev_b32 v3, 5, v1
        v_and_b32 v5, 31, v1
        v_add_u32 v11, s{sEXP}, v2
        v_add_u32 v7, s{sEXP}, v16
        v_add_u32 v8, s{sEXP}, v17
        v_lshl_add_u32 v4, v3, 10, v24
        """)
        A.wait(lg="gq")
        A(f"""
        v_add_f32 v84, v84, v85
        v_add_f32 v86, v86, v87
        v_add_f32 v18, v84, v86
        v_cvt_pk_bf16_f32 v18, v18, v18
        v_lshlrev_b32 v18, 16, v18
        v_mul_f32 v18, {hex(LOG2E ^ 0x80000000)}, v18
        v_exp_f32 v18, v18
        s_nop 0
        v_add_f32 v18, 1.0, v18
        v_rcp_f32 v18, v18
        s_nop 0
        v_cvt_pk_bf16_f32 v18, v18, v18
        v_lshlrev_b32 v23, 16, v18
        v_lshlrev_b32 v22, 16, v18
        s_nop 1
        v_permlane32_swap_b32 v23, v22
        v_sub_f32 v18, 1.0, v23
        v_cvt_pk_bf16_f32 v18, v18, v18
        v_lshlrev_b32 v23, 16, v18               ; 1-g
        """)

    def get_nonce(lbl):
        A(f"s_mov_b32 s{t5}, 0")
        A.label(lbl)
        A(f"""
        v_readfirstlane_b32 s{sN}, v21
        s_add_u32 s{t5}, s{t5}, 1
        s_cmp_lg_u32 s{sN}, 0
        s_cbranch_scc1 {lbl}_ok
        s_cmp_gt_u32 s{t5}, {SPIN_MAX}
        s_cbranch_scc1 {lbl}_ok
        s_sleep 2
        buffer_load_dword v21, v20, s[{S_DBG}:{S_DBG+3}], 0 offen sc1
        s_waitcnt vmcnt(0)
        s_branch {lbl}
        """)
        A.label(lbl + "_ok")

    def capture(fn, *args):
        keep_lines = A.lines
        rec = []
        A.lines = []
        ov, ol, ow = A.vmem, A.lds, A.wait
        def flush():
            for l in A.lines: rec.append(("i", l))
            A.lines = []
        A.vmem = lambda text, tag=None: (flush(), rec.append(("vm", text, tag)))
        A.lds = lambda text, tag=None: (flush(), rec.append(("lg", text, tag)))
        A.wait = lambda vm=None, lg=None: (flush(), rec.append(("w", vm, lg)))
        fn(*args); flush()
        A.vmem, A.lds, A.wait = ov, ol, ow
        A.lines = keep_lines
        out, grp = [], []
        def mk(g):
            def f():
                for r in g:
                    if r[0] == "i": A(r[1])
                    elif r[0] == "vm": A.vmem(r[1], r[2])
                    elif r[0] == "lg": A.lds(r[1], r[2])
                    else: A.wait(r[1], r[2])
            return f
        for r in rec:
            grp.append(r)
            if r[0] == "i" and r[1].strip().startswith("s_"): continue
            if r[0] == "w": continue
            out.append(mk(grp)); grp = []
        if grp: out.append(mk(grp))
        return out
    bg = []
    def group(m, rds, ndma, must=()):
        rds, must = list(rds), list(must)
        n = len(m)
        dslots = [int((k + 0.5) * n / ndma) for k in range(ndma)] if ndma else []
        for i, f in enumerate(m):
            f()
            k = -(-len(rds) // max(1, n - 1 - i)) if i < n - 1 else len(rds)
            for _ in range(k):
                if rds: rds.pop(0)()
            did = False
            if i in dslots and not OPT.get("nodma"): did = next_dma()
            if i >= 1 and must:
                k = -(-len(must) // (n - i))
                for _ in range(k):
                    if must: must.pop(0)()
            elif not did and i % 2 == 1:
                if bg: bg.pop(0)()
        for f in rds + must: f()

    Q, KF, V1, V2 = 28, 96, 100, 104
    def kv_first():
        A(f"s_mov_b32 m0, s{sSTG}")
        A(f"buffer_load_dwordx4 {v(Q,4)}, v2, {WS}, s{sQA} offen sc1")
        A(f"buffer_load_dwordx4 v2, {WS}, s{sKV} offen sc1 lds")
        A(f"buffer_load_dwordx4 v2, {WS}, s{sKV} offen offset:1024 sc1 lds")
        A(f"s_add_u32 m0, s{sSTG}, {8*TS}\ns_add_u32 s{t4}, s{sKV}, {8*2048}")
        A(f"buffer_load_dwordx4 v2, {WS}, s{t4} offen sc1 lds")
        A(f"buffer_load_dwordx4 v2, {WS}, s{t4} offen offset:1024 sc1 lds")
        A(f"s_mov_b32 s{sRDY}, 1")

    PUB = int(OPT.get("pub", 10))
    def rel_stage(S):
        for seg in range(3):
            if (S, seg) in unit_of: free_units.append(unit_of[(S, seg)])
        if S < 4: xfree.add(S)
        elif S < 8: free_units.append(S % 4)
    ND = int(OPT.get("nd", 4))
    HPOS = int(OPT.get("hpos", 2))
    def stage(S, rt=None):
        sfx = "" if rt is None else f"_{rt}"
        must = []
        if S == 8: must = [lambda: None] * 3 + capture(gate_part)
        PAUSE = int(OPT.get("pause", 3))
        nd0 = 0 if 0 <= 2 * (S - 8) < PAUSE else ND
        nd1 = 0 if 0 <= 2 * (S - 8) + 1 < PAUSE else ND
        group(mms(S, 0, rt), reads(S, 1), nd0, must)
        if S == 7:
            if OPT.get("b7", "1") == "1":
                A("s_barrier"); rel_stage(6)
                group(mms(S, 1, rt), [], ND, [])
            else:
                group(mms(S, 1, rt), [], 0, [])
            return
        if S == 8: A.wait(lg="gp")
        if S == 15:
            while bg: bg.pop(0)()
        if S == PUB: A.wait(vm=[f"st{S+1}", "ast", "nonce"])
        elif S == 6: A.wait(vm=[f"st{S+1}", "hl"])
        elif S < 15: A.wait(vm=f"st{S+1}")
        else: A.wait(lg="all")
        A("s_barrier")
        if S >= 8: stamp(A, "B", S - 6)
        if S < 7: stamp(A, "A", S + 1)
        if S >= 1 and S != 8: rel_stage(S - 1)
        if S == HPOS: state["minh"] = True
        if S == 8: bg.extend(capture(gate_fin))
        if S == PUB:
            get_nonce("Lnonce" + sfx)
            if rt == 0:
                A(f"s_cmp_lg_u32 s{sW}, 0\ns_cbranch_scc1 Lnofa")
                A(f"""
                s_lshl_b32 s{t0}, s{sCG}, 8
                s_lshl_b32 s{t1}, s{sRT64}, 2
                s_add_u32 s{t0}, s{t0}, s{t1}
                s_add_u32 s{t0}, s{t0}, {FA}
                s_mov_b64 exec, 1
                buffer_store_dword v21, v20, {WS}, s{t0} offen sc1
                s_mov_b64 exec, -1
                """)
                A.label("Lnofa")
        if S == 15 and rt == 1:
            A(f"s_cmp_lg_u32 s{sW}, 7\ns_cbranch_scc1 Lnp0\nbuffer_load_dword v0, v4, {WS}, s{sKVL} offen sc1")
            A.label("Lnp0")
        for seg in range(3):
            assert S == 15 or OPT.get("nodma") or (S + 1, seg) in unit_of, (S, seg)
        group(mms(S, 1, rt), reads(S + 1, 0) if S < 15 else [], nd1, [])

    A.wait(vm="st0"); A("s_barrier")
    stamp(A)
    for f in reads(0, 0): f()
    for S in range(8):
        stage(S)
    a_epilogue()
    gate_reads()
    stamp(A); stamp(A, "A", 8)
    gate_mm()
    A.wait(vm="st8"); A("s_barrier")
    stamp(A, "B", 1)
    if OPT.get("b7", "1") != "1": rel_stage(6)
    rel_stage(7)
    for f in reads(8, 0): f()
    A(f"s_cmp_lg_u32 s{sRT}, 0\ns_cbranch_scc1 LB1")
    save = (list(A.vm), list(A.lg), dict(unit_of), list(free_units), list(pending))
    for S in range(8, 16):
        stage(S, 0)
    A("s_branch LBdone")
    A.label("LB1")
    A.vm, A.lg = list(save[0]), list(save[1])
    unit_of.clear(); unit_of.update(save[2]); free_units[:] = save[3]; pending[:] = save[4]
    for S in range(8, 16):
        stage(S, 1)
    A.label("LBdone")
    assert not pending or OPT.get("nodma")
    stamp(A)
    A.vm = []
    A("s_mov_b64 exec, 0xffff")
    A.lds("ds_write_b128 v26, v[80:83] offset:2048")
    A("s_mov_b64 exec, 0xffffff")
    A.lds("ds_write_b128 v27, v[80:83]")
    A("s_mov_b64 exec, -1")
    for i in range(4): A(f"v_cvt_pk_bf16_f32 v{104+i}, v{40+2*i}, v{41+2*i}")
    for i in range(4): A(f"v_cvt_pk_bf16_f32 v{108+i}, v{48+2*i}, v{49+2*i}")
    A("v_cvt_pk_bf16_f32 v96, v56, v57\nv_cvt_pk_bf16_f32 v97, v58, v59")
    A("""
    v_permlane16_swap_b32 v104, v106
    v_permlane16_swap_b32 v105, v107
    v_permlane32_swap_b32 v108, v110
    v_permlane32_swap_b32 v109, v111
    """)
    A.lds("ds_write_b64 v28, v[96:97]")
    A.lds(f"ds_write_b128 v11, v[104:107] offset:{TS}")
    A.lds(f"ds_write_b128 v11, v[108:111] offset:{TS+1024}")
    scale_q(32, 100)
    A("s_nop 1\nv_permlane16_swap_b32 v100, v102\nv_permlane16_swap_b32 v101, v103")
    A.wait(lg="all"); A("s_barrier")
    A(f"{MF32} {v(SA,16)}, v[104:107], v[100:103], {v(SA,16)}")
    A.lds("ds_read_b128 v[96:99], v11", "kp")
    A.lds(f"ds_read_b128 v[108:111], v7 offset:{TS}", "vb")
    A.lds(f"ds_read_b128 v[120:123], v8 offset:{TS}", "vb")
    A.lds("ds_read_b128 v[124:127], v8", "vb")
    A(f"s_cmp_lg_u32 s{sW}, 7\ns_cbranch_scc1 Lnp1\ns_mov_b32 s{t5}, 0")
    A.label("Lpoll1")
    A(f"""
    s_add_u32 s{t5}, s{t5}, 1
    s_waitcnt vmcnt(0)
    v_cmp_ne_u32 vcc, s{sN}, v0
    s_cmp_gt_u32 s{t5}, {SPIN_MAX}
    s_cbranch_scc1 Lpoll1_ok
    s_cbranch_vccz Lpoll1_ok
    s_sleep 1
    buffer_load_dword v0, v4, {WS}, s{sKVL} offen sc1
    s_branch Lpoll1
    """)
    A.label("Lpoll1_ok")
    A("ds_write_b32 v25, v21")
    kv_first()
    A.label("Lnp1")
    A.wait(lg="kp")
    A(f"{MF32} {v(SB,16)}, v[96:99], v[100:103], {v(SB,16)}")
    A.lds("ds_read_b32 v0, v25", "rd")
    A("s_nop 3")
    PB, OBA = 32, 48
    regs = [SA + i for i in range(16)] + [SB + i for i in range(8, 16)]
    A(f"v_max3_f32 v9, v{regs[0]}, v{regs[1]}, v{regs[2]}")
    for i in range(3, 23, 2): A(f"v_max3_f32 v9, v9, v{regs[i]}, v{regs[i+1]}")
    A(f"v_max_f32 v9, v9, v{regs[23]}")
    def ldscheck(lbl):
        A(f"""
        s_cmp_lg_u32 s{sRDY}, 0
        s_cbranch_scc1 {lbl}
        s_waitcnt lgkmcnt(0)
        v_readfirstlane_b32 s{t2}, v0
        s_nop 0
        s_cmp_eq_u32 s{t2}, 0
        s_cbranch_scc1 {lbl}
        """)
        kv_first()
        A.label(lbl)
    A("v_mov_b32 v10, v9")
    ldscheck("Lck1")
    A("s_nop 0\nv_permlane32_swap_b32 v9, v10\nv_max_f32 v9, v9, v10")
    A.lds("ds_read_b32 v0, v25", "rd")
    for r in regs: A(f"v_sub_f32 v{r}, v{r}, v9")
    ldscheck("Lck2")
    for k in range(3):
        for r in regs[8*k:8*k+8]: A(f"v_exp_f32 v{r}, v{r}")
        A("s_nop 0")
        for i in range(4*k, 4*k+4): A(f"v_cvt_pk_bf16_f32 v{PB+i}, v{regs[2*i]}, v{regs[2*i+1]}")
        A.wait(lg="all"); A("s_nop 0")
        A(f"{MF32} {v(OBA,16)}, {['v[108:111]','v[120:123]','v[124:127]'][k]}, {v(PB+4*k,4)}, {v(OBA,16) if k else 0}")
    stamp(A)
    A(f"s_cmp_lg_u32 s{sRDY}, 0\ns_cbranch_scc1 Lrdy\ns_mov_b32 s{t5}, 0")
    A.label("Lspin")
    A(f"""
    ds_read_b32 v0, v25
    s_add_u32 s{t5}, s{t5}, 1
    s_waitcnt lgkmcnt(0)
    v_readfirstlane_b32 s{t2}, v0
    s_cmp_gt_u32 s{t5}, {SPIN_MAX*16}
    s_cbranch_scc1 Lspin_ok
    s_cmp_lg_u32 s{t2}, 0
    s_cbranch_scc1 Lspin_ok
    s_sleep 1
    s_branch Lspin
    """)
    A.label("Lspin_ok")
    kv_first()
    A.label("Lrdy")
    C, O, P = 32, 48, 112
    srd(A, S_T, 66, 2048 * 1024)
    A(f"s_cmp_eq_u32 s{sCH}, 0\ns_cselect_b32 s{S_WA}, s8, s12\ns_cselect_b32 s{S_WA+1}, s9, s13\ns_mov_b32 s{S_WA+2}, 512*1024")
    A(f"""
    s_lshl_b32 s{t0}, s{sCGQ}, 2
    s_add_u32 s{t0}, s{t0}, s{sHD}
    s_lshl_b32 s{t0}, s{t0}, 16
    s_lshl_b32 s{t1}, s{sRT}, 14
    s_add_u32 s{t2}, s{t0}, s{t1}
    s_add_u32 s{sWO}, s{t2}, {WOF}
    s_lshl_b32 s{t2}, s{sCH}, 15
    s_add_u32 s{t0}, s{t0}, s{t2}
    s_lshl_b32 s{t2}, s{sRT64}, 10
    s_add_u32 s{t0}, s{t0}, s{t2}
    s_add_u32 s{sAK}, s{t0}, {WOF}
    s_lshl_b32 s{t0}, s{sRT64}, 1
    s_add_u32 s{t0}, s{t0}, s{sCH}
    s_lshl_b32 s{t0}, s{t0}, 16
    s_add_u32 s{t0}, s{t0}, s{t1}
    s_add_u32 s{sXO}, s{t0}, {OF + 32768}
    """)
    A(f"v_rcp_f32 v9, v{OBA+8}\ns_nop 0\nv_mul_f32 v9, v9, v23")
    for i in range(8): A(f"v_mul_f32 v{OBA+i}, v{OBA+i}, v9")
    for i in range(4): A(f"v_cvt_pk_bf16_f32 v{108+i}, v{OBA+2*i}, v{OBA+2*i+1}")
    for i in range(16): A(f"v_mov_b32 v{O+i}, 0")
    for i in range(4): A(f"v_mov_b32 v{P+4+i}, 0")
    for i in range(4): A(f"v_mov_b32 v{120+i}, -1")
    A("v_mov_b32 v7, v16\nv_mov_b32 v8, v17\nv_mov_b32 v14, v2\nv_mov_b32 v15, v16\nv_mov_b32 v16, v17")
    A(f"""
    v_and_b32 v18, 3, v1
    v_lshrrev_b32 v26, 2, v1
    v_lshlrev_b32 v26, 10, v26
    v_lshl_add_u32 v26, v18, 4, v26
    v_bfe_u32 v19, v1, 2, 2
    v_lshl_add_u32 v27, v3, 2, v19
    v_lshlrev_b32 v27, 6, v27
    v_bfe_u32 v19, v1, 4, 1
    v_lshl_add_u32 v27, v19, 5, v27
    v_lshl_add_u32 v27, v18, 3, v27
    s_add_u32 s{t2}, s{sM1}, {L_WT}
    v_add_u32 v27, s{t2}, v27
    """)
    A.wait(vm="all")
    A("s_barrier")
    stamp(A)
    A.lds(f"ds_read_b128 {v(KF,4)}, v2", "k")
    A.lds(f"ds_read_b128 {v(V2,4)}, v8", "v2")
    A.lds(f"ds_read_b128 {v(V1,4)}, v7", "v1")
    A(f"s_mov_b32 s{sPASS}, 0\ns_mov_b32 s{sKVL}, {FOB}")
    A.wait(lg="k")
    A(f"{MF32} {v(SA,16)}, {v(KF,4)}, {v(Q,4)}, 0")
    A("s_nop 1")
    A("s_nop 9")
    A(f"v_max3_f32 v9, v{SA}, v{SA+1}, v{SA+2}")
    for i in range(3, 15, 2): A(f"v_max3_f32 v9, v9, v{SA+i}, v{SA+i+1}")
    A(f"v_max_f32 v9, v9, v{SA+15}")
    def setup_pass(first):
        A("v_mov_b32 v10, v9\ns_nop 1\nv_permlane32_swap_b32 v9, v10\nv_max_f32 v9, v9, v10")
        if first:
            A.lds(f"ds_read_b128 {v(KF,4)}, v2 offset:{TS}", "k")
            for i in range(16): A(f"v_sub_f32 v{SA+i}, v{SA+i}, v9")
            for i in range(16): A(f"v_sub_f32 v{C+i}, 0, v9")
            A.wait(lg="all")
        else:
            A.lds(f"ds_read_b128 {v(V2,4)}, v8", "v2")
            A.lds(f"ds_read_b128 {v(V1,4)}, v7", "v1")
            for i in range(16): A(f"v_sub_f32 v{C+i}, 0, v9")
            for i in range(16): A(f"v_mov_b32 v{O+i}, 0")
            for i in range(4): A(f"v_mov_b32 v{P+4+i}, 0")
            A(f"{MF32} {v(SA,16)}, {v(KF,4)}, {v(Q,4)}, {v(C,16)}")
            A.lds(f"ds_read_b128 {v(KF,4)}, v2 offset:{TS}", "k")
            A.wait(lg="all")
            A("s_nop 9")
    setup_pass(True)
    A("s_nop 0")
    def tile(j, jo, hooks=None):
        hooks = hooks or {}
        Sa, Sb = (SA, SB) if j % 2 == 0 else (SB, SA)
        ex = lambda i: A(f"v_exp_f32 v{Sa+i}, v{Sa+i}")
        cv = lambda i: A(f"v_cvt_pk_bf16_f32 v{P+i}, v{Sa+2*i}, v{Sa+2*i+1}")
        A.wait(lg="v2")
        A(f"{MF32} {v(Sb,16)}, {v(KF,4)}, {v(Q,4)}, {v(C,16)}")
        A.lds(f"ds_read_b128 {v(KF,4)}, v14 offset:{(jo+2)*TS}", "k")
        for i in range(5): ex(i)
        A(f"{MF32} {v(O,16)}, {v(V2,4)}, {v(P+4,4)}, {v(O,16)}")
        A.lds(f"ds_read_b128 {v(V2,4)}, v16 offset:{jo*TS}", "v2")
        for f in hooks.get(0, []): f()
        for i in range(5, 8): ex(i)
        for i in range(4): cv(i)
        for i in range(8, 10): ex(i)
        A.wait(lg="v1")
        A(f"{MF32} {v(O,16)}, {v(V1,4)}, {v(P,4)}, {v(O,16)}")
        A.lds(f"ds_read_b128 {v(V1,4)}, v15 offset:{(jo+1)*TS}", "v1")
        for f in hooks.get(1, []): f()
        for i in range(10, 14): ex(i)
        for f in hooks.get(2, []): f()
        for i in range(14, 16): ex(i)
        for i in range(4, 8): cv(i)
    WB_, OB_, ACB, NOB = 128, 192, 240, 12
    def h_kv(i):
        def f():
            A(f"s_add_u32 m0, s{sSTG}, {i*8*TS}\ns_add_u32 s{t4}, s{sKV}, {i*8*2048}")
            A.vmem(f"buffer_load_dwordx4 v2, {WS}, s{t4} offen sc1 lds", f"kv{i}")
            A.vmem(f"buffer_load_dwordx4 v2, {WS}, s{t4} offen offset:1024 sc1 lds", f"kv{i}")
        return f
    def h_st():
        A(f"""
        s_cmp_lg_u32 s{sRT}, 0
        s_cbranch_scc1 Lnowt
        s_lshl_b32 s{t0}, s{sRT64}, 14
        s_lshl_b32 s{t1}, s{sCGQ}, 8
        s_add_u32 s{t0}, s{t0}, s{t1}
        s_lshl_b32 s{t1}, s{sHD}, 6
        s_add_u32 m0, s{sM1}, {L_WT}
        s_add_u32 s{t0}, s{t0}, s{t1}
        buffer_load_dwordx4 v26, s[{S_WA}:{S_WA+3}], s{t0} offen lds
        """)
        A.label("Lnowt")
        A.vmem(f"buffer_store_dwordx4 v[108:111], v2, {WS}, s{sWOB} offen sc1", "obst")
    def h_sent():
        A.vmem(f"buffer_store_dwordx4 v[120:123], v2, {WS}, s{sOA} offen sc1", "sent")
    def h_cnt():
        A.wait(vm="all")
        A("v_mov_b32 v0, 1\ns_mov_b64 exec, 1")
        A.lds("ds_add_rtn_u32 v0, v25, v0 offset:4", "cnt")
        A("s_mov_b64 exec, -1")
    def h_pub():
        A.wait(lg="cnt")
        A(f"""
        v_readfirstlane_b32 s{t0}, v0
        s_lshl_b32 s{t1}, s2, 2
        s_add_u32 s{t1}, s{t1}, {FOB}
        s_cmp_lg_u32 s{t0}, 7
        s_cbranch_scc1 Lnofob
        s_mov_b64 exec, 1
        buffer_store_dword v21, v20, {WS}, s{t1} offen sc1
        s_mov_b64 exec, -1
        """)
        A.label("Lnofob")
    def h_wt1():
        A.wait(vm="obst")
        A.lds("ds_read_b64_tr_b16 v[124:125], v27", "wt")
        A.lds("ds_read_b64_tr_b16 v[126:127], v27 offset:512", "wt")
    def h_wt2():
        A.wait(lg="wt")
        A(f"s_cmp_lg_u32 s{sRT}, 0\ns_cbranch_scc1 Lnowt2\nbuffer_store_dwordx4 v[124:127], v2, {WS}, s{sAK} offen sc1")
        A.label("Lnowt2")
    def h_poll():
        A.vmem(f"buffer_load_dwordx4 v[120:123], v2, {WS}, s{sKVL} offen sc1", "mp")
    def h_check():
        A(f"s_mov_b32 s{t5}, 0")
        A.wait(vm="mp")
        A.label("Lpollm")
        A(f"""
        v_xor_b32 v120, s{sN}, v120
        v_xor_b32 v121, s{sN}, v121
        v_xor_b32 v122, s{sN}, v122
        v_xor_b32 v123, s{sN}, v123
        v_or3_b32 v120, v120, v121, v122
        v_or_b32 v120, v120, v123
        v_cmp_ne_u32 vcc, 0, v120
        s_add_u32 s{t5}, s{t5}, 1
        s_cmp_gt_u32 s{t5}, {SPIN_MAX}
        s_cbranch_vccz Lpollm_ok
        s_cbranch_scc1 Lpollm_ok
        s_sleep 8
        buffer_load_dwordx4 v[120:123], v2, {WS}, s{sKVL} offen sc1
        s_waitcnt vmcnt(0)
        s_branch Lpollm
        """)
        A.label("Lpollm_ok")
    def ld(dst, sb, off, tag):
        def f():
            A(f"s_add_u32 s{t4}, s{sb}, {off}")
            A.vmem(f"buffer_load_dwordx4 {v(dst,4)}, v2, {WS}, s{t4} offen sc1", tag)
        return f
    def h_bmm(n):
        def f():
            A.wait(vm=[f"wb{n}", f"ob{n}"])
            A(f"{MF32} {v(ACB,16)}, {v(WB_+4*n,4)}, {v(OB_+4*(n%NOB),4)}, {v(ACB,16) if n else 0}")
        return f
    def h_tailprep():
        A(f"""
        s_lshl_b32 s{t0}, s{sRT64}, 1
        s_add_u32 s{t0}, s{t0}, s{sCH}           ; to
        s_lshl_b32 s{t3}, s{t0}, 16
        s_lshl_b32 s{t2}, s{sW}, 12
        s_add_u32 s{t3}, s{t3}, s{t2}
        s_add_u32 s{sKV}, s{t3}, {OF}
        v_add_u32 v26, s{t2}, v2
        s_lshl_b32 s{t3}, s{sRT}, 14
        v_add_u32 v18, s{t3}, v2
        s_lshl_b32 s{t3}, s{sHD}, 12
        s_add_u32 s{t3}, s{t3}, {L_RED}
        v_add_u32 v19, s{t3}, v2
        v_lshlrev_b32 v11, 10, v5
        v_lshl_add_u32 v11, v3, 4, v11
        s_lshl_b32 s{t0}, s{t0}, 15
        s_lshl_b32 s{t3}, s{sCGQ}, 8
        s_add_u32 s{t0}, s{t0}, s{t3}
        s_lshl_b32 s{t3}, s{sHD}, 6
        s_add_u32 s{t0}, s{t0}, s{t3}
        s_lshl_b32 s{t3}, s{sRT}, 5
        s_add_u32 s{sWOB}, s{t0}, s{t3}
        """)
    hooks = {j: {0: [], 1: [], 2: []} for j in range(64)}
    for i in range(2, 8): hooks[i - 2][0].append(h_kv(i))
    hooks[6][0].append(h_st)
    hooks[7][0].append(h_sent)
    hooks[14][0].append(h_wt1)
    hooks[15][0].append(h_wt2)
    hooks[18][1].append(h_cnt)
    hooks[19][1].append(h_pub)
    T0 = int(OPT.get("t0", 38))
    hooks[T0 - 4][0].append(h_poll)
    hooks[T0][0].append(h_check)
    for n in range(16):
        hooks[T0 + n][0].append(ld(WB_ + 4 * n, sWO, 32768 + n * 1024, f"wb{n}"))
        hooks[T0 + n][1].append(ld(OB_ + 4 * (n % NOB), sXO, n * 1024, f"ob{n}"))
        hooks[T0 + 8 + n][2].append(h_bmm(n))
        hooks[T0 + 9 + n][1].append(ld(WB_ + 4 * n, sWO, n * 1024, f"wa{n}"))
    hooks[26][0].append(h_tailprep)
    prios = {0: 3, 10: 2, 14: 3, 20: 2, 50: 1, 60: 0}
    base = 0
    for j in range(64):
        if j in prios: A(f"s_setprio {prios[j]}")
        if j - base == 24:
            A(f"v_add_u32 v14, {24*TS}, v14\nv_add_u32 v15, {24*TS}, v15\nv_add_u32 v16, {24*TS}, v16")
            base = j
        tile(j, j - base, hooks[j])
        if j == 13:
            A.wait(vm="kv7"); A("s_barrier")
    A.label("Lfinish")
    A.wait(lg="all")
    A("s_nop 0")
    A(f"{MF32} {v(O,16)}, {v(V2,4)}, {v(P+4,4)}, {v(O,16)}")
    A(f"""
    s_setprio 3
    s_mov_b32 s{t3}, 0x53800000
    s_mov_b32 s{t5}, 0
    s_nop 6
    s_cmp_lg_u32 s{sPASS}, 0
    s_cbranch_scc1 Lfin
    v_cmp_ngt_f32 vcc, s{t3}, v{O+8}
    s_nop 1
    {"" if OPT.get("nofb") else "s_cbranch_vccnz Lfallback"}
    """)
    A.label("Lfin")
    stamp(A)
    A(f"v_rcp_f32 v9, v{O+8}\ns_nop 0")
    for i in range(8): A(f"v_mul_f32 v{O+i}, v{O+i}, v9")
    for i in range(4): A(f"v_cvt_pk_bf16_f32 v{108+i}, v{O+2*i}, v{O+2*i+1}")
    for i in range(4): A(f"v_min_u32 v{108+i}, -2, v{108+i}")
    A(f"buffer_store_dwordx4 v[108:111], v2, {WS}, s{sOA} offen sc1")
    A("s_setprio 0")
    A.label("Lpoll3")
    for i in range(4):
        A(f"buffer_load_dwordx4 {v(32+4*i,4)}, v2, {WS}, s{sKV} offen offset:{i*1024} sc1")
    A(f"s_add_u32 s{t5}, s{t5}, 1")
    A("s_waitcnt vmcnt(0)")
    A("v_max3_u32 v9, v32, v33, v34")
    for i in range(35, 47, 2): A(f"v_max3_u32 v9, v9, v{i}, v{i+1}")
    A(f"""
    v_max_u32 v9, v9, v47
    v_cmp_eq_u32 vcc, -1, v9
    s_cmp_gt_u32 s{t5}, {SPIN_MAX}
    s_cbranch_scc1 Lpoll3_ok
    s_cbranch_vccz Lpoll3_ok
    s_sleep {OPT.get("slp", 2)}
    s_branch Lpoll3
    """)
    A.label("Lpoll3_ok")
    stamp(A)
    A("s_barrier")
    stamp(A)
    for i in range(4):
        A(f"ds_write_b128 v26, {v(32+4*i,4)} offset:{i*1024}")
    A("s_waitcnt lgkmcnt(0)\ns_barrier")
    stamp(A)
    ACA = 48
    A.lg = []
    for n in range(8):
        A.lds(f"ds_read_b128 {v(64+4*n,4)}, v18 offset:{n*1024}", f"o{n}")
    for n in range(16):
        A.wait(lg=f"o{n}")
        A(f"{MF32} {v(ACA,16)}, {v(WB_+4*n,4)}, {v(64+4*(n%8),4)}, {v(ACA,16) if n else 0}")
        if n + 8 < 16:
            A.lds(f"ds_read_b128 {v(64+4*n,4)}, v18 offset:{(n+8)*1024}", f"o{n+8}")
    A("s_nop 9")
    A(f"s_cmp_lg_u32 s{sRT}, 0\ns_cbranch_scc1 Lred1")
    for kh in range(2):
        snd, keep = (8, 0) if kh == 0 else (0, 8)
        if kh: A.label("Lred1")
        for i in range(8): A(f"v_fmac_f32 v{ACB+snd+i}, v22, v{ACA+snd+i}")
        A(f"ds_write_b128 v19, {v(ACB+snd,4)} offset:{snd*256}\nds_write_b128 v19, {v(ACB+snd+4,4)} offset:{snd*256+1024}")
        for i in range(8): A(f"v_fmac_f32 v{ACB+keep+i}, v22, v{ACA+keep+i}")
        A("s_waitcnt lgkmcnt(0)\ns_barrier")
        A(f"ds_read_b128 v[64:67], v19 offset:{keep*256}\nds_read_b128 v[68:71], v19 offset:{keep*256+1024}")
        A("s_waitcnt lgkmcnt(0)")
        for i in range(8): A(f"v_add_f32 v{64+i}, v{64+i}, v{ACB+keep+i}")
        if kh == 0: A("s_branch Lred2")
    A.label("Lred2")
    for i in range(4): A(f"v_cvt_pk_bf16_f32 v{72+i}, v{64+2*i}, v{65+2*i}")
    A("s_nop 1\nv_permlane32_swap_b32 v72, v74\nv_permlane32_swap_b32 v73, v75")
    A(f"buffer_store_dwordx4 v[72:75], v11, s[{S_T}:{S_T+3}], s{sWOB} offen")
    if INSTR:
        stamp(A)
        A("s_waitcnt vmcnt(0)")
        stamp(A)
        A("s_memrealtime s[100:101]\ns_waitcnt lgkmcnt(0)\ns_mov_b64 exec, 1")
        A(f"s_lshl_b32 s56, s2, 3\ns_add_u32 s56, s56, s{sW}\ns_lshl_b32 s56, s56, 6\ns_add_u32 s56, s56, {32<<20}")
        A("v_mov_b32 v0, 0")
        for i in range(NST[0]):
            A(f"v_mov_b32 v1, s{68+2*i}\nbuffer_store_dword v1, v0, {WS}, s56 offen offset:{4*i}")
        A(f"v_mov_b32 v1, s{t5}\nbuffer_store_dword v1, v0, {WS}, s56 offen offset:52")
        A(f"v_mov_b32 v1, s100\nbuffer_store_dword v1, v0, {WS}, s56 offen offset:60")
        A(f"v_mov_b32 v1, s98\nbuffer_store_dword v1, v0, {WS}, s56 offen offset:56")
    A.label("Lend")
    A("s_endpgm")
    A.label("Lfallback")
    A.lg = []; A.vm = []
    A(f"s_setprio 0\ns_mov_b32 s{sPASS}, 1\nv_mov_b32 v14, v2\ns_mov_b32 s{sIT}, 0\nv_mov_b32 v9, 0xff800000")
    A.label("Lmaxloop")
    A(f"ds_read_b128 {v(KF,4)}, v14\nv_add_u32 v14, {TS}, v14\ns_waitcnt lgkmcnt(0)")
    A(f"{MF32} {v(SA,16)}, {v(KF,4)}, {v(Q,4)}, 0")
    A("s_nop 11")
    for i in range(0, 16, 2): A(f"v_max3_f32 v9, v9, v{SA+i}, v{SA+i+1}")
    A(f"s_add_u32 s{sIT}, s{sIT}, 1\ns_cmp_lt_u32 s{sIT}, 64\ns_cbranch_scc1 Lmaxloop")
    A(f"ds_read_b128 {v(KF,4)}, v2\ns_waitcnt lgkmcnt(0)")
    setup_pass(False)
    A("v_mov_b32 v14, v2\nv_mov_b32 v15, v7\nv_mov_b32 v16, v8")
    A(f"s_mov_b32 s{sIT}, 0")
    A.label("Lloop2")
    A.lg = ["k", "v2", "v1"]
    for j in range(2): tile(j, j)
    A(f"v_add_u32 v14, {2*TS}, v14\nv_add_u32 v15, {2*TS}, v15\nv_add_u32 v16, {2*TS}, v16")
    A(f"s_add_u32 s{sIT}, s{sIT}, 1\ns_cmp_lt_u32 s{sIT}, 32\ns_cbranch_scc1 Lloop2")
    A("s_branch Lfinish")
    A.label("Lcode_end")
    return A.text()

def main():
    ref = open(f"cdna_kernels/{NAME}.s.ref").read().split("\n")
    head = [l for l in ref if l.startswith(";") and "@launch" not in l]
    head += ["; @launch grid=(256,1,1) block=(512,1,1) lds=163840"]
    out = "\n".join(head) + '\n.amdgcn_target "amdgcn-amd-amdhsa--gfx950"\n.text\n'
    t = kernel()
    for e in check(t): print("HAZARD", e)
    out += t + f""".section .rodata,"a"
.p2align 6
.amdhsa_kernel {KNAME}
  .amdhsa_next_free_vgpr 256
  .amdhsa_next_free_sgpr 102
  .amdhsa_accum_offset 256
  .amdhsa_group_segment_fixed_size 0
  .amdhsa_kernarg_size 80
  .amdhsa_user_sgpr_count 2
  .amdhsa_user_sgpr_kernarg_segment_ptr 1
  .amdhsa_system_sgpr_workgroup_id_x 1
.end_amdhsa_kernel
"""
    path = sys.argv[1] if len(sys.argv) > 1 else f"cdna_kernels/{NAME}.s"
    open(path, "w").write(out)
    r = subprocess.run(["clang", "-x", "assembler", "-target", "amdgcn-amd-amdhsa", "-mcpu=gfx950", "-c", path, "-o", "chk.o"], capture_output=True, text=True)
    if r.returncode: print("ASM ERROR", r.stderr[:1500])
    print("wrote", path, len(out), "stamps", NST[0])
main()
```

```python
import sys, os, subprocess
from asmlib import Asm, v, s, check

NAME = "gated_mix__mha_block__sliding_local_dilated__prompt"
KNAME = NAME + "_kernel"
OPT = dict(x.split("=") for x in os.environ.get("OPT", "").split(",") if x)
INSTR = os.environ.get("INSTR")
QF, KVF, OF, FL, WOF = 0, 2 << 20, 6 << 20, 10 << 20, 11 << 20
FA, FOB = FL, FL + 2048
WS_BYTES = 268435456
CSCALE = 0x3EB8AA3B
LOG2E = 0x3FB8AA3B
NEGBIG = 0xF149F2CA
ONES = 0x3f803f80
TS = 2080
U = 8192
L_H, L_G, L_GP = 17 * U, 155648, 156672
L_EX = 163840 - 256 - 12 * TS
L_GV = 163840 - 256
L_WT = 139264
L_RED = 65536
SPIN_MAX = 1 << 18

class G(Asm):
    def __init__(self):
        super().__init__()
        self.vm, self.lg = [], []
    def vmem(self, text, tag=None):
        self(text); self.vm.append(tag)
    def lds(self, text, tag=None):
        self(text); self.lg.append(tag)
    def _n(self, q, tags):
        if isinstance(tags, str): tags = [tags]
        idx = [i for i, t in enumerate(q) if t in tags]
        if not idx: return None
        return len(q) - 1 - idx[-1]
    def wait(self, vm=None, lg=None):
        parts = []
        if vm is not None:
            n = 0 if vm == "all" else self._n(self.vm, vm)
            if n is not None:
                assert n <= 63
                parts.append(f"vmcnt({n})"); self.vm = self.vm[len(self.vm) - n:] if n else []
        if lg is not None:
            n = 0 if lg == "all" else self._n(self.lg, lg)
            if n is not None:
                n = min(n, 15)
                parts.append(f"lgkmcnt({n})"); self.lg = self.lg[len(self.lg) - n:] if n else []
        if parts: self("s_waitcnt " + " ".join(parts))

def srd(A, d, base, nbytes):
    A(f"s_mov_b32 s{d}, s{base}\ns_mov_b32 s{d+1}, s{base+1}\ns_mov_b32 s{d+2}, {nbytes}\ns_mov_b32 s{d+3}, 0x20000")

NST = [0]
def stamp(A, mode="1", idx=None):
    if INSTR and (INSTR == mode or NST[0] == 0):
        i = NST[0] if idx is None else idx
        NST[0] = max(NST[0], i + 1)
        assert i < 13
        if i == 0: A("s_memrealtime s[98:99]")
        A(f"{'s_memrealtime' if os.environ.get('RT') else 's_memtime'} s[{68+2*i}:{69+2*i}]"); A.wait(lg="all")

S_X, S_WA, S_WB, S_WS, S_DBG, S_T = 16, 20, 24, 28, 32, 36
sW, sRT64, sCG, sCH, sCGQ, sH, sT, sRT, sHD, sN = 40, 41, 42, 43, 44, 45, 46, 47, 48, 49
sXO, sWO, sM1, sRDY, sPASS, sIT = 50, 51, 52, 53, 54, 55
t0, t1, t2, t3, t4, t5 = 56, 57, 58, 59, 60, 61
sKV, sKVL, sWOB, sSTG = 62, 63, 64, 65
sEXP, sOA, sQA = 3, 14, 15
sROT, sWC = sPASS, sIT
sD1, sD2, sAK, sAQ = 4, 5, 6, 7
MF16 = "v_mfma_f32_16x16x32_bf16"
MF32 = "v_mfma_f32_32x32x16_bf16"
SMF = "v_smfmac_f32_32x32x32_bf16"
IDX = 13
WS = f"s[{S_WS}:{S_WS+3}]"

def lanemask(fn):
    m = 0
    for l in range(64):
        if fn(l): m |= 1 << l
    return m

def kernel():
    A = G()
    A(f".globl {KNAME}\n.p2align 8\n.type {KNAME},@function")
    A.label(KNAME)
    A("s_cmp_ge_u32 s2, 256\ns_cbranch_scc1 Lend")
    stamp(A)
    A("""
    s_load_dwordx4 s[4:7], s[0:1], 0
    s_load_dwordx2 s[14:15], s[0:1], 48
    s_load_dwordx2 s[96:97], s[0:1], 72
    s_load_dwordx2 s[8:9], s[0:1], 16
    s_load_dwordx2 s[10:11], s[0:1], 32
    s_load_dwordx2 s[12:13], s[0:1], 40
    s_load_dwordx2 s[66:67], s[0:1], 56
    s_load_dwordx2 s[100:101], s[0:1], 64
    v_lshrrev_b32 v1, 6, v0
    s_and_b32 s56, s2, 7
    v_readfirstlane_b32 s40, v1
    v_and_b32 v1, 63, v0
    s_lshr_b32 s57, s2, 3
    """)
    A(f"""
    s_and_b32 s{sRT64}, s{t0}, 3
    s_lshl_b32 s{sRT64}, s{sRT64}, 3
    s_and_b32 s{t2}, s{t1}, 7
    s_add_u32 s{sRT64}, s{sRT64}, s{t2}
    s_lshr_b32 s{sCH}, s{t0}, 2
    s_lshr_b32 s{sCGQ}, s{t1}, 3
    s_lshl_b32 s{sCG}, s{sCH}, 2
    s_add_u32 s{sCG}, s{sCG}, s{sCGQ}
    s_lshl_b32 s{sH}, s{t0}, 2
    s_add_u32 s{sH}, s{sH}, s{sCGQ}
    s_lshl_b32 s{sT}, s{t2}, 3
    s_add_u32 s{sT}, s{sT}, s{sW}
    s_lshr_b32 s{sRT}, s{sW}, 2
    s_and_b32 s{sHD}, s{sW}, 3
    s_lshl_b32 s{sXO}, s{sRT64}, 16
    s_lshl_b32 s{t2}, s{sW}, 13
    s_add_u32 s{sXO}, s{sXO}, s{t2}
    s_mul_i32 s{sWO}, s{sW}, 8*3072
    s_lshl_b32 s{t2}, s{sCG}, 7
    s_add_u32 s{sWO}, s{sWO}, s{t2}
    s_lshl_b32 s{sM1}, s{sW}, 10
    s_and_b32 s{t3}, s{sW}, 1
    """)
    RM = OPT.get("rot", "2")
    if RM == "4": A(f"s_and_b32 s{sROT}, s{t1}, 3\ns_lshl_b32 s{sROT}, s{sROT}, 1\ns_add_u32 s{sROT}, s{sROT}, s{t0}")
    if RM == "0": A(f"s_mov_b32 s{sROT}, 0")
    if RM == "2": A(f"s_and_b32 s{sROT}, s{t1}, 1\ns_lshl_b32 s{sROT}, s{sROT}, 2\ns_add_u32 s{sROT}, s{sROT}, s{t0}")
    A(f"""
    v_lshlrev_b32 v2, 4, v1
    v_lshrrev_b32 v9, 3, v1
    v_and_b32 v10, 7, v1
    v_lshrrev_b32 v15, 4, v1                 ; g
    v_xor_b32 v12, v10, v15
    v_lshlrev_b32 v12, 4, v12
    v_lshl_add_u32 v4, v9, 10, v12
    v_xor_b32 v5, 64, v4
    s_lshl_b32 s{t2}, s{t3}, 6
    v_xor_b32 v3, s{t2}, v4
    v_and_b32 v12, 1, v15
    v_lshlrev_b32 v12, 5, v12
    v_xor_b32 v12, s{t2}, v12
    v_lshlrev_b32 v13, 4, v10
    v_xor_b32 v12, v12, v13
    v_mul_u32_u24 v6, 3072, v9
    v_add_u32 v6, v6, v12
    s_waitcnt lgkmcnt(0)
    """)
    srd(A, S_X, 4, 2048 * 1024)
    srd(A, S_WA, 6, 512 * 3072)
    def code_pf():
        if OPT.get("nocpf"): return
        A(f"""
        s_getpc_b64 s[{t0}:{t0+1}]
        """)
        A.label("Lpc")
        A(f"""
        s_lshr_b32 s{t2}, s2, 3
        s_cmp_gt_u32 s{t2}, {int(OPT.get("cpfj", 0))}
        s_cbranch_scc1 Lnocpf
        s_lshl_b32 s{t2}, s{sW}, 13
        v_lshl_add_u32 v18, v1, 7, s{t2}
        v_min_u32 v18, Lcode_end-Lpc-4, v18
        global_load_dword v31, v18, s[{t0}:{t0+1}]
        """)
        A.label("Lnocpf")
    A(f"s_lshl_b32 s{sD2}, s{sCH}, 10\ns_sub_u32 s{sD1}, 1536, s{sD2}\ns_add_u32 s{sD2}, s{sD1}, 1024")

    unit_of = {}
    free_units = list(range(4, 17))
    xfree = {0, 1, 2, 3}
    pending = []
    for S in range(16):
        if S < 8: pending.append(("x", S, 0))
        if S == 8: pending.append(("h", 8, 0))
        for seg in range(3): pending.append(("w", S, seg))
    def dma_item(it):
        kind, S, seg = it
        if kind == "x":
            xfree.remove(S % 4)
            A(f"""
            s_add_u32 s{t4}, s{sROT}, {S}
            s_and_b32 s{t4}, s{t4}, 7
            s_lshl_b32 s{t4}, s{t4}, 7
            s_add_u32 m0, s{sM1}, {(S%4)*U}
            s_add_u32 s{t4}, s{t4}, s{sXO}
            """)
            A.vmem(f"buffer_load_dwordx4 v3, s[{S_X}:{S_X+3}], s{t4} offen lds", f"st{S}")
        elif kind == "w":
            u = min(free_units)
            free_units.remove(u); unit_of[(S, seg)] = u
            sr = S_WA if S < 8 else S_WB
            if seg == 0:
                A(f"""
                s_add_u32 s{sWC}, s{sROT}, {S%8}
                s_and_b32 s{sWC}, s{sWC}, 7
                s_mul_i32 s{sWC}, s{sWC}, 196608
                s_add_u32 m0, s{sM1}, {u*U}
                s_add_u32 s{sWC}, s{sWC}, s{sWO}
                """)
                A.vmem(f"buffer_load_dwordx4 v6, s[{sr}:{sr+3}], s{sWC} offen lds", f"st{S}")
            else:
                A(f"s_add_u32 m0, s{sM1}, {u*U}\ns_add_u32 s{t4}, s{sWC}, {seg*1024 if S >= 8 else 's%d' % [0, sD1, sD2][seg]}")
                A.vmem(f"buffer_load_dwordx4 v6, s[{sr}:{sr+3}], s{t4} offen lds", f"st{S}")
        else:
            A(f"""
            s_lshl_b32 s{t0}, s{sRT64}, 16
            s_sub_u32 s{t1}, s{t0}, 16384
            s_cmp_eq_u32 s{sRT64}, 0
            s_cselect_b32 s{t0}, s{t0}, s{t1}
            s_add_u32 s{t1}, s{sW}, s{sROT}
            s_and_b32 s{t1}, s{t1}, 7
            s_lshl_b32 s{t3}, s{t1}, 7
            s_add_u32 s{t0}, s{t0}, s{t3}
            s_lshl_b32 s{t1}, s{sM1}, 1
            s_add_u32 m0, s{t1}, {L_H}
            s_add_u32 s{t2}, s{t0}, 8192
            """)
            A.vmem(f"buffer_load_dwordx4 v4, s[{S_X}:{S_X+3}], s{t0} offen lds", "hl")
            A(f"s_add_u32 m0, s{t1}, {L_H+1024}\ns_lshl_b32 s{t1}, s{sW}, 7")
            A.vmem(f"buffer_load_dwordx4 v5, s[{S_X}:{S_X+3}], s{t2} offen lds", "hl")
            A(f"s_add_u32 m0, s{t1}, {L_G}\ns_mov_b64 exec, 0xff")
            A.vmem(f"buffer_load_dwordx4 v2, s[{S_T}:{S_T+3}], s{t3} offen lds", "hl")
            A("s_mov_b64 exec, -1")
    state = {"minh": False}
    def next_dma():
        for i, it in enumerate(pending):
            if it[0] == "w" and not free_units: continue
            if it[0] == "x" and it[1] % 4 not in xfree: continue
            if it[0] == "h" and not state["minh"]: continue
            pending.pop(i); dma_item(it); return True
        return False
    if OPT.get("cpf1"): code_pf()
    for _ in range(4): next_dma()
    if not OPT.get("cpf1"): code_pf()
    srd(A, S_WS, 96, WS_BYTES)
    A(f"s_lshl_b32 s{t2}, s2, 3\ns_add_u32 s{t2}, s{t2}, s{sW}\ns_cmp_lg_u32 s{t2}, 7\ns_cbranch_scc1 Lnoscan1")
    A(f"s_mov_b32 s{t4}, {FL}")
    for i in range(3):
        A(f"buffer_load_dwordx4 {v(240+4*i,4)}, v2, {WS}, s{t4} offen offset:{i*1024} sc1")
    A.label("Lnoscan1")
    nscan = len(A.vm)
    A("s_barrier")
    for _ in range(4): next_dma()
    srd(A, S_T, 14, 1024)
    srd(A, S_WB, 10, 512 * 3072)
    srd(A, S_DBG, 100, 256)
    A(f"""
    v_and_b32 v14, 15, v1
    v_lshrrev_b32 v16, 1, v14
    v_xor_b32 v16, v16, v15
    v_lshlrev_b32 v16, 4, v16
    v_lshl_add_u32 v16, v14, 7, v16
    s_lshl_b32 s{t2}, s{sRT}, 12
    v_add_u32 v7, s{t2}, v16
    v_xor_b32 v8, 64, v7
    v_add_u32 v9, {L_H}, v16
    v_xor_b32 v10, 64, v9
    v_lshlrev_b32 v11, 4, v15
    s_lshl_b32 s{t2}, s{sHD}, 8
    s_add_u32 s{t2}, s{t2}, {L_G}
    v_add_u32 v11, s{t2}, v11
    v_bfe_u32 v18, v1, 2, 2                  ; r
    v_lshl_add_u32 v12, v15, 3, v18
    v_lshlrev_b32 v12, 7, v12
    v_bfe_u32 v18, v1, 3, 2
    v_xor_b32 v18, s{sHD}, v18
    v_lshl_add_u32 v12, v18, 5, v12
    v_and_b32 v18, 3, v1
    v_lshl_add_u32 v12, v18, 3, v12
    v_add_u32 v13, 65536, v12
    v_add_u32 v0, 131072, v12
    v_mov_b32 v20, 0
    v_and_b32 v24, 31, v1
    v_lshlrev_b32 v24, 2, v24
    """)
    NPRE = int(OPT.get("npre", 3))
    if NPRE >= 3:
        A("s_barrier")
        for _ in range(4): next_dma()
    A(f"""
    s_lshl_b32 s{t0}, s{sH}, 6
    s_add_u32 s{t1}, s{t0}, s{sT}
    s_lshl_b32 s{sQA}, s{t1}, 10
    s_add_u32 s{t0}, s{t0}, s{sW}
    s_lshl_b32 s{t0}, s{t0}, 11
    s_add_u32 s{sKV}, s{t0}, {KVF}
    s_mul_i32 s{sSTG}, s{sW}, {TS}
    s_mov_b32 s{sRDY}, 0
    s_lshl_b32 s{t0}, s{sT}, 6
    s_add_u32 s{t0}, s{t0}, s{sH}
    s_lshl_b32 s{t0}, s{t0}, 10
    s_add_u32 s{sOA}, s{t0}, {OF}
    s_lshl_b32 s{t2}, s{sRT64}, 1
    s_add_u32 s{t2}, s{t2}, s{sRT}
    s_lshl_b32 s{t1}, s{sCG}, 2
    s_add_u32 s{t1}, s{t1}, s{sHD}
    s_lshl_b32 s{t0}, s{t2}, 6
    s_add_u32 s{t0}, s{t0}, s{t1}
    s_lshl_b32 s{t0}, s{t0}, 10
    s_add_u32 s{sWOB}, s{t0}, {OF + 32768}
    s_lshl_b32 s{t0}, s{t1}, 6
    s_add_u32 s{t0}, s{t0}, s{t2}
    s_lshl_b32 s{sAQ}, s{t0}, 10
    s_xor_b32 s{t0}, s{t0}, 1024
    s_lshl_b32 s{t0}, s{t0}, 11
    s_add_u32 s{sAK}, s{t0}, {KVF}
    s_and_b32 s{sKVL}, s2, 3
    s_lshl_b32 s{sKVL}, s{sKVL}, 8
    s_add_u32 s{sKVL}, s{sKVL}, {FA}
    s_mul_i32 s{t0}, s{sHD}, {3*TS}
    s_mul_i32 s{t1}, s{sRT}, {TS}
    s_add_u32 s{t0}, s{t0}, s{t1}
    s_add_u32 s{sEXP}, s{t0}, {L_EX}
    """)
    A(f"""
    v_lshrrev_b32 v18, 5, v1
    v_lshlrev_b32 v16, 9, v18
    v_lshl_add_u32 v16, v14, 4, v16
    v_add_u32 v16, 1024, v16
    v_add_u32 v17, 256, v16
    v_mov_b32 v19, 2064
    v_mov_b32 v18, 2048
    s_mov_b32 vcc_lo, 0x00110000
    s_mov_b32 vcc_hi, 0x00110000
    v_cndmask_b32 v19, v19, v18, vcc
    s_mov_b32 vcc_lo, 0x0000ffff
    s_mov_b32 vcc_hi, 0x0000ffff
    v_cndmask_b32 v16, v19, v16, vcc
    v_cndmask_b32 v17, v19, v17, vcc
    v_lshrrev_b32 v18, 1, v1
    v_and_b32 v19, 1, v1
    v_mul_u32_u24 v26, {8*TS}, v18
    v_lshl_add_u32 v26, v19, 4, v26
    v_add_u32 v26, s{sSTG}, v26
    v_mul_u32_u24 v27, {TS}, v18
    v_lshl_add_u32 v27, v19, 4, v27
    v_add_u32 v27, {L_EX+2048}, v27
    v_mov_b32 v25, {L_GV}
    """)
    A(f"""
    v_lshrrev_b32 v19, 1, v15
    v_and_b32 v18, 1, v15
    v_lshlrev_b32 v28, 9, v19
    v_lshl_add_u32 v28, v18, 3, v28
    s_mul_i32 s{t2}, s{sRT}, {TS - 1024}
    s_sub_u32 s{t2}, s{sEXP}, s{t2}
    s_add_u32 s{t2}, s{t2}, 256
    v_lshl_add_u32 v28, v14, 4, v28
    v_add_u32 v28, s{t2}, v28
    s_lshl_b32 s{t2}, s{sRT}, 9
    s_add_u32 s{t2}, s{t2}, {L_GP}
    s_lshl_b32 s{t3}, s{sHD}, 2
    s_add_u32 s{t3}, s{t3}, s{t2}
    v_lshl_add_u32 v29, v24, 2, s{t3}
    s_lshl_b32 s{t3}, s{sCH}, 9
    s_add_u32 s{t3}, s{t3}, {L_GP}
    v_mov_b32 v18, s{t2}
    v_mov_b32 v19, s{t3}
    s_mov_b32 vcc_lo, -1
    s_mov_b32 vcc_hi, 0
    v_cndmask_b32 v18, v19, v18, vcc
    v_lshl_add_u32 v30, v24, 2, v18
    """)
    A("v_mov_b32 v21, 0")
    A.lds("ds_write_b64 v25, v[20:21]")
    AC = 32
    SA, SB = 64, 80
    key = lambda i, hh: 8 * (i // 4) + 4 * hh + i % 4
    okd = lambda d: 0 <= d <= 14 and d % 2 == 0
    A(f"""
    v_mov_b32 v18, {hex(NEGBIG)}
    s_or_b32 s{t2}, s{sRT64}, s{sRT}
    s_cmp_eq_u32 s{t2}, 0
    s_cselect_b32 s{t2}, {hex(NEGBIG)}, 0
    v_mov_b32 v19, s{t2}
    """)
    for i in range(16):
        m = lanemask(lambda l: okd((l & 31) - key(i, l >> 5)))
        A(f"s_mov_b32 vcc_lo, {hex(m & 0xffffffff)}\ns_mov_b32 vcc_hi, {hex(m >> 32)}\nv_cndmask_b32 v{SA+i}, v18, v20, vcc")
    for i in range(8, 16):
        m = lanemask(lambda l: okd((l & 31) + 32 - key(i, l >> 5)))
        A(f"s_mov_b32 vcc_lo, {hex(m & 0xffffffff)}\ns_mov_b32 vcc_hi, {hex(m >> 32)}\nv_cndmask_b32 v{SB+i}, v18, v19, vcc")
    A(f"s_lshl_b32 s{t2}, s2, 3\ns_add_u32 s{t2}, s{t2}, s{sW}\ns_cmp_lg_u32 s{t2}, 7\ns_cbranch_scc1 Lnoscan2")
    A(f"s_waitcnt vmcnt({len(A.vm) - nscan})\ns_mov_b32 s{t4}, 0")
    A.label("Lscan")
    A(f"s_add_u32 s{t4}, s{t4}, 1\ns_mov_b64 exec, -1")
    for i in range(12):
        A(f"v_cmpx_ne_u32 vcc, s{t4}, v{240+i}")
    A("s_nop 1\ns_cmp_eq_u64 exec, -1\ns_cbranch_scc0 Lscan")
    A(f"v_mov_b32 v21, s{t4}\ns_mov_b64 exec, 1")
    A(f"buffer_store_dword v21, v20, s[{S_DBG}:{S_DBG+3}], 0 offen sc1")
    A("s_mov_b64 exec, -1")
    A.label("Lnoscan2")
    if NPRE >= 4:
        for _ in range(4): next_dma()

    FB = [96, 112]
    XF = lambda S, u, sub: 128 + 8 * (2 * (S % 8) + u) + 4 * sub
    def reads(S, u):
        if OPT.get("nord"): return []
        b = FB[u]; kc = S % 8
        tg = f"r{S}_{u}"
        L = []
        rd = lambda text, tag: L.append(lambda: A.lds(text, tag))
        def wr(seg):
            un = unit_of.get((S, seg), 8)
            wb, so = [12, 13, 0][un // 8], (un % 8) * U
            for t in range(2):
                rd(f"ds_read_b64_tr_b16 {v(b+4*seg+2*t,2)}, v{wb} offset:{so + u*4096 + t*512}", f"{tg}w{seg}")
        if S < 8:
            rd(f"ds_read_b128 {v(XF(S,u,0),4)}, v{7+u} offset:{(kc%4)*U}", tg + "x0")
            wr(0)
            rd(f"ds_read_b128 {v(XF(S,u,1),4)}, v{7+u} offset:{(kc%4)*U+2048}", tg + "x1")
            wr(1); wr(2)
        else:
            wr(0); wr(1); wr(2)
            rd(f"ds_read_b128 {v(b+12,4)}, v{9+u} offset:{kc*2048}", tg + "e")
        return L
    def mms(S, u, rt):
        b = FB[u]; ac = AC
        tg = f"r{S}_{u}"
        L = []
        def mm(d, a_, b_, tags):
            def f():
                A.wait(lg=[tg + t for t in tags])
                if not OPT.get("nomm"): A(f"{MF16} {v(d,4)}, {v(a_,4)}, {v(b_,4)}, {0 if (S % 8 == 0 and u == 0) else v(d,4)}")
            L.append(f)
        for sub in range(2): mm(ac + 4 * sub, b, XF(S, u, sub), ["w0", f"x{sub}"])
        for sub in range(2): mm(ac + 8 + 4 * sub, b + 4, XF(S, u, sub), ["w1", f"x{sub}"])
        for sub in range(2): mm(ac + 16 + 4 * sub, XF(S, u, sub), b + 8, ["w2", f"x{sub}"])
        if S < 8: pass
        elif rt == 0: mm(ac + 24, b + 4, b + 12, ["e"])
        else: mm(ac + 24, b + 12, b + 8, ["e"])
        if S % 8 == 7 and u == 1: L = L[2:] + L[0:2]
        return L

    def scale_q(ac, dq):
        A(f"s_mov_b32 s{t5}, {hex(CSCALE)}")
        for i in range(4):
            A(f"""
            v_cvt_pk_bf16_f32 v18, v{ac+2*i}, v{ac+2*i+1}
            v_and_b32 v19, 0xffff0000, v18
            v_lshlrev_b32 v18, 16, v18
            v_mul_f32 v18, s{t5}, v18
            v_mul_f32 v19, s{t5}, v19
            v_cvt_pk_bf16_f32 v{dq+i}, v18, v19
            """)
    GFR = [40, 44, 48, 52]
    GAC = [60, 84]
    def a_epilogue():
        A("s_nop 3")
        for i in range(4): A(f"v_cvt_pk_bf16_f32 v{80+i}, v{40+2*i}, v{41+2*i}")
        for i in range(4): A(f"v_cvt_pk_bf16_f32 v{56+i}, v{48+2*i}, v{49+2*i}")
        A("v_permlane16_swap_b32 v80, v82\nv_permlane16_swap_b32 v81, v83")
        A.vmem(f"buffer_store_dwordx4 v[80:83], v2, {WS}, s{sAK} offen sc1", "ast")
        A("v_permlane16_swap_b32 v56, v58\nv_permlane16_swap_b32 v57, v59")
        A.vmem(f"buffer_store_dwordx4 v[56:59], v2, {WS}, s{sAK} offen offset:1024 sc1", "ast")
        scale_q(32, 84)
        A("s_nop 1\nv_permlane16_swap_b32 v84, v86\nv_permlane16_swap_b32 v85, v87")
        A.vmem(f"buffer_store_dwordx4 v[84:87], v2, {WS}, s{sAQ} offen sc1", "ast")
        A.vmem(f"buffer_load_dword v21, v20, s[{S_DBG}:{S_DBG+3}], 0 offen sc1", "nonce")
    def gate_reads():
        for k in range(4):
            A.lds(f"ds_read_b128 {v(GFR[k],4)}, v11 offset:{k*64}", "gf")
    def gate_mm():
        A.wait(lg="gf")
        for hd in range(4):
            if hd < 3:
                A(f"s_cmp_lg_u32 s{sHD}, {hd}\ns_cbranch_scc1 Lg{hd}")
            for k in range(4):
                for sub in range(2):
                    A(f"{MF16} {v(GAC[sub],4)}, {v(GFR[k],4)}, {v(XF(2*hd + k//2, k%2, sub),4)}, {v(GAC[sub],4) if k else 0}")
            if hd < 3:
                A(f"s_branch Lgd")
                A.label(f"Lg{hd}")
        A.label(f"Lgd")
    def gate_part():
        A(f"""
        s_mov_b32 vcc_lo, 0x0000ffff
        s_mov_b32 vcc_hi, 0x0000ffff
        v_cndmask_b32 v18, v{GAC[1]}, v{GAC[0]}, vcc
        """)
        A.lds("ds_write_b32 v29, v18", "gp")
    def gate_fin():
        A.lds("ds_read_b128 v[84:87], v30", "gq")
        A(f"""
        v_mov_b32 v80, {hex(ONES)}
        s_mov_b32 vcc_lo, 0x55555555
        s_mov_b32 vcc_hi, 0x55555555
        v_cndmask_b32 v80, 0, v80, vcc
        v_mov_b32 v81, v80
        v_mov_b32 v82, v80
        v_mov_b32 v83, v80
        v_lshrrev_b32 v3, 5, v1
        v_and_b32 v5, 31, v1
        v_add_u32 v11, s{sEXP}, v2
        v_add_u32 v7, s{sEXP}, v16
        v_add_u32 v8, s{sEXP}, v17
        v_lshl_add_u32 v4, v3, 10, v24
        """)
        A.wait(lg="gq")
        A(f"""
        v_add_f32 v84, v84, v85
        v_add_f32 v86, v86, v87
        v_add_f32 v18, v84, v86
        v_cvt_pk_bf16_f32 v18, v18, v18
        v_lshlrev_b32 v18, 16, v18
        v_mul_f32 v18, {hex(LOG2E ^ 0x80000000)}, v18
        v_exp_f32 v18, v18
        s_nop 0
        v_add_f32 v18, 1.0, v18
        v_rcp_f32 v18, v18
        s_nop 0
        v_cvt_pk_bf16_f32 v18, v18, v18
        v_lshlrev_b32 v23, 16, v18
        v_lshlrev_b32 v22, 16, v18
        s_nop 1
        v_permlane32_swap_b32 v23, v22
        v_sub_f32 v18, 1.0, v23
        v_cvt_pk_bf16_f32 v18, v18, v18
        v_lshlrev_b32 v23, 16, v18               ; 1-g
        """)

    def get_nonce(lbl):
        A(f"s_mov_b32 s{t5}, 0")
        A.label(lbl)
        A(f"""
        v_readfirstlane_b32 s{sN}, v21
        s_add_u32 s{t5}, s{t5}, 1
        s_cmp_lg_u32 s{sN}, 0
        s_cbranch_scc1 {lbl}_ok
        s_cmp_gt_u32 s{t5}, {SPIN_MAX}
        s_cbranch_scc1 {lbl}_ok
        s_sleep 2
        buffer_load_dword v21, v20, s[{S_DBG}:{S_DBG+3}], 0 offen sc1
        s_waitcnt vmcnt(0)
        s_branch {lbl}
        """)
        A.label(lbl + "_ok")

    def capture(fn, *args):
        keep_lines = A.lines
        rec = []
        A.lines = []
        ov, ol, ow = A.vmem, A.lds, A.wait
        def flush():
            for l in A.lines: rec.append(("i", l))
            A.lines = []
        A.vmem = lambda text, tag=None: (flush(), rec.append(("vm", text, tag)))
        A.lds = lambda text, tag=None: (flush(), rec.append(("lg", text, tag)))
        A.wait = lambda vm=None, lg=None: (flush(), rec.append(("w", vm, lg)))
        fn(*args); flush()
        A.vmem, A.lds, A.wait = ov, ol, ow
        A.lines = keep_lines
        out, grp = [], []
        def mk(g):
            def f():
                for r in g:
                    if r[0] == "i": A(r[1])
                    elif r[0] == "vm": A.vmem(r[1], r[2])
                    elif r[0] == "lg": A.lds(r[1], r[2])
                    else: A.wait(r[1], r[2])
            return f
        for r in rec:
            grp.append(r)
            if r[0] == "i" and r[1].strip().startswith("s_"): continue
            if r[0] == "w": continue
            out.append(mk(grp)); grp = []
        if grp: out.append(mk(grp))
        return out
    bg = []
    def group(m, rds, ndma, must=()):
        rds, must = list(rds), list(must)
        n = len(m)
        dslots = [int((k + 0.5) * n / ndma) for k in range(ndma)] if ndma else []
        for i, f in enumerate(m):
            f()
            k = -(-len(rds) // max(1, n - 1 - i)) if i < n - 1 else len(rds)
            for _ in range(k):
                if rds: rds.pop(0)()
            did = False
            if i in dslots and not OPT.get("nodma"): did = next_dma()
            if i >= 1 and must:
                k = -(-len(must) // (n - i))
                for _ in range(k):
                    if must: must.pop(0)()
            elif not did and i % 2 == 1:
                if bg: bg.pop(0)()
        for f in rds + must: f()

    Q, KF, V1, V2 = 28, 96, 100, 104
    def kv_first():
        A(f"s_mov_b32 m0, s{sSTG}")
        A(f"buffer_load_dwordx4 {v(Q,4)}, v2, {WS}, s{sQA} offen sc1")
        A(f"buffer_load_dwordx4 v2, {WS}, s{sKV} offen sc1 lds")
        A(f"buffer_load_dwordx4 v2, {WS}, s{sKV} offen offset:1024 sc1 lds")
        A(f"s_add_u32 m0, s{sSTG}, {8*TS}\ns_add_u32 s{t4}, s{sKV}, {8*2048}")
        A(f"buffer_load_dwordx4 v2, {WS}, s{t4} offen sc1 lds")
        A(f"buffer_load_dwordx4 v2, {WS}, s{t4} offen offset:1024 sc1 lds")
        A(f"s_mov_b32 s{sRDY}, 1")

    PUB = int(OPT.get("pub", 10))
    def rel_stage(S):
        for seg in range(3):
            if (S, seg) in unit_of: free_units.append(unit_of[(S, seg)])
        if S < 4: xfree.add(S)
        elif S < 8: free_units.append(S % 4)
    ND = int(OPT.get("nd", 4))
    HPOS = int(OPT.get("hpos", 2))
    def stage(S, rt=None):
        sfx = "" if rt is None else f"_{rt}"
        must = []
        if S == 8: must = [lambda: None] * 3 + capture(gate_part)
        PAUSE = int(OPT.get("pause", 3))
        nd0 = 0 if 0 <= 2 * (S - 8) < PAUSE else ND
        nd1 = 0 if 0 <= 2 * (S - 8) + 1 < PAUSE else ND
        group(mms(S, 0, rt), reads(S, 1), nd0, must)
        if S == 7:
            if OPT.get("b7", "1") == "1":
                A("s_barrier"); rel_stage(6)
                group(mms(S, 1, rt), [], ND, [])
            else:
                group(mms(S, 1, rt), [], 0, [])
            return
        if S == 8: A.wait(lg="gp")
        if S == 15:
            while bg: bg.pop(0)()
        if S == PUB: A.wait(vm=[f"st{S+1}", "ast", "nonce"])
        elif S == 6: A.wait(vm=[f"st{S+1}", "hl"])
        elif S < 15: A.wait(vm=f"st{S+1}")
        else: A.wait(lg="all")
        A("s_barrier")
        if S >= 8: stamp(A, "B", S - 6)
        if S < 7: stamp(A, "A", S + 1)
        if S >= 1 and S != 8: rel_stage(S - 1)
        if S == HPOS: state["minh"] = True
        if S == 8: bg.extend(capture(gate_fin))
        if S == PUB:
            get_nonce("Lnonce" + sfx)
            if rt == 0:
                A(f"s_cmp_lg_u32 s{sW}, 0\ns_cbranch_scc1 Lnofa")
                A(f"""
                s_lshl_b32 s{t0}, s{sCG}, 8
                s_lshl_b32 s{t1}, s{sRT64}, 2
                s_add_u32 s{t0}, s{t0}, s{t1}
                s_add_u32 s{t0}, s{t0}, {FA}
                s_mov_b64 exec, 1
                buffer_store_dword v21, v20, {WS}, s{t0} offen sc1
                s_mov_b64 exec, -1
                """)
                A.label("Lnofa")
        if S == 15 and rt == 1:
            A(f"s_cmp_lg_u32 s{sW}, 7\ns_cbranch_scc1 Lnp0\nbuffer_load_dword v0, v4, {WS}, s{sKVL} offen sc1")
            A.label("Lnp0")
        for seg in range(3):
            assert S == 15 or OPT.get("nodma") or (S + 1, seg) in unit_of, (S, seg)
        group(mms(S, 1, rt), reads(S + 1, 0) if S < 15 else [], nd1, [])

    A.wait(vm="st0"); A("s_barrier")
    stamp(A)
    for f in reads(0, 0): f()
    for S in range(8):
        stage(S)
    a_epilogue()
    gate_reads()
    stamp(A); stamp(A, "A", 8)
    gate_mm()
    A.wait(vm="st8"); A("s_barrier")
    stamp(A, "B", 1)
    if OPT.get("b7", "1") != "1": rel_stage(6)
    rel_stage(7)
    for f in reads(8, 0): f()
    A(f"s_cmp_lg_u32 s{sRT}, 0\ns_cbranch_scc1 LB1")
    save = (list(A.vm), list(A.lg), dict(unit_of), list(free_units), list(pending))
    for S in range(8, 16):
        stage(S, 0)
    A("s_branch LBdone")
    A.label("LB1")
    A.vm, A.lg = list(save[0]), list(save[1])
    unit_of.clear(); unit_of.update(save[2]); free_units[:] = save[3]; pending[:] = save[4]
    for S in range(8, 16):
        stage(S, 1)
    A.label("LBdone")
    assert not pending or OPT.get("nodma")
    stamp(A)
    A.vm = []
    A("s_mov_b64 exec, 0xffff")
    A.lds("ds_write_b128 v26, v[80:83] offset:2048")
    A("s_mov_b64 exec, 0xffffff")
    A.lds("ds_write_b128 v27, v[80:83]")
    A("s_mov_b64 exec, -1")
    for i in range(4): A(f"v_cvt_pk_bf16_f32 v{104+i}, v{40+2*i}, v{41+2*i}")
    for i in range(4): A(f"v_cvt_pk_bf16_f32 v{108+i}, v{48+2*i}, v{49+2*i}")
    A("v_cvt_pk_bf16_f32 v96, v56, v57\nv_cvt_pk_bf16_f32 v97, v58, v59")
    A("""
    v_permlane16_swap_b32 v104, v106
    v_permlane16_swap_b32 v105, v107
    v_permlane16_swap_b32 v108, v110
    v_permlane16_swap_b32 v109, v111
    """)
    A.lds("ds_write_b64 v28, v[96:97]")
    A.lds(f"ds_write_b128 v11, v[104:107] offset:{TS}")
    A.lds(f"ds_write_b128 v11, v[108:111] offset:{TS+1024}")
    scale_q(32, 100)
    A("s_nop 1\nv_permlane16_swap_b32 v100, v102\nv_permlane16_swap_b32 v101, v103")
    A.wait(lg="all"); A("s_barrier")
    A(f"{MF32} {v(SA,16)}, v[104:107], v[100:103], {v(SA,16)}")
    A.lds("ds_read_b128 v[96:99], v11", "kp")
    A.lds(f"ds_read_b128 v[108:111], v7 offset:{TS}", "vb")
    A.lds(f"ds_read_b128 v[120:123], v8 offset:{TS}", "vb")
    A.lds("ds_read_b128 v[124:127], v8", "vb")
    A(f"s_cmp_lg_u32 s{sW}, 7\ns_cbranch_scc1 Lnp1\ns_mov_b32 s{t5}, 0")
    A.label("Lpoll1")
    A(f"""
    s_add_u32 s{t5}, s{t5}, 1
    s_waitcnt vmcnt(0)
    v_cmp_ne_u32 vcc, s{sN}, v0
    s_cmp_gt_u32 s{t5}, {SPIN_MAX}
    s_cbranch_scc1 Lpoll1_ok
    s_cbranch_vccz Lpoll1_ok
    s_sleep 1
    buffer_load_dword v0, v4, {WS}, s{sKVL} offen sc1
    s_branch Lpoll1
    """)
    A.label("Lpoll1_ok")
    A("ds_write_b32 v25, v21")
    kv_first()
    A.label("Lnp1")
    A.wait(lg="kp")
    A(f"{MF32} {v(SB,16)}, v[96:99], v[100:103], {v(SB,16)}")
    A.lds("ds_read_b32 v0, v25", "rd")
    OBA = 32
    A(f"v_mov_b32 v{IDX}, 0xdddddddd")
    for i in range(16): A(f"v_mov_b32 v{OBA+i}, 0")
    regs = [SA + i for i in range(16)] + [SB + i for i in range(8, 16)]
    A(f"v_max3_f32 v9, v{regs[0]}, v{regs[1]}, v{regs[2]}")
    for i in range(3, 23, 2): A(f"v_max3_f32 v9, v9, v{regs[i]}, v{regs[i+1]}")
    A(f"v_max_f32 v9, v9, v{regs[23]}")
    def ldscheck(lbl):
        A(f"""
        s_cmp_lg_u32 s{sRDY}, 0
        s_cbranch_scc1 {lbl}
        s_waitcnt lgkmcnt(0)
        v_readfirstlane_b32 s{t2}, v0
        s_nop 0
        s_cmp_eq_u32 s{t2}, 0
        s_cbranch_scc1 {lbl}
        """)
        kv_first()
        A.label(lbl)
    A("v_mov_b32 v10, v9")
    ldscheck("Lck1")
    A("s_nop 0\nv_permlane32_swap_b32 v9, v10\nv_max_f32 v9, v9, v10")
    A.lds("ds_read_b32 v0, v25", "rd")
    for r in regs: A(f"v_sub_f32 v{r}, v{r}, v9")
    ldscheck("Lck2")
    A.wait(lg="all")
    for k in range(3):
        for r in regs[8*k:8*k+8]: A(f"v_exp_f32 v{r}, v{r}")
        if k: A(f"{SMF} {v(OBA,16)}, {['v[108:111]','v[120:123]'][k-1]}, {v(regs[8*k-8],8)}, v{IDX}")
    for i in range(2): A(f"v_mov_b32 v{48+i}, 0")
    A(f"{SMF} {v(OBA,16)}, v[124:127], {v(regs[16],8)}, v{IDX}")
    stamp(A)
    A(f"s_cmp_lg_u32 s{sRDY}, 0\ns_cbranch_scc1 Lrdy\ns_mov_b32 s{t5}, 0")
    A.label("Lspin")
    A(f"""
    ds_read_b32 v0, v25
    s_add_u32 s{t5}, s{t5}, 1
    s_waitcnt lgkmcnt(0)
    v_readfirstlane_b32 s{t2}, v0
    s_cmp_gt_u32 s{t5}, {SPIN_MAX*16}
    s_cbranch_scc1 Lspin_ok
    s_cmp_lg_u32 s{t2}, 0
    s_cbranch_scc1 Lspin_ok
    s_sleep 1
    s_branch Lspin
    """)
    A.label("Lspin_ok")
    kv_first()
    A.label("Lrdy")
    C, O = 32, 48
    SS = [64, 80, 112]
    srd(A, S_T, 66, 2048 * 1024)
    A(f"s_cmp_eq_u32 s{sCH}, 0\ns_cselect_b32 s{S_WA}, s8, s12\ns_cselect_b32 s{S_WA+1}, s9, s13\ns_mov_b32 s{S_WA+2}, 512*1024")
    A(f"""
    s_lshl_b32 s{t0}, s{sCGQ}, 2
    s_add_u32 s{t0}, s{t0}, s{sHD}
    s_lshl_b32 s{t0}, s{t0}, 16
    s_lshl_b32 s{t1}, s{sRT}, 14
    s_add_u32 s{t2}, s{t0}, s{t1}
    s_add_u32 s{sWO}, s{t2}, {WOF}
    s_lshl_b32 s{t2}, s{sCH}, 15
    s_add_u32 s{t0}, s{t0}, s{t2}
    s_lshl_b32 s{t2}, s{sRT64}, 10
    s_add_u32 s{t0}, s{t0}, s{t2}
    s_add_u32 s{sAK}, s{t0}, {WOF}
    s_lshl_b32 s{t0}, s{sRT64}, 1
    s_add_u32 s{t0}, s{t0}, s{sCH}
    s_lshl_b32 s{t0}, s{t0}, 16
    s_add_u32 s{t0}, s{t0}, s{t1}
    s_add_u32 s{sXO}, s{t0}, {OF + 32768}
    """)
    A(f"v_rcp_f32 v9, v{OBA+8}\ns_nop 0\nv_mul_f32 v9, v9, v23")
    for i in range(8): A(f"v_mul_f32 v{OBA+i}, v{OBA+i}, v9")
    for i in range(4): A(f"v_cvt_pk_bf16_f32 v{108+i}, v{OBA+2*i}, v{OBA+2*i+1}")
    for i in range(2, 16): A(f"v_mov_b32 v{O+i}, 0")
    for i in range(8, 16): A(f"v_mov_b32 v{SS[2]+i}, 0")
    for i in range(4): A(f"v_mov_b32 v{128+i}, -1")
    A("v_mov_b32 v7, v16\nv_mov_b32 v8, v17\nv_mov_b32 v14, v2\nv_mov_b32 v15, v16\nv_mov_b32 v16, v17")
    A(f"""
    v_and_b32 v18, 3, v1
    v_lshrrev_b32 v26, 2, v1
    v_lshlrev_b32 v26, 10, v26
    v_lshl_add_u32 v26, v18, 4, v26
    v_bfe_u32 v19, v1, 2, 2
    v_lshl_add_u32 v27, v3, 2, v19
    v_lshlrev_b32 v27, 6, v27
    v_bfe_u32 v19, v1, 4, 1
    v_lshl_add_u32 v27, v19, 5, v27
    v_lshl_add_u32 v27, v18, 3, v27
    s_add_u32 s{t2}, s{sM1}, {L_WT}
    v_add_u32 v27, s{t2}, v27
    """)
    A.wait(vm="all")
    A("s_barrier")
    stamp(A)
    A.lds(f"ds_read_b128 {v(KF,4)}, v2", "k")
    A.lds(f"ds_read_b128 {v(V2,4)}, v8", "v2")
    A.lds(f"ds_read_b128 {v(V1,4)}, v7", "v1")
    A(f"s_mov_b32 s{sPASS}, 0\ns_mov_b32 s{sKVL}, {FOB}")
    A.wait(lg="k")
    A(f"{MF32} {v(SA,16)}, {v(KF,4)}, {v(Q,4)}, 0")
    A("s_nop 1")
    A("s_nop 9")
    A(f"v_max3_f32 v9, v{SA}, v{SA+1}, v{SA+2}")
    for i in range(3, 15, 2): A(f"v_max3_f32 v9, v9, v{SA+i}, v{SA+i+1}")
    A(f"v_max_f32 v9, v9, v{SA+15}")
    A("v_mov_b32 v10, v9\ns_nop 1\nv_permlane32_swap_b32 v9, v10\nv_max_f32 v9, v9, v10")
    A.lds(f"ds_read_b128 {v(KF,4)}, v2 offset:{TS}", "k")
    for i in range(16): A(f"v_sub_f32 v{C+i}, 0, v9")
    for i in range(16): A(f"v_sub_f32 v{SA+i}, v{SA+i}, v9")
    A.wait(lg="all")
    E1, E2 = int(OPT.get("e1", 5)), int(OPT.get("e2", 11))
    def tile(j, jo, hooks=None):
        hooks = hooks or {}
        Sa, Sn, Sp = SS[j % 3], SS[(j + 1) % 3], SS[(j - 1) % 3]
        ex = lambda i: A(f"v_exp_f32 v{Sa+i}, v{Sa+i}")
        A.wait(lg="v2")
        A(f"{MF32} {v(Sn,16)}, {v(KF,4)}, {v(Q,4)}, {v(C,16)}")
        A.lds(f"ds_read_b128 {v(KF,4)}, v14 offset:{(jo+2)*TS}", "k")
        for i in range(E1): ex(i)
        A(f"{SMF} {v(O,16)}, {v(V2,4)}, {v(Sp+8,8)}, v{IDX}")
        A.lds(f"ds_read_b128 {v(V2,4)}, v16 offset:{jo*TS}", "v2")
        for f in hooks.get(0, []): f()
        for i in range(E1, E2): ex(i)
        A.wait(lg="v1")
        A(f"{SMF} {v(O,16)}, {v(V1,4)}, {v(Sa,8)}, v{IDX}")
        A.lds(f"ds_read_b128 {v(V1,4)}, v15 offset:{(jo+1)*TS}", "v1")
        for f in hooks.get(1, []): f()
        for i in range(E2, 14): ex(i)
        for f in hooks.get(2, []): f()
        for i in range(14, 16): ex(i)
    WB_, OB_, ACB, NOB = 128, 192, 240, 12
    def h_kv(i):
        def f():
            A(f"s_add_u32 m0, s{sSTG}, {i*8*TS}\ns_add_u32 s{t4}, s{sKV}, {i*8*2048}")
            A.vmem(f"buffer_load_dwordx4 v2, {WS}, s{t4} offen sc1 lds", f"kv{i}")
            A.vmem(f"buffer_load_dwordx4 v2, {WS}, s{t4} offen offset:1024 sc1 lds", f"kv{i}")
        return f
    def h_st():
        A(f"""
        s_cmp_lg_u32 s{sRT}, 0
        s_cbranch_scc1 Lnowt
        s_lshl_b32 s{t0}, s{sRT64}, 14
        s_lshl_b32 s{t1}, s{sCGQ}, 8
        s_add_u32 s{t0}, s{t0}, s{t1}
        s_lshl_b32 s{t1}, s{sHD}, 6
        s_add_u32 m0, s{sM1}, {L_WT}
        s_add_u32 s{t0}, s{t0}, s{t1}
        buffer_load_dwordx4 v26, s[{S_WA}:{S_WA+3}], s{t0} offen lds
        """)
        A.label("Lnowt")
        A.vmem(f"buffer_store_dwordx4 v[108:111], v2, {WS}, s{sWOB} offen sc1", "obst")
    def h_sent():
        A.vmem(f"buffer_store_dwordx4 v[128:131], v2, {WS}, s{sOA} offen sc1", "sent")
    def h_cnt():
        A.wait(vm="all")
        A("v_mov_b32 v0, 1\ns_mov_b64 exec, 1")
        A.lds("ds_add_rtn_u32 v0, v25, v0 offset:4", "cnt")
        A("s_mov_b64 exec, -1")
    def h_pub():
        A.wait(lg="cnt")
        A(f"""
        v_readfirstlane_b32 s{t0}, v0
        s_lshl_b32 s{t1}, s2, 2
        s_add_u32 s{t1}, s{t1}, {FOB}
        s_cmp_lg_u32 s{t0}, 7
        s_cbranch_scc1 Lnofob
        s_mov_b64 exec, 1
        buffer_store_dword v21, v20, {WS}, s{t1} offen sc1
        s_mov_b64 exec, -1
        """)
        A.label("Lnofob")
    def h_wt1():
        A.wait(vm="obst")
        A.lds("ds_read_b64_tr_b16 v[132:133], v27", "wt")
        A.lds("ds_read_b64_tr_b16 v[134:135], v27 offset:512", "wt")
    def h_wt2():
        A.wait(lg="wt")
        A(f"s_cmp_lg_u32 s{sRT}, 0\ns_cbranch_scc1 Lnowt2\nbuffer_store_dwordx4 v[132:135], v2, {WS}, s{sAK} offen sc1")
        A.label("Lnowt2")
    def h_poll():
        A.vmem(f"buffer_load_dwordx4 v[192:195], v2, {WS}, s{sKVL} offen sc1", "mp")
    def h_check():
        A(f"s_mov_b32 s{t5}, 0")
        A.wait(vm="mp")
        A.label("Lpollm")
        A(f"""
        v_xor_b32 v192, s{sN}, v192
        v_xor_b32 v193, s{sN}, v193
        v_xor_b32 v194, s{sN}, v194
        v_xor_b32 v195, s{sN}, v195
        v_or3_b32 v192, v192, v193, v194
        v_or_b32 v192, v192, v195
        v_cmp_ne_u32 vcc, 0, v192
        s_add_u32 s{t5}, s{t5}, 1
        s_cmp_gt_u32 s{t5}, {SPIN_MAX}
        s_cbranch_vccz Lpollm_ok
        s_cbranch_scc1 Lpollm_ok
        s_sleep 8
        buffer_load_dwordx4 v[192:195], v2, {WS}, s{sKVL} offen sc1
        s_waitcnt vmcnt(0)
        s_branch Lpollm
        """)
        A.label("Lpollm_ok")
    def ld(dst, sb, off, tag):
        def f():
            A(f"s_add_u32 s{t4}, s{sb}, {off}")
            A.vmem(f"buffer_load_dwordx4 {v(dst,4)}, v2, {WS}, s{t4} offen sc1", tag)
        return f
    def h_bmm(n):
        def f():
            A.wait(vm=[f"wb{n}", f"ob{n}"])
            A(f"{MF32} {v(ACB,16)}, {v(WB_+4*n,4)}, {v(OB_+4*(n%NOB),4)}, {v(ACB,16) if n else 0}")
        return f
    def h_tailprep():
        A(f"""
        s_lshl_b32 s{t0}, s{sRT64}, 1
        s_add_u32 s{t0}, s{t0}, s{sCH}           ; to
        s_lshl_b32 s{t3}, s{t0}, 16
        s_lshl_b32 s{t2}, s{sW}, 12
        s_add_u32 s{t3}, s{t3}, s{t2}
        s_add_u32 s{sKV}, s{t3}, {OF}
        v_add_u32 v26, s{t2}, v2
        s_lshl_b32 s{t3}, s{sRT}, 14
        v_add_u32 v18, s{t3}, v2
        s_lshl_b32 s{t3}, s{sHD}, 12
        s_add_u32 s{t3}, s{t3}, {L_RED}
        v_add_u32 v19, s{t3}, v2
        v_lshlrev_b32 v11, 10, v5
        v_lshl_add_u32 v11, v3, 4, v11
        s_lshl_b32 s{t0}, s{t0}, 15
        s_lshl_b32 s{t3}, s{sCGQ}, 8
        s_add_u32 s{t0}, s{t0}, s{t3}
        s_lshl_b32 s{t3}, s{sHD}, 6
        s_add_u32 s{t0}, s{t0}, s{t3}
        s_lshl_b32 s{t3}, s{sRT}, 5
        s_add_u32 s{sWOB}, s{t0}, s{t3}
        """)
    hooks = {j: {0: [], 1: [], 2: []} for j in range(64)}
    for i in range(2, 8): hooks[i - 2][0].append(h_kv(i))
    hooks[6][0].append(h_st)
    hooks[7][0].append(h_sent)
    hooks[14][0].append(h_wt1)
    hooks[15][0].append(h_wt2)
    hooks[18][1].append(h_cnt)
    hooks[19][1].append(h_pub)
    T0 = int(OPT.get("t0", 38))
    hooks[T0 - 4][0].append(h_poll)
    hooks[T0][0].append(h_check)
    for n in range(16):
        hooks[T0 + n][0].append(ld(WB_ + 4 * n, sWO, 32768 + n * 1024, f"wb{n}"))
        hooks[T0 + n][1].append(ld(OB_ + 4 * (n % NOB), sXO, n * 1024, f"ob{n}"))
        hooks[T0 + 8 + n][2].append(h_bmm(n))
        hooks[T0 + 9 + n][1].append(ld(WB_ + 4 * n, sWO, n * 1024, f"wa{n}"))
    hooks[26][0].append(h_tailprep)
    if OPT.get("nohk"):
        for j in range(24, 64): hooks[j] = {0: [], 1: [], 2: []}
        hooks[26][0].append(h_tailprep)
    prios = {0: 3, 10: 2, 14: 3, 20: 2, 50: 1, 60: 0}
    if OPT.get("prio") == "b": prios = {0: 3, 9: 2, 12: 1, 14: 3, 20: 2, 44: 1, 58: 0}
    if OPT.get("prio") == "c": prios = {0: 3, 10: 2, 14: 3, 20: 2, 54: 1, 62: 0}
    if OPT.get("prio") == "alt":
        prios = {}
    base = 0
    for j in range(64):
        if j in prios: A(f"s_setprio {prios[j]}")
        if OPT.get("prio") == "alt": A(f"s_setprio {3 - (j % 4)}")
        if j - base == 24:
            A(f"v_add_u32 v14, {24*TS}, v14\nv_add_u32 v15, {24*TS}, v15\nv_add_u32 v16, {24*TS}, v16")
            base = j
        tile(j, j - base, hooks[j])
        if j == 13:
            A.wait(vm="kv7"); A("s_barrier")
    A.wait(lg="all")
    A("s_nop 0")
    A(f"{SMF} {v(O,16)}, {v(V2,4)}, {v(SS[63 % 3]+8,8)}, v{IDX}")
    A.label("Lfinish")
    A(f"""
    s_setprio 3
    s_mov_b32 s{t3}, 0x53800000
    s_mov_b32 s{t5}, 0
    s_nop 6
    s_cmp_lg_u32 s{sPASS}, 0
    s_cbranch_scc1 Lfin
    v_cmp_ngt_f32 vcc, s{t3}, v{O+8}
    s_nop 1
    {"" if OPT.get("nofb") else "s_cbranch_vccnz Lfallback"}
    """)
    A.label("Lfin")
    stamp(A)
    A(f"v_rcp_f32 v9, v{O+8}\ns_nop 0")
    for i in range(8): A(f"v_mul_f32 v{O+i}, v{O+i}, v9")
    for i in range(4): A(f"v_cvt_pk_bf16_f32 v{108+i}, v{O+2*i}, v{O+2*i+1}")
    for i in range(4): A(f"v_min_u32 v{108+i}, -2, v{108+i}")
    A(f"buffer_store_dwordx4 v[108:111], v2, {WS}, s{sOA} offen sc1")
    A("s_setprio 0")
    A.label("Lpoll3")
    for i in range(4):
        A(f"buffer_load_dwordx4 {v(32+4*i,4)}, v2, {WS}, s{sKV} offen offset:{i*1024} sc1")
    A(f"s_add_u32 s{t5}, s{t5}, 1")
    A("s_waitcnt vmcnt(0)")
    A("v_max3_u32 v9, v32, v33, v34")
    for i in range(35, 47, 2): A(f"v_max3_u32 v9, v9, v{i}, v{i+1}")
    A(f"""
    v_max_u32 v9, v9, v47
    v_cmp_eq_u32 vcc, -1, v9
    s_cmp_gt_u32 s{t5}, {SPIN_MAX}
    s_cbranch_scc1 Lpoll3_ok
    s_cbranch_vccz Lpoll3_ok
    s_sleep {OPT.get("slp", 2)}
    s_branch Lpoll3
    """)
    A.label("Lpoll3_ok")
    stamp(A)
    A("s_barrier")
    stamp(A)
    for i in range(4):
        A(f"ds_write_b128 v26, {v(32+4*i,4)} offset:{i*1024}")
    A("s_waitcnt lgkmcnt(0)\ns_barrier")
    stamp(A)
    ACA = 48
    A.lg = []
    for n in range(8):
        A.lds(f"ds_read_b128 {v(64+4*n,4)}, v18 offset:{n*1024}", f"o{n}")
    for n in range(16):
        A.wait(lg=f"o{n}")
        A(f"{MF32} {v(ACA,16)}, {v(WB_+4*n,4)}, {v(64+4*(n%8),4)}, {v(ACA,16) if n else 0}")
        if n + 8 < 16:
            A.lds(f"ds_read_b128 {v(64+4*n,4)}, v18 offset:{(n+8)*1024}", f"o{n+8}")
    A("s_nop 9")
    A(f"s_cmp_lg_u32 s{sRT}, 0\ns_cbranch_scc1 Lred1")
    for kh in range(2):
        snd, keep = (8, 0) if kh == 0 else (0, 8)
        if kh: A.label("Lred1")
        for i in range(8): A(f"v_fmac_f32 v{ACB+snd+i}, v22, v{ACA+snd+i}")
        A(f"ds_write_b128 v19, {v(ACB+snd,4)} offset:{snd*256}\nds_write_b128 v19, {v(ACB+snd+4,4)} offset:{snd*256+1024}")
        for i in range(8): A(f"v_fmac_f32 v{ACB+keep+i}, v22, v{ACA+keep+i}")
        A("s_waitcnt lgkmcnt(0)\ns_barrier")
        A(f"ds_read_b128 v[64:67], v19 offset:{keep*256}\nds_read_b128 v[68:71], v19 offset:{keep*256+1024}")
        A("s_waitcnt lgkmcnt(0)")
        for i in range(8): A(f"v_add_f32 v{64+i}, v{64+i}, v{ACB+keep+i}")
        if kh == 0: A("s_branch Lred2")
    A.label("Lred2")
    for i in range(4): A(f"v_cvt_pk_bf16_f32 v{72+i}, v{64+2*i}, v{65+2*i}")
    A("s_nop 1\nv_permlane32_swap_b32 v72, v74\nv_permlane32_swap_b32 v73, v75")
    A(f"buffer_store_dwordx4 v[72:75], v11, s[{S_T}:{S_T+3}], s{sWOB} offen")
    if INSTR:
        stamp(A)
        A("s_waitcnt vmcnt(0)")
        stamp(A)
        A("s_memrealtime s[100:101]\ns_waitcnt lgkmcnt(0)\ns_mov_b64 exec, 1")
        A(f"s_lshl_b32 s56, s2, 3\ns_add_u32 s56, s56, s{sW}\ns_lshl_b32 s56, s56, 6\ns_add_u32 s56, s56, {32<<20}")
        A("v_mov_b32 v0, 0")
        for i in range(NST[0]):
            A(f"v_mov_b32 v1, s{68+2*i}\nbuffer_store_dword v1, v0, {WS}, s56 offen offset:{4*i}")
        A(f"v_mov_b32 v1, s{t5}\nbuffer_store_dword v1, v0, {WS}, s56 offen offset:52")
        A(f"v_mov_b32 v1, s100\nbuffer_store_dword v1, v0, {WS}, s56 offen offset:60")
        A(f"v_mov_b32 v1, s98\nbuffer_store_dword v1, v0, {WS}, s56 offen offset:56")
    A.label("Lend")
    A("s_endpgm")
    A.label("Lfallback")
    A.lg = []; A.vm = []
    A(f"s_setprio 0\ns_mov_b32 s{sPASS}, 1\nv_mov_b32 v14, v2\ns_mov_b32 s{sIT}, 0\nv_mov_b32 v9, 0xff800000")
    A.label("Lmaxloop")
    A(f"ds_read_b128 {v(KF,4)}, v14\nv_add_u32 v14, {TS}, v14\ns_waitcnt lgkmcnt(0)")
    A(f"{MF32} {v(SA,16)}, {v(KF,4)}, {v(Q,4)}, 0")
    A("s_nop 11")
    for i in range(0, 16, 2): A(f"v_max3_f32 v9, v9, v{SA+i}, v{SA+i+1}")
    A(f"s_add_u32 s{sIT}, s{sIT}, 1\ns_cmp_lt_u32 s{sIT}, 64\ns_cbranch_scc1 Lmaxloop")
    A("v_mov_b32 v10, v9\ns_nop 1\nv_permlane32_swap_b32 v9, v10\nv_max_f32 v9, v9, v10")
    for i in range(16): A(f"v_sub_f32 v{C+i}, 0, v9")
    for i in range(16): A(f"v_mov_b32 v{O+i}, 0")
    A("v_mov_b32 v14, v2\nv_mov_b32 v15, v7\nv_mov_b32 v16, v8")
    A(f"s_mov_b32 s{sIT}, 0")
    A.label("Lloop2")
    A(f"ds_read_b128 {v(KF,4)}, v14\nds_read_b128 {v(V1,4)}, v15\nds_read_b128 {v(V2,4)}, v16")
    A(f"v_add_u32 v14, {TS}, v14\nv_add_u32 v15, {TS}, v15\nv_add_u32 v16, {TS}, v16\ns_waitcnt lgkmcnt(0)")
    A(f"{MF32} {v(SA,16)}, {v(KF,4)}, {v(Q,4)}, {v(C,16)}")
    A("s_nop 11")
    for i in range(16): A(f"v_exp_f32 v{SA+i}, v{SA+i}")
    A("s_nop 1")
    A(f"{SMF} {v(O,16)}, {v(V1,4)}, {v(SA,8)}, v{IDX}")
    A(f"{SMF} {v(O,16)}, {v(V2,4)}, {v(SA+8,8)}, v{IDX}")
    A(f"s_nop 7\ns_add_u32 s{sIT}, s{sIT}, 1\ns_cmp_lt_u32 s{sIT}, 64\ns_cbranch_scc1 Lloop2")
    A("s_branch Lfinish")
    A.label("Lcode_end")
    return A.text()

def main():
    ref = open(f"cdna_kernels/{NAME}.s.ref").read().split("\n")
    head = [l for l in ref if l.startswith(";") and "@launch" not in l]
    head += ["; @launch grid=(256,1,1) block=(512,1,1) lds=163840"]
    out = "\n".join(head) + '\n.amdgcn_target "amdgcn-amd-amdhsa--gfx950"\n.text\n'
    t = kernel()
    for e in check(t): print("HAZARD", e)
    out += t + f""".section .rodata,"a"
.p2align 6
.amdhsa_kernel {KNAME}
  .amdhsa_next_free_vgpr 256
  .amdhsa_next_free_sgpr 102
  .amdhsa_accum_offset 256
  .amdhsa_group_segment_fixed_size 0
  .amdhsa_kernarg_size 80
  .amdhsa_user_sgpr_count 2
  .amdhsa_user_sgpr_kernarg_segment_ptr 1
  .amdhsa_system_sgpr_workgroup_id_x 1
.end_amdhsa_kernel
"""
    path = sys.argv[1] if len(sys.argv) > 1 else f"cdna_kernels/{NAME}.s"
    open(path, "w").write(out)
    r = subprocess.run(["clang", "-x", "assembler", "-target", "amdgcn-amd-amdhsa", "-mcpu=gfx950", "-c", path, "-o", "chk.o"], capture_output=True, text=True)
    if r.returncode: print("ASM ERROR", r.stderr[:1500])
    print("wrote", path, len(out), "stamps", NST[0])
main()
```

```python
import sys, os, subprocess
from asmlib import Asm, v, s, check

NAME = "gated_mix__mha_block__sliding_local_dilated__prompt"
KNAME = NAME + "_kernel"
OPT = dict(x.split("=") for x in os.environ.get("OPT", "").split(",") if x)
INSTR = os.environ.get("INSTR")
QF, KVF, OF, FL, WOF = 0, 2 << 20, 6 << 20, 10 << 20, 11 << 20
FA, FOB = FL, FL + 2048
WS_BYTES = 268435456
CSCALE = 0x3EB8AA3B
LOG2E = 0x3FB8AA3B
NEGBIG = 0xF149F2CA
ONES = 0x3f803f80
TS = 2080
U = 8192
L_H, L_G, L_GP = 17 * U, 155648, 156672
L_EX = 163840 - 256 - 12 * TS
L_GV = 163840 - 256
L_WT = 157696
L_RED = 65536
SPIN_MAX = 1 << 18

class G(Asm):
    def __init__(self):
        super().__init__()
        self.vm, self.lg = [], []
    def vmem(self, text, tag=None):
        self(text); self.vm.append(tag)
    def lds(self, text, tag=None):
        self(text); self.lg.append(tag)
    def _n(self, q, tags):
        if isinstance(tags, str): tags = [tags]
        idx = [i for i, t in enumerate(q) if t in tags]
        if not idx: return None
        return len(q) - 1 - idx[-1]
    def wait(self, vm=None, lg=None):
        parts = []
        if vm is not None:
            n = 0 if vm == "all" else self._n(self.vm, vm)
            if n is not None:
                assert n <= 63
                parts.append(f"vmcnt({n})"); self.vm = self.vm[len(self.vm) - n:] if n else []
        if lg is not None:
            n = 0 if lg == "all" else self._n(self.lg, lg)
            if n is not None:
                n = min(n, 15)
                parts.append(f"lgkmcnt({n})"); self.lg = self.lg[len(self.lg) - n:] if n else []
        if parts: self("s_waitcnt " + " ".join(parts))

def srd(A, d, base, nbytes):
    A(f"s_mov_b32 s{d}, s{base}\ns_mov_b32 s{d+1}, s{base+1}\ns_mov_b32 s{d+2}, {nbytes}\ns_mov_b32 s{d+3}, 0x20000")

NST = [0]
def stamp(A, mode="1", idx=None):
    if INSTR and (INSTR == mode or NST[0] == 0):
        i = NST[0] if idx is None else idx
        NST[0] = max(NST[0], i + 1)
        assert i < 13
        if i == 0: A("s_memrealtime s[98:99]")
        A(f"{'s_memrealtime' if os.environ.get('RT') else 's_memtime'} s[{68+2*i}:{69+2*i}]"); A.wait(lg="all")

S_X, S_WA, S_WB, S_WS, S_DBG, S_T = 16, 20, 24, 28, 32, 36
sW, sRT64, sCG, sCH, sCGQ, sH, sT, sRT, sHD, sN = 40, 41, 42, 43, 44, 45, 46, 47, 48, 49
sXO, sWO, sM1, sRDY, sPASS, sIT = 50, 51, 52, 53, 54, 55
t0, t1, t2, t3, t4, t5 = 56, 57, 58, 59, 60, 61
sKV, sKVL, sWOB, sSTG = 62, 63, 64, 65
sEXP, sOA, sQA = 3, 14, 15
sROT, sWC = sPASS, sIT
sD1, sD2, sAK, sAQ = 4, 5, 6, 7
MF16 = "v_mfma_f32_16x16x32_bf16"
MF32 = "v_mfma_f32_32x32x16_bf16"
SMF = "v_smfmac_f32_32x32x32_bf16"
IDX = 13
WS = f"s[{S_WS}:{S_WS+3}]"

def lanemask(fn):
    m = 0
    for l in range(64):
        if fn(l): m |= 1 << l
    return m

def kernel():
    A = G()
    A(f".globl {KNAME}\n.p2align 8\n.type {KNAME},@function")
    A.label(KNAME)
    A("s_cmp_ge_u32 s2, 256\ns_cbranch_scc1 Lend")
    stamp(A)
    A("""
    s_load_dwordx4 s[4:7], s[0:1], 0
    s_load_dwordx2 s[14:15], s[0:1], 48
    s_load_dwordx2 s[96:97], s[0:1], 72
    s_load_dwordx2 s[8:9], s[0:1], 16
    s_load_dwordx2 s[10:11], s[0:1], 32
    s_load_dwordx2 s[12:13], s[0:1], 40
    s_load_dwordx2 s[66:67], s[0:1], 56
    s_load_dwordx2 s[100:101], s[0:1], 64
    v_lshrrev_b32 v1, 6, v0
    s_and_b32 s56, s2, 7
    v_readfirstlane_b32 s40, v1
    v_and_b32 v1, 63, v0
    s_lshr_b32 s57, s2, 3
    """)
    A(f"""
    s_and_b32 s{sRT64}, s{t0}, 3
    s_lshl_b32 s{sRT64}, s{sRT64}, 3
    s_and_b32 s{t2}, s{t1}, 7
    s_add_u32 s{sRT64}, s{sRT64}, s{t2}
    s_lshr_b32 s{sCH}, s{t0}, 2
    s_lshr_b32 s{sCGQ}, s{t1}, 3
    s_lshl_b32 s{sCG}, s{sCH}, 2
    s_add_u32 s{sCG}, s{sCG}, s{sCGQ}
    s_lshl_b32 s{sH}, s{t0}, 2
    s_add_u32 s{sH}, s{sH}, s{sCGQ}
    s_lshl_b32 s{sT}, s{t2}, 3
    s_add_u32 s{sT}, s{sT}, s{sW}
    s_lshr_b32 s{sRT}, s{sW}, 2
    s_and_b32 s{sHD}, s{sW}, 3
    s_lshl_b32 s{sXO}, s{sRT64}, 16
    s_lshl_b32 s{t2}, s{sW}, 13
    s_add_u32 s{sXO}, s{sXO}, s{t2}
    s_mul_i32 s{sWO}, s{sW}, 8*3072
    s_lshl_b32 s{t2}, s{sCG}, 7
    s_add_u32 s{sWO}, s{sWO}, s{t2}
    s_lshl_b32 s{sM1}, s{sW}, 10
    s_and_b32 s{t3}, s{sW}, 1
    """)
    RM = OPT.get("rot", "4")
    if RM == "4": A(f"s_and_b32 s{sROT}, s{t1}, 3\ns_lshl_b32 s{sROT}, s{sROT}, 1\ns_add_u32 s{sROT}, s{sROT}, s{t0}")
    if RM == "0": A(f"s_mov_b32 s{sROT}, 0")
    if RM == "8": A(f"s_lshr_b32 s{sROT}, s{t1}, 3\ns_lshl_b32 s{sROT}, s{sROT}, 1\ns_add_u32 s{sROT}, s{sROT}, s{t1}\ns_add_u32 s{sROT}, s{sROT}, s{t0}")
    if RM == "2": A(f"s_and_b32 s{sROT}, s{t1}, 1\ns_lshl_b32 s{sROT}, s{sROT}, 2\ns_add_u32 s{sROT}, s{sROT}, s{t0}")
    A(f"""
    v_lshlrev_b32 v2, 4, v1
    v_lshrrev_b32 v9, 3, v1
    v_and_b32 v10, 7, v1
    v_lshrrev_b32 v15, 4, v1                 ; g
    v_xor_b32 v12, v10, v15
    v_lshlrev_b32 v12, 4, v12
    v_lshl_add_u32 v4, v9, 10, v12
    v_xor_b32 v5, 64, v4
    s_lshl_b32 s{t2}, s{t3}, 6
    v_xor_b32 v3, s{t2}, v4
    v_and_b32 v12, 1, v15
    v_lshlrev_b32 v12, 5, v12
    v_xor_b32 v12, s{t2}, v12
    v_lshlrev_b32 v13, 4, v10
    v_xor_b32 v12, v12, v13
    v_mul_u32_u24 v6, 3072, v9
    v_add_u32 v6, v6, v12
    s_waitcnt lgkmcnt(0)
    """)
    srd(A, S_X, 4, 2048 * 1024)
    srd(A, S_WA, 6, 512 * 3072)
    def code_pf():
        if OPT.get("nocpf"): return
        A(f"""
        s_getpc_b64 s[{t0}:{t0+1}]
        """)
        A.label("Lpc")
        A(f"""
        s_lshr_b32 s{t2}, s2, 3
        s_cmp_gt_u32 s{t2}, {int(OPT.get("cpfj", 0))}
        s_cbranch_scc1 Lnocpf
        s_lshl_b32 s{t2}, s{sW}, 13
        v_lshl_add_u32 v18, v1, 7, s{t2}
        v_min_u32 v18, Lcode_end-Lpc-4, v18
        global_load_dword v31, v18, s[{t0}:{t0+1}]
        """)
        A.label("Lnocpf")
    A(f"s_lshl_b32 s{sD2}, s{sCH}, 10\ns_sub_u32 s{sD1}, 1536, s{sD2}\ns_add_u32 s{sD2}, s{sD1}, 1024")

    unit_of = {}
    free_units = list(range(4, 17))
    xfree = {0, 1, 2, 3}
    pending = []
    SEQ = [int(c, 16) for c in OPT.get("seq", "0123456789abcdef")]
    assert sorted(SEQ) == list(range(16))
    PA = SEQ.index(7); PB0 = SEQ.index(8)
    for S in SEQ:
        if S < 8: pending.append(("x", S, 0))
        if S == 8: pending.append(("h", 8, 0))
        for seg in range(3): pending.append(("w", S, seg))
    dmode = ["sym"]
    def dma_item(it):
        kind, S, seg = it
        md = dmode[0]
        if kind == "x":
            xfree.remove(S % 4)
            if md == "none": return
            A(f"""
            s_add_u32 s{t4}, s{sROT}, {S}
            s_and_b32 s{t4}, s{t4}, 7
            s_lshl_b32 s{t4}, s{t4}, 7
            s_add_u32 m0, s{sM1}, {(S%4)*U}
            s_add_u32 s{t4}, s{t4}, s{sXO}
            """)
            A.vmem(f"buffer_load_dwordx4 v3, s[{S_X}:{S_X+3}], s{t4} offen lds", f"st{S}")
            if md == "dbl":
                A(f"s_sub_u32 m0, m0, 4096\ns_sub_u32 s{t4}, s{t4}, 32768")
                A.vmem(f"buffer_load_dwordx4 v3, s[{S_X}:{S_X+3}], s{t4} offen lds", f"st{S}")
        elif kind == "w":
            u = min(free_units)
            free_units.remove(u); unit_of[(S, seg)] = u
            if md == "none": return
            if OPT.get("skip") and seg >= 3 - int(OPT["skip"]): return
            sr = S_WA if S < 8 else S_WB
            if seg == 0:
                A(f"""
                s_add_u32 s{sWC}, s{sROT}, {S%8}
                s_and_b32 s{sWC}, s{sWC}, 7
                s_mul_i32 s{sWC}, s{sWC}, 196608
                s_add_u32 m0, s{sM1}, {u*U}
                s_add_u32 s{sWC}, s{sWC}, s{sWO}
                """)
                A.vmem(f"buffer_load_dwordx4 v6, s[{sr}:{sr+3}], s{sWC} offen lds", f"st{S}")
                if md == "dbl":
                    A(f"s_sub_u32 m0, m0, 4096\ns_sub_u32 s{t4}, s{sWC}, 98304")
                    A.vmem(f"buffer_load_dwordx4 v6, s[{sr}:{sr+3}], s{t4} offen lds", f"st{S}")
            else:
                A(f"s_add_u32 m0, s{sM1}, {u*U}\ns_add_u32 s{t4}, s{sWC}, {seg*1024 if S >= 8 else 's%d' % [0, sD1, sD2][seg]}")
                A.vmem(f"buffer_load_dwordx4 v6, s[{sr}:{sr+3}], s{t4} offen lds", f"st{S}")
                if md == "dbl":
                    A(f"s_sub_u32 m0, m0, 4096\ns_sub_u32 s{t4}, s{t4}, 98304")
                    A.vmem(f"buffer_load_dwordx4 v6, s[{sr}:{sr+3}], s{t4} offen lds", f"st{S}")
        else:
            A(f"""
            s_lshl_b32 s{t0}, s{sRT64}, 16
            s_sub_u32 s{t1}, s{t0}, 16384
            s_cmp_eq_u32 s{sRT64}, 0
            s_cselect_b32 s{t0}, s{t0}, s{t1}
            s_add_u32 s{t1}, s{sW}, s{sROT}
            s_and_b32 s{t1}, s{t1}, 7
            s_lshl_b32 s{t3}, s{t1}, 7
            s_add_u32 s{t0}, s{t0}, s{t3}
            s_lshl_b32 s{t1}, s{sM1}, 1
            s_add_u32 m0, s{t1}, {L_H}
            s_add_u32 s{t2}, s{t0}, 8192
            """)
            A.vmem(f"buffer_load_dwordx4 v4, s[{S_X}:{S_X+3}], s{t0} offen lds", "hl")
            A(f"s_add_u32 m0, s{t1}, {L_H+1024}\ns_lshl_b32 s{t1}, s{sW}, 7")
            A.vmem(f"buffer_load_dwordx4 v5, s[{S_X}:{S_X+3}], s{t2} offen lds", "hl")
            A(f"s_add_u32 m0, s{t1}, {L_G}\ns_mov_b64 exec, 0xff")
            A.vmem(f"buffer_load_dwordx4 v2, s[{S_T}:{S_T+3}], s{t3} offen lds", "hl")
            A("s_mov_b64 exec, -1")
    state = {"minh": PB0 <= 3}
    def next_dma():
        for i, it in enumerate(pending):
            if it[0] == "w" and not free_units: continue
            if it[0] == "x" and it[1] % 4 not in xfree: continue
            if it[0] == "h" and not state["minh"]: continue
            pending.pop(i); dma_item(it); return True
        return False
    if OPT.get("cpf1"): code_pf()
    for _ in range(4): next_dma()
    if not OPT.get("cpf1"): code_pf()
    MPF = OPT.get("mpf", "")
    if MPF:
        srd(A, S_WB, 10, 512 * 3072)
        A(f"""
        s_lshl_b32 s{t2}, s2, 3
        s_add_u32 s{t2}, s{t2}, s{sW}
        s_lshl_b32 s{t3}, s{t2}, 10
        s_mul_i32 s{t2}, s{t2}, 768
        v_lshlrev_b32 v18, 7, v1
        s_mov_b64 exec, 0x3f
        """)
        if "a" in MPF: A.vmem(f"buffer_load_dword v31, v18, s[{S_WA}:{S_WA+3}], s{t2} offen", "pf")
        if "b" in MPF: A.vmem(f"buffer_load_dword v31, v18, s[{S_WB}:{S_WB+3}], s{t2} offen", "pf")
        A("s_mov_b64 exec, 0xff")
        if "x" in MPF: A.vmem(f"buffer_load_dword v31, v18, s[{S_X}:{S_X+3}], s{t3} offen", "pf")
        A("s_mov_b64 exec, -1")
    srd(A, S_WS, 96, WS_BYTES)
    srd(A, S_T, 14, 1024)
    srd(A, S_WB, 10, 512 * 3072)
    A(f"s_lshl_b32 s{t2}, s2, 3\ns_add_u32 s{t2}, s{t2}, s{sW}\ns_cmp_lg_u32 s{t2}, 7\ns_cbranch_scc1 Lnoscan1")
    A(f"s_mov_b32 s{t4}, {FL}")
    for i in range(3):
        A(f"buffer_load_dwordx4 {v(240+4*i,4)}, v2, {WS}, s{t4} offen offset:{i*1024} sc1")
    A.label("Lnoscan1")
    nscan = len(A.vm)
    A("s_barrier")
    for _ in range(4): next_dma()
    srd(A, S_DBG, 100, 256)
    A(f"""
    v_and_b32 v14, 15, v1
    v_lshrrev_b32 v16, 1, v14
    v_xor_b32 v16, v16, v15
    v_lshlrev_b32 v16, 4, v16
    v_lshl_add_u32 v16, v14, 7, v16
    s_lshl_b32 s{t2}, s{sRT}, 12
    v_add_u32 v7, s{t2}, v16
    v_xor_b32 v8, 64, v7
    v_add_u32 v9, {L_H}, v16
    v_xor_b32 v10, 64, v9
    v_lshlrev_b32 v11, 4, v15
    s_lshl_b32 s{t2}, s{sHD}, 8
    s_add_u32 s{t2}, s{t2}, {L_G}
    v_add_u32 v11, s{t2}, v11
    v_bfe_u32 v18, v1, 2, 2                  ; r
    v_lshl_add_u32 v12, v15, 3, v18
    v_lshlrev_b32 v12, 7, v12
    v_bfe_u32 v18, v1, 3, 2
    v_xor_b32 v18, s{sHD}, v18
    v_lshl_add_u32 v12, v18, 5, v12
    v_and_b32 v18, 3, v1
    v_lshl_add_u32 v12, v18, 3, v12
    v_add_u32 v13, 65536, v12
    v_add_u32 v0, 131072, v12
    v_mov_b32 v20, 0
    v_and_b32 v24, 31, v1
    v_lshlrev_b32 v24, 2, v24
    """)
    NPRE = int(OPT.get("npre", 3))
    if NPRE >= 3:
        A("s_barrier")
        for _ in range(4): next_dma()
    A(f"""
    s_lshl_b32 s{t0}, s{sH}, 6
    s_add_u32 s{t1}, s{t0}, s{sT}
    s_lshl_b32 s{sQA}, s{t1}, 10
    s_add_u32 s{t0}, s{t0}, s{sW}
    s_lshl_b32 s{t0}, s{t0}, 11
    s_add_u32 s{sKV}, s{t0}, {KVF}
    s_mul_i32 s{sSTG}, s{sW}, {TS}
    s_mov_b32 s{sRDY}, 0
    s_lshl_b32 s{t0}, s{sT}, 6
    s_add_u32 s{t0}, s{t0}, s{sH}
    s_lshl_b32 s{t0}, s{t0}, 10
    s_add_u32 s{sOA}, s{t0}, {OF}
    s_lshl_b32 s{t2}, s{sRT64}, 1
    s_add_u32 s{t2}, s{t2}, s{sRT}
    s_lshl_b32 s{t1}, s{sCG}, 2
    s_add_u32 s{t1}, s{t1}, s{sHD}
    s_lshl_b32 s{t0}, s{t2}, 6
    s_add_u32 s{t0}, s{t0}, s{t1}
    s_lshl_b32 s{t0}, s{t0}, 10
    s_add_u32 s{sWOB}, s{t0}, {OF + 32768}
    s_lshl_b32 s{t0}, s{t1}, 6
    s_add_u32 s{t0}, s{t0}, s{t2}
    s_lshl_b32 s{sAQ}, s{t0}, 10
    s_xor_b32 s{t0}, s{t0}, 1024
    s_lshl_b32 s{t0}, s{t0}, 11
    s_add_u32 s{sAK}, s{t0}, {KVF}
    s_and_b32 s{sKVL}, s2, 3
    s_lshl_b32 s{sKVL}, s{sKVL}, 8
    s_add_u32 s{sKVL}, s{sKVL}, {FA}
    s_mul_i32 s{t0}, s{sHD}, {3*TS}
    s_mul_i32 s{t1}, s{sRT}, {TS}
    s_add_u32 s{t0}, s{t0}, s{t1}
    s_add_u32 s{sEXP}, s{t0}, {L_EX}
    """)
    A(f"""
    v_lshrrev_b32 v18, 5, v1
    v_lshlrev_b32 v16, 9, v18
    v_lshl_add_u32 v16, v14, 4, v16
    v_add_u32 v16, 1024, v16
    v_add_u32 v17, 256, v16
    v_mov_b32 v19, 2064
    v_mov_b32 v18, 2048
    s_mov_b32 vcc_lo, 0x00110000
    s_mov_b32 vcc_hi, 0x00110000
    v_cndmask_b32 v19, v19, v18, vcc
    s_mov_b32 vcc_lo, 0x0000ffff
    s_mov_b32 vcc_hi, 0x0000ffff
    v_cndmask_b32 v16, v19, v16, vcc
    v_cndmask_b32 v17, v19, v17, vcc
    v_lshrrev_b32 v18, 1, v1
    v_and_b32 v19, 1, v1
    v_mul_u32_u24 v26, {8*TS}, v18
    v_lshl_add_u32 v26, v19, 4, v26
    v_add_u32 v26, s{sSTG}, v26
    v_mul_u32_u24 v27, {TS}, v18
    v_lshl_add_u32 v27, v19, 4, v27
    v_add_u32 v27, {L_EX+2048}, v27
    v_mov_b32 v25, {L_GV}
    """)
    A(f"""
    v_lshrrev_b32 v19, 1, v15
    v_and_b32 v18, 1, v15
    v_lshlrev_b32 v28, 9, v19
    v_lshl_add_u32 v28, v18, 3, v28
    s_mul_i32 s{t2}, s{sRT}, {TS - 1024}
    s_sub_u32 s{t2}, s{sEXP}, s{t2}
    s_add_u32 s{t2}, s{t2}, 256
    v_lshl_add_u32 v28, v14, 4, v28
    v_add_u32 v28, s{t2}, v28
    s_lshl_b32 s{t2}, s{sRT}, 9
    s_add_u32 s{t2}, s{t2}, {L_GP}
    s_lshl_b32 s{t3}, s{sHD}, 2
    s_add_u32 s{t3}, s{t3}, s{t2}
    v_lshl_add_u32 v29, v24, 2, s{t3}
    s_lshl_b32 s{t3}, s{sCH}, 9
    s_add_u32 s{t3}, s{t3}, {L_GP}
    v_mov_b32 v18, s{t2}
    v_mov_b32 v19, s{t3}
    s_mov_b32 vcc_lo, -1
    s_mov_b32 vcc_hi, 0
    v_cndmask_b32 v18, v19, v18, vcc
    v_lshl_add_u32 v30, v24, 2, v18
    """)
    A("v_mov_b32 v21, 0")
    A.lds("ds_write_b64 v25, v[20:21]")
    AC = 32
    SA, SB = 64, 80
    key = lambda i, hh: 8 * (i // 4) + 4 * hh + i % 4
    okd = lambda d: 0 <= d <= 14 and d % 2 == 0
    A(f"""
    v_mov_b32 v18, {hex(NEGBIG)}
    s_or_b32 s{t2}, s{sRT64}, s{sRT}
    s_cmp_eq_u32 s{t2}, 0
    s_cselect_b32 s{t2}, {hex(NEGBIG)}, 0
    v_mov_b32 v19, s{t2}
    """)
    A(f"v_add_u32 v31, {L_WT}, v2" if False else "")
    A(f"s_cmp_lg_u32 s{sW}, 1\ns_cbranch_scc1 Lnomask")
    for i in range(16):
        m = lanemask(lambda l: okd((l & 31) - key(i, l >> 5)))
        A(f"s_mov_b32 vcc_lo, {hex(m & 0xffffffff)}\ns_mov_b32 vcc_hi, {hex(m >> 32)}\nv_cndmask_b32 v{SA+i}, v18, v20, vcc")
    A(f"v_add_u32 v22, {L_WT}, v2")
    for i in range(4): A(f"ds_write_b128 v22, {v(SA+4*i,4)} offset:{i*1024}")
    A("s_waitcnt lgkmcnt(0)")
    A.label("Lnomask")
    for i in range(8, 16):
        m = lanemask(lambda l: okd((l & 31) + 32 - key(i, l >> 5)))
        A(f"s_mov_b32 vcc_lo, {hex(m & 0xffffffff)}\ns_mov_b32 vcc_hi, {hex(m >> 32)}\nv_cndmask_b32 v{SB+i}, v18, v19, vcc")
    A(f"s_lshl_b32 s{t2}, s2, 3\ns_add_u32 s{t2}, s{t2}, s{sW}\ns_cmp_lg_u32 s{t2}, 7\ns_cbranch_scc1 Lnoscan2")
    A(f"s_waitcnt vmcnt({len(A.vm) - nscan})\ns_mov_b32 s{t4}, 0")
    A.label("Lscan")
    A(f"s_add_u32 s{t4}, s{t4}, 1\ns_mov_b64 exec, -1")
    for i in range(12):
        A(f"v_cmpx_ne_u32 vcc, s{t4}, v{240+i}")
    A("s_nop 1\ns_cmp_eq_u64 exec, -1\ns_cbranch_scc0 Lscan")
    A(f"v_mov_b32 v21, s{t4}\ns_mov_b64 exec, 1")
    A(f"buffer_store_dword v21, v20, s[{S_DBG}:{S_DBG+3}], 0 offen sc1")
    A("s_mov_b64 exec, -1")
    A.label("Lnoscan2")
    if NPRE >= 4:
        for _ in range(4): next_dma()

    FB = [96, 112]
    XF = lambda S, u, sub: 128 + 8 * (2 * (S % 8) + u) + 4 * sub
    def reads(S, u):
        if OPT.get("nord"): return []
        b = FB[u]; kc = S % 8
        tg = f"r{S}_{u}"
        L = []
        rd = lambda text, tag: L.append(lambda: A.lds(text, tag))
        def wr(seg):
            un = unit_of.get((S, seg), 8)
            wb, so = [12, 13, 0][un // 8], (un % 8) * U
            for t in range(2):
                rd(f"ds_read_b64_tr_b16 {v(b+4*seg+2*t,2)}, v{wb} offset:{so + u*4096 + t*512}", f"{tg}w{seg}")
        if S < 8:
            rd(f"ds_read_b128 {v(XF(S,u,0),4)}, v{7+u} offset:{(kc%4)*U}", tg + "x0")
            wr(0)
            rd(f"ds_read_b128 {v(XF(S,u,1),4)}, v{7+u} offset:{(kc%4)*U+2048}", tg + "x1")
            wr(1); wr(2)
        else:
            wr(0); wr(1); wr(2)
            rd(f"ds_read_b128 {v(b+12,4)}, v{9+u} offset:{kc*2048}", tg + "e")
        return L
    def mms(S, u, rt):
        b = FB[u]; ac = AC if S >= 8 else 64
        tg = f"r{S}_{u}"
        L = []
        def mm(d, a_, b_, tags):
            def f():
                A.wait(lg=[tg + t for t in tags])
                if not OPT.get("nomm"): A(f"{MF16} {v(d,4)}, {v(a_,4)}, {v(b_,4)}, {0 if (S % 8 == 0 and u == 0) else v(d,4)}")
            L.append(f)
        for sub in range(2): mm(ac + 4 * sub, b, XF(S, u, sub), ["w0", f"x{sub}"])
        for sub in range(2): mm(ac + 8 + 4 * sub, b + 4, XF(S, u, sub), ["w1", f"x{sub}"])
        for sub in range(2): mm(ac + 16 + 4 * sub, XF(S, u, sub), b + 8, ["w2", f"x{sub}"])
        if S < 8: pass
        elif rt == 0: mm(ac + 24, b + 4, b + 12, ["e"])
        else: mm(ac + 24, b + 12, b + 8, ["e"])
        if S % 8 == 7 and u == 1: L = L[2:] + L[0:2]
        return L

    def scale_q(ac, dq):
        A(f"s_mov_b32 s{t5}, {hex(CSCALE)}")
        for i in range(4):
            A(f"""
            v_cvt_pk_bf16_f32 v18, v{ac+2*i}, v{ac+2*i+1}
            v_and_b32 v19, 0xffff0000, v18
            v_lshlrev_b32 v18, 16, v18
            v_mul_f32 v18, s{t5}, v18
            v_mul_f32 v19, s{t5}, v19
            v_cvt_pk_bf16_f32 v{dq+i}, v18, v19
            """)
    GFR = [64, 68, 72, 76]
    GAC = [80, 84]
    def a_epilogue():
        A("s_nop 3")
        for i in range(4): A(f"v_cvt_pk_bf16_f32 v{60+i}, v{72+2*i}, v{73+2*i}")
        for i in range(4): A(f"v_cvt_pk_bf16_f32 v{72+i}, v{80+2*i}, v{81+2*i}")
        A("v_permlane16_swap_b32 v60, v62\nv_permlane16_swap_b32 v61, v63")
        A.vmem(f"buffer_store_dwordx4 v[60:63], v2, {WS}, s{sAK} offen sc1", "ast")
        A("v_permlane16_swap_b32 v72, v74\nv_permlane16_swap_b32 v73, v75")
        A.vmem(f"buffer_store_dwordx4 v[72:75], v2, {WS}, s{sAK} offen offset:1024 sc1", "ast")
        scale_q(64, 76)
        A("s_nop 1\nv_permlane16_swap_b32 v76, v78\nv_permlane16_swap_b32 v77, v79")
        A.vmem(f"buffer_store_dwordx4 v[76:79], v2, {WS}, s{sAQ} offen sc1", "ast")
        A.vmem(f"buffer_load_dword v21, v20, s[{S_DBG}:{S_DBG+3}], 0 offen sc1", "nonce")
    def mask_back():
        A(f"v_add_u32 v22, {L_WT}, v2")
        for i in range(4): A.lds(f"ds_read_b128 {v(SA+4*i,4)}, v22 offset:{i*1024}", "mb")
    def gate_reads():
        for k in range(4):
            A.lds(f"ds_read_b128 {v(GFR[k],4)}, v11 offset:{k*64}", "gf")
    def gate_mm(sfx):
        A.wait(lg="gf")
        for hd in range(4):
            if hd < 3:
                A(f"s_cmp_lg_u32 s{sHD}, {hd}\ns_cbranch_scc1 Lg{hd}{sfx}")
            for k in range(4):
                for sub in range(2):
                    A(f"{MF16} {v(GAC[sub],4)}, {v(GFR[k],4)}, {v(XF(2*hd + k//2, k%2, sub),4)}, {v(GAC[sub],4) if k else 0}")
            if hd < 3:
                A(f"s_branch Lgd{sfx}")
                A.label(f"Lg{hd}{sfx}")
        A.label(f"Lgd{sfx}")
    def gate_part():
        A(f"""
        s_mov_b32 vcc_lo, 0x0000ffff
        s_mov_b32 vcc_hi, 0x0000ffff
        v_cndmask_b32 v18, v{GAC[1]}, v{GAC[0]}, vcc
        """)
        A.lds("ds_write_b32 v29, v18", "gp")
    def gate_fin():
        A.lds("ds_read_b128 v[84:87], v30", "gq")
        A(f"""
        v_mov_b32 v80, {hex(ONES)}
        s_mov_b32 vcc_lo, 0x55555555
        s_mov_b32 vcc_hi, 0x55555555
        v_cndmask_b32 v80, 0, v80, vcc
        v_mov_b32 v81, v80
        v_mov_b32 v82, v80
        v_mov_b32 v83, v80
        v_lshrrev_b32 v3, 5, v1
        v_and_b32 v5, 31, v1
        v_add_u32 v11, s{sEXP}, v2
        v_add_u32 v7, s{sEXP}, v16
        v_add_u32 v8, s{sEXP}, v17
        v_lshl_add_u32 v4, v3, 10, v24
        """)
        A.wait(lg="gq")
        A(f"""
        v_add_f32 v84, v84, v85
        v_add_f32 v86, v86, v87
        v_add_f32 v18, v84, v86
        v_cvt_pk_bf16_f32 v18, v18, v18
        v_lshlrev_b32 v18, 16, v18
        v_mul_f32 v18, {hex(LOG2E ^ 0x80000000)}, v18
        v_exp_f32 v18, v18
        s_nop 0
        v_add_f32 v18, 1.0, v18
        v_rcp_f32 v18, v18
        s_nop 0
        v_cvt_pk_bf16_f32 v18, v18, v18
        v_lshlrev_b32 v23, 16, v18
        v_lshlrev_b32 v22, 16, v18
        s_nop 1
        v_permlane32_swap_b32 v23, v22
        v_sub_f32 v18, 1.0, v23
        v_cvt_pk_bf16_f32 v18, v18, v18
        v_lshlrev_b32 v23, 16, v18               ; 1-g
        """)

    def get_nonce(lbl):
        A(f"s_mov_b32 s{t5}, 0")
        A.label(lbl)
        A(f"""
        v_readfirstlane_b32 s{sN}, v21
        s_add_u32 s{t5}, s{t5}, 1
        s_cmp_lg_u32 s{sN}, 0
        s_cbranch_scc1 {lbl}_ok
        s_cmp_gt_u32 s{t5}, {SPIN_MAX}
        s_cbranch_scc1 {lbl}_ok
        s_sleep 2
        buffer_load_dword v21, v20, s[{S_DBG}:{S_DBG+3}], 0 offen sc1
        s_waitcnt vmcnt(0)
        s_branch {lbl}
        """)
        A.label(lbl + "_ok")

    def capture(fn, *args):
        keep_lines = A.lines
        rec = []
        A.lines = []
        ov, ol, ow = A.vmem, A.lds, A.wait
        def flush():
            for l in A.lines: rec.append(("i", l))
            A.lines = []
        A.vmem = lambda text, tag=None: (flush(), rec.append(("vm", text, tag)))
        A.lds = lambda text, tag=None: (flush(), rec.append(("lg", text, tag)))
        A.wait = lambda vm=None, lg=None: (flush(), rec.append(("w", vm, lg)))
        fn(*args); flush()
        A.vmem, A.lds, A.wait = ov, ol, ow
        A.lines = keep_lines
        out, grp = [], []
        def mk(g):
            def f():
                for r in g:
                    if r[0] == "i": A(r[1])
                    elif r[0] == "vm": A.vmem(r[1], r[2])
                    elif r[0] == "lg": A.lds(r[1], r[2])
                    else: A.wait(r[1], r[2])
            return f
        for r in rec:
            grp.append(r)
            if r[0] == "i" and r[1].strip().startswith("s_"): continue
            if r[0] == "w": continue
            out.append(mk(grp)); grp = []
        if grp: out.append(mk(grp))
        return out
    bg = []
    ASYM = OPT.get('asym', '1') == '1'
    def group(m, rds, ndma, must=()):
        rds, must = list(rds), list(must)
        n = len(m)
        dslots = [int((k + 0.5) * n / ndma) for k in range(ndma)] if ndma else []
        if OPT.get("dpos", "spread") == "front" and ASYM:
            k = len(rds) if dmode[0] == "dbl" and OPT.get("rdfirst", "1") == "1" else 0
            for _ in range(k): rds.pop(0)()
            for _ in range(ndma):
                if not OPT.get("nodma"): next_dma()
            dslots = []
        for i, f in enumerate(m):
            f()
            k = -(-len(rds) // max(1, n - 1 - i)) if i < n - 1 else len(rds)
            for _ in range(k):
                if rds: rds.pop(0)()
            did = False
            if i in dslots and not OPT.get("nodma"): did = next_dma()
            if i >= 1 and must:
                k = -(-len(must) // (n - i))
                for _ in range(k):
                    if must: must.pop(0)()
            elif not did and (i % 2 == 1 or PA >= 10):
                if bg: bg.pop(0)()
        for f in rds + must: f()

    Q, KF, V1, V2 = 28, 96, 100, 104
    def kv_first():
        A(f"s_mov_b32 m0, s{sSTG}")
        A(f"buffer_load_dwordx4 {v(Q,4)}, v2, {WS}, s{sQA} offen sc1")
        A(f"buffer_load_dwordx4 v2, {WS}, s{sKV} offen sc1 lds")
        A(f"buffer_load_dwordx4 v2, {WS}, s{sKV} offen offset:1024 sc1 lds")
        A(f"s_add_u32 m0, s{sSTG}, {8*TS}\ns_add_u32 s{t4}, s{sKV}, {8*2048}")
        A(f"buffer_load_dwordx4 v2, {WS}, s{t4} offen sc1 lds")
        A(f"buffer_load_dwordx4 v2, {WS}, s{t4} offen offset:1024 sc1 lds")
        A(f"s_mov_b32 s{sRDY}, 1")

    PUB = int(OPT.get("pub", 2))
    def rel_stage(S):
        for seg in range(3):
            if (S, seg) in unit_of: free_units.append(unit_of[(S, seg)])
        if S < 4: xfree.add(S)
        elif S < 8: free_units.append(S % 4)
    ND = int(OPT.get("nd", 4))
    HPOS = max(0, PB0 - 4)
    def stage(p, rt=None):
        S = SEQ[p]; N = SEQ[p + 1] if p < 15 else None
        q = p - PA - 1
        sfx = "" if rt is None else f"_{rt}"
        must = []
        if q == 0: must = [lambda: None] * 2 + capture(gate_part) + capture(mask_back)
        PAUSE = int(OPT.get("pause", 3))
        nd0 = 0 if 0 <= 2 * q < PAUSE else ND
        nd1 = 0 if 0 <= 2 * q + 1 < PAUSE else ND
        group(mms(S, 0, rt), reads(S, 1), nd0, must)
        if S == 7:
            A("s_barrier"); rel_stage(SEQ[p - 1])
            group(mms(S, 1, rt), [], ND, [])
            return
        if q == 0: A.wait(lg="gp")
        if q == 1: A.wait(lg="mb")
        if p == 15:
            while bg: bg.pop(0)()
            if rt == 0:
                A.wait(vm="wod")
                A.lds("ds_read_b64_tr_b16 v[60:61], v6", "wt")
                A.lds("ds_read_b64_tr_b16 v[62:63], v6 offset:512", "wt")
        if q == PUB: A.wait(vm=[f"st{N}", "ast", "nonce"])
        elif N == 8 or N == 7: A.wait(vm=[f"st{N}", "hl"])
        elif p < 15: A.wait(vm=f"st{N}")
        else: A.wait(lg="all")
        A("s_barrier")
        if p >= 8: stamp(A, "B", p - 7)
        if p < 8: stamp(A, "A", p + 1)
        if p >= 1 and q != 0: rel_stage(SEQ[p - 1])
        if p == HPOS: state["minh"] = True
        if q == 0: bg.extend(capture(gate_fin))
        if q == PUB:
            get_nonce("Lnonce" + sfx)
            if rt == 0:
                A(f"s_cmp_lg_u32 s{sW}, 0\ns_cbranch_scc1 Lnofa")
                A(f"""
                s_lshl_b32 s{t0}, s{sCG}, 8
                s_lshl_b32 s{t1}, s{sRT64}, 2
                s_add_u32 s{t0}, s{t0}, s{t1}
                s_add_u32 s{t0}, s{t0}, {FA}
                s_mov_b64 exec, 1
                buffer_store_dword v21, v20, {WS}, s{t0} offen sc1
                s_mov_b64 exec, -1
                """)
                A.label("Lnofa")
        if p == max(12, PA + 2) and rt == 0:
            A(f"""
            s_cmp_eq_u32 s{sCH}, 0
            s_cselect_b32 s{S_WA}, s8, s12
            s_cselect_b32 s{S_WA+1}, s9, s13
            s_mov_b32 s{S_WA+2}, 512*1024
            v_and_b32 v60, 3, v1
            v_lshrrev_b32 v61, 2, v1
            v_lshlrev_b32 v61, 10, v61
            v_lshl_add_u32 v61, v60, 4, v61
            s_lshl_b32 s{t0}, s{sRT64}, 14
            s_lshl_b32 s{t1}, s{sCGQ}, 8
            s_add_u32 s{t0}, s{t0}, s{t1}
            s_lshl_b32 s{t1}, s{sHD}, 6
            s_add_u32 m0, s{sM1}, {L_WT}
            s_add_u32 s{t0}, s{t0}, s{t1}
            """)
            assert ASYM
            A.vmem(f"buffer_load_dwordx4 v61, s[{S_WA}:{S_WA+3}], s{t0} offen lds", "wod")
            A(f"""
            v_bfe_u32 v61, v1, 2, 2
            v_lshrrev_b32 v62, 5, v1
            v_lshl_add_u32 v62, v62, 2, v61
            v_lshlrev_b32 v62, 6, v62
            v_bfe_u32 v61, v1, 4, 1
            v_lshl_add_u32 v62, v61, 5, v62
            v_lshl_add_u32 v62, v60, 3, v62
            s_add_u32 s{t2}, s{sM1}, {L_WT}
            v_add_u32 v6, s{t2}, v62
            """)
        if p == 15 and rt == 1:
            A(f"s_cmp_lg_u32 s{sW}, 7\ns_cbranch_scc1 Lnp0\nbuffer_load_dword v0, v4, {WS}, s{sKVL} offen sc1")
            A.label("Lnp0")
        for seg in range(3):
            assert p == 15 or OPT.get("nodma") or (N, seg) in unit_of, (S, seg)
        group(mms(S, 1, rt), reads(N, 0) if p < 15 else [], nd1, [])

    A.wait(vm="st0"); A("s_barrier")
    stamp(A)
    for f in reads(0, 0): f()
    A(f"s_cmp_lg_u32 s{sRT}, 0\ns_cbranch_scc1 LB1")
    save = (list(A.vm), list(A.lg), dict(unit_of), list(free_units), list(pending), set(xfree), NST[0])
    for rt in range(2):
        if rt == 1:
            A.label("LB1")
            A.vm, A.lg = list(save[0]), list(save[1])
            unit_of.clear(); unit_of.update(save[2]); free_units[:] = save[3]; pending[:] = save[4]
            xfree.clear(); xfree.update(save[5]); state["minh"] = PB0 <= 3
            if INSTR == "1": NST[0] = save[6]
            if OPT.get("pprio", "1") == "1": A("s_setprio 1")
        dmode[0] = ("none", "dbl")[rt] if ASYM else "sym"
        for p in range(PA + 1):
            stage(p, rt)
        a_epilogue()
        gate_reads()
        stamp(A)
        gate_mm(f"_{rt}")
        A.wait(vm=f"st{SEQ[PA+1]}"); A("s_barrier")
        rel_stage(7)
        for f in reads(SEQ[PA + 1], 0): f()
        for p in range(PA + 1, 16):
            stage(p, rt)
        if rt == 0: A("s_branch LBdone")
        else: A("s_setprio 0")
    A.label("LBdone")
    assert not pending or OPT.get("nodma")
    stamp(A)
    A.vm = []
    A("s_mov_b64 exec, 0xffff")
    A.lds("ds_write_b128 v26, v[80:83] offset:2048")
    A("s_mov_b64 exec, 0xffffff")
    A.lds("ds_write_b128 v27, v[80:83]")
    A("s_mov_b64 exec, -1")
    for i in range(4): A(f"v_cvt_pk_bf16_f32 v{104+i}, v{40+2*i}, v{41+2*i}")
    for i in range(4): A(f"v_cvt_pk_bf16_f32 v{108+i}, v{48+2*i}, v{49+2*i}")
    A("v_cvt_pk_bf16_f32 v96, v56, v57\nv_cvt_pk_bf16_f32 v97, v58, v59")
    A("""
    v_permlane16_swap_b32 v104, v106
    v_permlane16_swap_b32 v105, v107
    v_permlane16_swap_b32 v108, v110
    v_permlane16_swap_b32 v109, v111
    """)
    A.lds("ds_write_b64 v28, v[96:97]")
    A.lds(f"ds_write_b128 v11, v[104:107] offset:{TS}")
    A.lds(f"ds_write_b128 v11, v[108:111] offset:{TS+1024}")
    scale_q(32, 100)
    A("s_nop 1\nv_permlane16_swap_b32 v100, v102\nv_permlane16_swap_b32 v101, v103")
    A.wait(lg="all"); A("s_barrier")
    A(f"{MF32} {v(SA,16)}, v[104:107], v[100:103], {v(SA,16)}")
    A.lds("ds_read_b128 v[96:99], v11", "kp")
    A.lds(f"ds_read_b128 v[108:111], v7 offset:{TS}", "vb")
    A.lds(f"ds_read_b128 v[120:123], v8 offset:{TS}", "vb")
    A.lds("ds_read_b128 v[124:127], v8", "vb")
    A(f"s_cmp_lg_u32 s{sW}, 7\ns_cbranch_scc1 Lnp1\ns_mov_b32 s{t5}, 0")
    A.label("Lpoll1")
    A(f"""
    s_add_u32 s{t5}, s{t5}, 1
    s_waitcnt vmcnt(0)
    v_cmp_ne_u32 vcc, s{sN}, v0
    s_cmp_gt_u32 s{t5}, {SPIN_MAX}
    s_cbranch_scc1 Lpoll1_ok
    s_cbranch_vccz Lpoll1_ok
    s_sleep 1
    buffer_load_dword v0, v4, {WS}, s{sKVL} offen sc1
    s_branch Lpoll1
    """)
    A.label("Lpoll1_ok")
    A("ds_write_b32 v25, v21")
    kv_first()
    A.label("Lnp1")
    A.wait(lg="kp")
    A(f"{MF32} {v(SB,16)}, v[96:99], v[100:103], {v(SB,16)}")
    A.lds("ds_read_b32 v0, v25", "rd")
    OBA = 32
    A(f"v_mov_b32 v{IDX}, 0xdddddddd")
    for i in range(16): A(f"v_mov_b32 v{OBA+i}, 0")
    regs = [SA + i for i in range(16)] + [SB + i for i in range(8, 16)]
    A(f"v_max3_f32 v9, v{regs[0]}, v{regs[1]}, v{regs[2]}")
    for i in range(3, 23, 2): A(f"v_max3_f32 v9, v9, v{regs[i]}, v{regs[i+1]}")
    A(f"v_max_f32 v9, v9, v{regs[23]}")
    def ldscheck(lbl):
        A(f"""
        s_cmp_lg_u32 s{sRDY}, 0
        s_cbranch_scc1 {lbl}
        s_waitcnt lgkmcnt(0)
        v_readfirstlane_b32 s{t2}, v0
        s_nop 0
        s_cmp_eq_u32 s{t2}, 0
        s_cbranch_scc1 {lbl}
        """)
        kv_first()
        A.label(lbl)
    A("v_mov_b32 v10, v9")
    ldscheck("Lck1")
    A("s_nop 0\nv_permlane32_swap_b32 v9, v10\nv_max_f32 v9, v9, v10")
    A.lds("ds_read_b32 v0, v25", "rd")
    for r in regs: A(f"v_sub_f32 v{r}, v{r}, v9")
    ldscheck("Lck2")
    A.wait(lg="all")
    for k in range(3):
        for r in regs[8*k:8*k+8]: A(f"v_exp_f32 v{r}, v{r}")
        if k: A(f"{SMF} {v(OBA,16)}, {['v[108:111]','v[120:123]'][k-1]}, {v(regs[8*k-8],8)}, v{IDX}")
    for i in range(2): A(f"v_mov_b32 v{48+i}, 0")
    A(f"{SMF} {v(OBA,16)}, v[124:127], {v(regs[16],8)}, v{IDX}")
    stamp(A)
    A(f"s_cmp_lg_u32 s{sRDY}, 0\ns_cbranch_scc1 Lrdy\ns_mov_b32 s{t5}, 0")
    A.label("Lspin")
    A(f"""
    ds_read_b32 v0, v25
    s_add_u32 s{t5}, s{t5}, 1
    s_waitcnt lgkmcnt(0)
    v_readfirstlane_b32 s{t2}, v0
    s_cmp_gt_u32 s{t5}, {SPIN_MAX*16}
    s_cbranch_scc1 Lspin_ok
    s_cmp_lg_u32 s{t2}, 0
    s_cbranch_scc1 Lspin_ok
    s_sleep 1
    s_branch Lspin
    """)
    A.label("Lspin_ok")
    kv_first()
    A.label("Lrdy")
    C, O = 32, 48
    SS = [64, 80, 112]
    srd(A, S_T, 66, 2048 * 1024)
    A(f"""
    s_lshl_b32 s{t0}, s{sCGQ}, 2
    s_add_u32 s{t0}, s{t0}, s{sHD}
    s_lshl_b32 s{t0}, s{t0}, 16
    s_lshl_b32 s{t1}, s{sRT}, 14
    s_add_u32 s{t2}, s{t0}, s{t1}
    s_add_u32 s{sWO}, s{t2}, {WOF}
    s_lshl_b32 s{t2}, s{sCH}, 15
    s_add_u32 s{t0}, s{t0}, s{t2}
    s_lshl_b32 s{t2}, s{sRT64}, 10
    s_add_u32 s{t0}, s{t0}, s{t2}
    s_add_u32 s{sAK}, s{t0}, {WOF}
    s_lshl_b32 s{t0}, s{sRT64}, 1
    s_add_u32 s{t0}, s{t0}, s{sCH}
    s_lshl_b32 s{t0}, s{t0}, 16
    s_add_u32 s{t0}, s{t0}, s{t1}
    s_add_u32 s{sXO}, s{t0}, {OF + 32768}
    """)
    A(f"v_rcp_f32 v9, v{OBA+8}\ns_nop 0\nv_mul_f32 v9, v9, v23")
    for i in range(8): A(f"v_mul_f32 v{OBA+i}, v{OBA+i}, v9")
    for i in range(4): A(f"v_cvt_pk_bf16_f32 v{108+i}, v{OBA+2*i}, v{OBA+2*i+1}")
    A(f"s_cmp_lg_u32 s{sRT}, 0\ns_cbranch_scc1 Lnowt2\nbuffer_store_dwordx4 v[60:63], v2, {WS}, s{sAK} offen sc1")
    A.label("Lnowt2")
    for i in range(4): A(f"v_mov_b32 v{128+i}, -1")
    A.vm = ["kvf"]
    A.vmem(f"buffer_store_dwordx4 v[108:111], v2, {WS}, s{sWOB} offen sc1", "obst")
    A.vmem(f"buffer_store_dwordx4 v[128:131], v2, {WS}, s{sOA} offen sc1", "sent")
    for i in range(2, 16): A(f"v_mov_b32 v{O+i}, 0")
    for i in range(8, 16): A(f"v_mov_b32 v{SS[2]+i}, 0")
    A("v_mov_b32 v7, v16\nv_mov_b32 v8, v17\nv_mov_b32 v14, v2\nv_mov_b32 v15, v16\nv_mov_b32 v16, v17")
    A(f"s_cmp_lg_u32 s{sRT}, 0\ns_cbranch_scc1 Lw2\ns_waitcnt vmcnt(3)\ns_branch Lw3")
    A.label("Lw2")
    A.wait(vm="kvf")
    A.label("Lw3")
    A("s_barrier")
    stamp(A)
    A.lds(f"ds_read_b128 {v(KF,4)}, v2", "k")
    A.lds(f"ds_read_b128 {v(V2,4)}, v8", "v2")
    A.lds(f"ds_read_b128 {v(V1,4)}, v7", "v1")
    A(f"s_mov_b32 s{sPASS}, 0\ns_mov_b32 s{sKVL}, {FOB}")
    A.wait(lg="k")
    A(f"{MF32} {v(SA,16)}, {v(KF,4)}, {v(Q,4)}, 0")
    A("s_nop 1")
    A("s_nop 9")
    A(f"v_max3_f32 v9, v{SA}, v{SA+1}, v{SA+2}")
    for i in range(3, 15, 2): A(f"v_max3_f32 v9, v9, v{SA+i}, v{SA+i+1}")
    A(f"v_max_f32 v9, v9, v{SA+15}")
    A("v_mov_b32 v10, v9\ns_nop 1\nv_permlane32_swap_b32 v9, v10\nv_max_f32 v9, v9, v10")
    A.lds(f"ds_read_b128 {v(KF,4)}, v2 offset:{TS}", "k")
    for i in range(16): A(f"v_sub_f32 v{C+i}, 0, v9")
    for i in range(16): A(f"v_sub_f32 v{SA+i}, v{SA+i}, v9")
    A.wait(lg="all")
    E1, E2 = int(OPT.get("e1", 5)), int(OPT.get("e2", 11))
    def tile(j, jo, hooks=None):
        hooks = hooks or {}
        Sa, Sn, Sp = SS[j % 3], SS[(j + 1) % 3], SS[(j - 1) % 3]
        ex = lambda i: A(f"v_exp_f32 v{Sa+i}, v{Sa+i}")
        A.wait(lg="v2")
        A(f"{MF32} {v(Sn,16)}, {v(KF,4)}, {v(Q,4)}, {v(C,16)}")
        A.lds(f"ds_read_b128 {v(KF,4)}, v14 offset:{(jo+2)*TS}", "k")
        for i in range(E1): ex(i)
        A(f"{SMF} {v(O,16)}, {v(V2,4)}, {v(Sp+8,8)}, v{IDX}")
        A.lds(f"ds_read_b128 {v(V2,4)}, v16 offset:{jo*TS}", "v2")
        for f in hooks.get(0, []): f()
        for i in range(E1, E2): ex(i)
        A.wait(lg="v1")
        A(f"{SMF} {v(O,16)}, {v(V1,4)}, {v(Sa,8)}, v{IDX}")
        A.lds(f"ds_read_b128 {v(V1,4)}, v15 offset:{(jo+1)*TS}", "v1")
        for f in hooks.get(1, []): f()
        for i in range(E2, 14): ex(i)
        for f in hooks.get(2, []): f()
        for i in range(14, 16): ex(i)
    WB_, OB_, ACB, NOB = 128, 192, 240, 12
    def h_kv(i):
        def f():
            A(f"s_add_u32 m0, s{sSTG}, {i*8*TS}\ns_add_u32 s{t4}, s{sKV}, {i*8*2048}")
            A.vmem(f"buffer_load_dwordx4 v2, {WS}, s{t4} offen sc1 lds", f"kv{i}")
            A.vmem(f"buffer_load_dwordx4 v2, {WS}, s{t4} offen offset:1024 sc1 lds", f"kv{i}")
        return f
    def h_st():
        A(f"""
        s_cmp_lg_u32 s{sRT}, 0
        s_cbranch_scc1 Lnowt
        s_lshl_b32 s{t0}, s{sRT64}, 14
        s_lshl_b32 s{t1}, s{sCGQ}, 8
        s_add_u32 s{t0}, s{t0}, s{t1}
        s_lshl_b32 s{t1}, s{sHD}, 6
        s_add_u32 m0, s{sM1}, {L_WT}
        s_add_u32 s{t0}, s{t0}, s{t1}
        buffer_load_dwordx4 v26, s[{S_WA}:{S_WA+3}], s{t0} offen lds
        """)
        A.label("Lnowt")
        A.vmem(f"buffer_store_dwordx4 v[108:111], v2, {WS}, s{sWOB} offen sc1", "obst")
    def h_sent():
        A.vmem(f"buffer_store_dwordx4 v[128:131], v2, {WS}, s{sOA} offen sc1", "sent")
    def h_cnt():
        A.wait(vm="sent")
        A("v_mov_b32 v0, 1\ns_mov_b64 exec, 1")
        A.lds("ds_add_rtn_u32 v0, v25, v0 offset:4", "cnt")
        A("s_mov_b64 exec, -1")
    def h_pub():
        A.wait(lg="cnt")
        A(f"""
        v_readfirstlane_b32 s{t0}, v0
        s_lshl_b32 s{t1}, s2, 2
        s_add_u32 s{t1}, s{t1}, {FOB}
        s_cmp_lg_u32 s{t0}, 7
        s_cbranch_scc1 Lnofob
        s_mov_b64 exec, 1
        buffer_store_dword v21, v20, {WS}, s{t1} offen sc1
        s_mov_b64 exec, -1
        """)
        A.label("Lnofob")
    def h_wt1():
        A.wait(vm="obst")
        A.lds("ds_read_b64_tr_b16 v[132:133], v27", "wt")
        A.lds("ds_read_b64_tr_b16 v[134:135], v27 offset:512", "wt")
    def h_wt2():
        A.wait(lg="wt")
        A(f"s_cmp_lg_u32 s{sRT}, 0\ns_cbranch_scc1 Lnowt2\nbuffer_store_dwordx4 v[132:135], v2, {WS}, s{sAK} offen sc1")
        A.label("Lnowt2")
    def h_poll():
        A.vmem(f"buffer_load_dwordx4 v[192:195], v2, {WS}, s{sKVL} offen sc1", "mp")
    def h_check():
        A(f"s_mov_b32 s{t5}, 0")
        A.wait(vm="mp")
        A.label("Lpollm")
        A(f"""
        v_xor_b32 v192, s{sN}, v192
        v_xor_b32 v193, s{sN}, v193
        v_xor_b32 v194, s{sN}, v194
        v_xor_b32 v195, s{sN}, v195
        v_or3_b32 v192, v192, v193, v194
        v_or_b32 v192, v192, v195
        v_cmp_ne_u32 vcc, 0, v192
        s_add_u32 s{t5}, s{t5}, 1
        s_cmp_gt_u32 s{t5}, {SPIN_MAX}
        s_cbranch_vccz Lpollm_ok
        s_cbranch_scc1 Lpollm_ok
        s_sleep 8
        buffer_load_dwordx4 v[192:195], v2, {WS}, s{sKVL} offen sc1
        s_waitcnt vmcnt(0)
        s_branch Lpollm
        """)
        A.label("Lpollm_ok")
    def ld(dst, sb, off, tag):
        def f():
            A(f"s_add_u32 s{t4}, s{sb}, {off}")
            A.vmem(f"buffer_load_dwordx4 {v(dst,4)}, v2, {WS}, s{t4} offen sc1", tag)
        return f
    def h_bmm(n):
        def f():
            A.wait(vm=[f"wb{n}", f"ob{n}"])
            A(f"{MF32} {v(ACB,16)}, {v(WB_+4*n,4)}, {v(OB_+4*(n%NOB),4)}, {v(ACB,16) if n else 0}")
        return f
    def h_tailprep():
        A(f"""
        s_lshl_b32 s{t0}, s{sRT64}, 1
        s_add_u32 s{t0}, s{t0}, s{sCH}           ; to
        s_lshl_b32 s{t3}, s{t0}, 16
        s_lshl_b32 s{t2}, s{sW}, 12
        s_add_u32 s{t3}, s{t3}, s{t2}
        s_add_u32 s{sKV}, s{t3}, {OF}
        v_add_u32 v26, s{t2}, v2
        s_lshl_b32 s{t3}, s{sRT}, 14
        v_add_u32 v18, s{t3}, v2
        s_lshl_b32 s{t3}, s{sHD}, 12
        s_add_u32 s{t3}, s{t3}, {L_RED}
        v_add_u32 v19, s{t3}, v2
        v_lshlrev_b32 v11, 10, v5
        v_lshl_add_u32 v11, v3, 4, v11
        s_lshl_b32 s{t0}, s{t0}, 15
        s_lshl_b32 s{t3}, s{sCGQ}, 8
        s_add_u32 s{t0}, s{t0}, s{t3}
        s_lshl_b32 s{t3}, s{sHD}, 6
        s_add_u32 s{t0}, s{t0}, s{t3}
        s_lshl_b32 s{t3}, s{sRT}, 5
        s_add_u32 s{sWOB}, s{t0}, s{t3}
        """)
    hooks = {j: {0: [], 1: [], 2: []} for j in range(64)}
    KV0 = int(OPT.get("kv0", 1))
    for i in range(2, 8): hooks[i - 2 + KV0][0].append(h_kv(i))
    CN = int(OPT.get("cn", 6))
    hooks[CN][1].append(h_cnt)
    hooks[CN + 1][1].append(h_pub)
    T0 = int(OPT.get("t0", 38))
    hooks[T0 - 4][0].append(h_poll)
    hooks[T0][0].append(h_check)
    for n in range(16):
        hooks[T0 + n][0].append(ld(WB_ + 4 * n, sWO, 32768 + n * 1024, f"wb{n}"))
        hooks[T0 + n][1].append(ld(OB_ + 4 * (n % NOB), sXO, n * 1024, f"ob{n}"))
        hooks[T0 + 8 + n][2].append(h_bmm(n))
        hooks[T0 + 9 + n][1].append(ld(WB_ + 4 * n, sWO, n * 1024, f"wa{n}"))
    hooks[26][0].append(h_tailprep)
    if OPT.get("nohk"):
        for j in range(24, 64): hooks[j] = {0: [], 1: [], 2: []}
        hooks[26][0].append(h_tailprep)
    prios = {0: 3, CN + 2: 2, 12: 1, 14: 3, 40: 2, 54: 1, 61: 0}
    if OPT.get("prio") == "b": prios = {0: 3, 9: 2, 12: 1, 14: 3, 20: 2, 44: 1, 58: 0}
    if OPT.get("prio") == "c": prios = {0: 3, 10: 2, 14: 3, 20: 2, 54: 1, 62: 0}
    if OPT.get("prio") == "alt":
        prios = {}
    base = 0
    for j in range(64):
        if j in prios: A(f"s_setprio {prios[j]}")
        if OPT.get("prio") == "alt": A(f"s_setprio {3 - (j % 4)}")
        if j - base == 24:
            A(f"v_add_u32 v14, {24*TS}, v14\nv_add_u32 v15, {24*TS}, v15\nv_add_u32 v16, {24*TS}, v16")
            base = j
        tile(j, j - base, hooks[j])
        if j == 13:
            A.wait(vm="kv7"); A("s_barrier")
    A.wait(lg="all")
    A("s_nop 0")
    A(f"{SMF} {v(O,16)}, {v(V2,4)}, {v(SS[63 % 3]+8,8)}, v{IDX}")
    A.label("Lfinish")
    A(f"""
    s_setprio 3
    s_mov_b32 s{t3}, 0x53800000
    s_mov_b32 s{t5}, 0
    s_nop 6
    s_cmp_lg_u32 s{sPASS}, 0
    s_cbranch_scc1 Lfin
    v_cmp_ngt_f32 vcc, s{t3}, v{O+8}
    s_nop 1
    {"" if OPT.get("nofb") else "s_cbranch_vccnz Lfallback"}
    """)
    A.label("Lfin")
    stamp(A)
    A(f"v_rcp_f32 v9, v{O+8}\ns_nop 0")
    for i in range(8): A(f"v_mul_f32 v{O+i}, v{O+i}, v9")
    for i in range(4): A(f"v_cvt_pk_bf16_f32 v{108+i}, v{O+2*i}, v{O+2*i+1}")
    for i in range(4): A(f"v_min_u32 v{108+i}, -2, v{108+i}")
    A(f"buffer_store_dwordx4 v[108:111], v2, {WS}, s{sOA} offen sc1")
    A("s_setprio 0")
    A.label("Lpoll3")
    for i in range(4):
        A(f"buffer_load_dwordx4 {v(32+4*i,4)}, v2, {WS}, s{sKV} offen offset:{i*1024} sc1")
    A(f"s_add_u32 s{t5}, s{t5}, 1")
    A("s_waitcnt vmcnt(0)")
    A("v_max3_u32 v9, v32, v33, v34")
    for i in range(35, 47, 2): A(f"v_max3_u32 v9, v9, v{i}, v{i+1}")
    A(f"""
    v_max_u32 v9, v9, v47
    v_cmp_eq_u32 vcc, -1, v9
    s_cmp_gt_u32 s{t5}, {SPIN_MAX}
    s_cbranch_scc1 Lpoll3_ok
    s_cbranch_vccz Lpoll3_ok
    s_sleep {OPT.get("slp", 2)}
    s_branch Lpoll3
    """)
    A.label("Lpoll3_ok")
    stamp(A)
    A("s_barrier")
    stamp(A)
    for i in range(4):
        A(f"ds_write_b128 v26, {v(32+4*i,4)} offset:{i*1024}")
    A("s_waitcnt lgkmcnt(0)\ns_barrier")
    stamp(A)
    ACA = 48
    A.lg = []
    for n in range(8):
        A.lds(f"ds_read_b128 {v(64+4*n,4)}, v18 offset:{n*1024}", f"o{n}")
    for n in range(16):
        A.wait(lg=f"o{n}")
        A(f"{MF32} {v(ACA,16)}, {v(WB_+4*n,4)}, {v(64+4*(n%8),4)}, {v(ACA,16) if n else 0}")
        if n + 8 < 16:
            A.lds(f"ds_read_b128 {v(64+4*n,4)}, v18 offset:{(n+8)*1024}", f"o{n+8}")
    A("s_nop 9")
    A(f"s_cmp_lg_u32 s{sRT}, 0\ns_cbranch_scc1 Lred1")
    for kh in range(2):
        snd, keep = (8, 0) if kh == 0 else (0, 8)
        if kh: A.label("Lred1")
        for i in range(8): A(f"v_fmac_f32 v{ACB+snd+i}, v22, v{ACA+snd+i}")
        A(f"ds_write_b128 v19, {v(ACB+snd,4)} offset:{snd*256}\nds_write_b128 v19, {v(ACB+snd+4,4)} offset:{snd*256+1024}")
        for i in range(8): A(f"v_fmac_f32 v{ACB+keep+i}, v22, v{ACA+keep+i}")
        A("s_waitcnt lgkmcnt(0)\ns_barrier")
        A(f"ds_read_b128 v[64:67], v19 offset:{keep*256}\nds_read_b128 v[68:71], v19 offset:{keep*256+1024}")
        A("s_waitcnt lgkmcnt(0)")
        for i in range(8): A(f"v_add_f32 v{64+i}, v{64+i}, v{ACB+keep+i}")
        if kh == 0: A("s_branch Lred2")
    A.label("Lred2")
    for i in range(4): A(f"v_cvt_pk_bf16_f32 v{72+i}, v{64+2*i}, v{65+2*i}")
    A("s_nop 1\nv_permlane32_swap_b32 v72, v74\nv_permlane32_swap_b32 v73, v75")
    A(f"buffer_store_dwordx4 v[72:75], v11, s[{S_T}:{S_T+3}], s{sWOB} offen")
    if INSTR:
        stamp(A)
        A("s_waitcnt vmcnt(0)")
        stamp(A)
        A("s_memrealtime s[100:101]\ns_waitcnt lgkmcnt(0)\ns_mov_b64 exec, 1")
        A(f"s_lshl_b32 s56, s2, 3\ns_add_u32 s56, s56, s{sW}\ns_lshl_b32 s56, s56, 6\ns_add_u32 s56, s56, {32<<20}")
        A("v_mov_b32 v0, 0")
        for i in range(NST[0]):
            A(f"v_mov_b32 v1, s{68+2*i}\nbuffer_store_dword v1, v0, {WS}, s56 offen offset:{4*i}")
        A(f"v_mov_b32 v1, s{t5}\nbuffer_store_dword v1, v0, {WS}, s56 offen offset:52")
        A(f"v_mov_b32 v1, s100\nbuffer_store_dword v1, v0, {WS}, s56 offen offset:60")
        A(f"v_mov_b32 v1, s98\nbuffer_store_dword v1, v0, {WS}, s56 offen offset:56")
    A.label("Lend")
    A("s_endpgm")
    A.label("Lfallback")
    A.lg = []; A.vm = []
    A(f"s_setprio 0\ns_mov_b32 s{sPASS}, 1\nv_mov_b32 v14, v2\ns_mov_b32 s{sIT}, 0\nv_mov_b32 v9, 0xff800000")
    A.label("Lmaxloop")
    A(f"ds_read_b128 {v(KF,4)}, v14\nv_add_u32 v14, {TS}, v14\ns_waitcnt lgkmcnt(0)")
    A(f"{MF32} {v(SA,16)}, {v(KF,4)}, {v(Q,4)}, 0")
    A("s_nop 11")
    for i in range(0, 16, 2): A(f"v_max3_f32 v9, v9, v{SA+i}, v{SA+i+1}")
    A(f"s_add_u32 s{sIT}, s{sIT}, 1\ns_cmp_lt_u32 s{sIT}, 64\ns_cbranch_scc1 Lmaxloop")
    A("v_mov_b32 v10, v9\ns_nop 1\nv_permlane32_swap_b32 v9, v10\nv_max_f32 v9, v9, v10")
    for i in range(16): A(f"v_sub_f32 v{C+i}, 0, v9")
    for i in range(16): A(f"v_mov_b32 v{O+i}, 0")
    A("v_mov_b32 v14, v2\nv_mov_b32 v15, v7\nv_mov_b32 v16, v8")
    A(f"s_mov_b32 s{sIT}, 0")
    A.label("Lloop2")
    A(f"ds_read_b128 {v(KF,4)}, v14\nds_read_b128 {v(V1,4)}, v15\nds_read_b128 {v(V2,4)}, v16")
    A(f"v_add_u32 v14, {TS}, v14\nv_add_u32 v15, {TS}, v15\nv_add_u32 v16, {TS}, v16\ns_waitcnt lgkmcnt(0)")
    A(f"{MF32} {v(SA,16)}, {v(KF,4)}, {v(Q,4)}, {v(C,16)}")
    A("s_nop 11")
    for i in range(16): A(f"v_exp_f32 v{SA+i}, v{SA+i}")
    A("s_nop 1")
    A(f"{SMF} {v(O,16)}, {v(V1,4)}, {v(SA,8)}, v{IDX}")
    A(f"{SMF} {v(O,16)}, {v(V2,4)}, {v(SA+8,8)}, v{IDX}")
    A(f"s_nop 7\ns_add_u32 s{sIT}, s{sIT}, 1\ns_cmp_lt_u32 s{sIT}, 64\ns_cbranch_scc1 Lloop2")
    A("s_branch Lfinish")
    A.label("Lcode_end")
    return A.text()

def main():
    ref = open(f"cdna_kernels/{NAME}.s.ref").read().split("\n")
    head = [l for l in ref if l.startswith(";") and "@launch" not in l]
    head += ["; @launch grid=(256,1,1) block=(512,1,1) lds=163840"]
    out = "\n".join(head) + '\n.amdgcn_target "amdgcn-amd-amdhsa--gfx950"\n.text\n'
    t = kernel()
    for e in check(t): print("HAZARD", e)
    out += t + f""".section .rodata,"a"
.p2align 6
.amdhsa_kernel {KNAME}
  .amdhsa_next_free_vgpr 256
  .amdhsa_next_free_sgpr 102
  .amdhsa_accum_offset 256
  .amdhsa_group_segment_fixed_size 0
  .amdhsa_kernarg_size 80
  .amdhsa_user_sgpr_count 2
  .amdhsa_user_sgpr_kernarg_segment_ptr 1
  .amdhsa_system_sgpr_workgroup_id_x 1
.end_amdhsa_kernel
"""
    path = sys.argv[1] if len(sys.argv) > 1 else f"cdna_kernels/{NAME}.s"
    open(path, "w").write(out)
    r = subprocess.run(["clang", "-x", "assembler", "-target", "amdgcn-amd-amdhsa", "-mcpu=gfx950", "-c", path, "-o", "chk.o"], capture_output=True, text=True)
    if r.returncode: print("ASM ERROR", r.stderr[:1500])
    print("wrote", path, len(out), "stamps", NST[0])
main()
```

```python
import sys, os, subprocess
from asmlib import Asm, v, s, check

NAME = "gated_mix__mha_block__sliding_local_dilated__prompt"
KNAME = NAME + "_kernel"
OPT = dict(x.split("=") for x in os.environ.get("OPT", "").split(",") if x)
INSTR = os.environ.get("INSTR")
QF, KVF, OF, FL, WOF = 0, 2 << 20, 6 << 20, 10 << 20, 11 << 20
FA, FOB = FL, FL + 2048
WS_BYTES = 268435456
CSCALE = 0x3EB8AA3B
LOG2E = 0x3FB8AA3B
NEGBIG = 0xF149F2CA
ONES = 0x3f803f80
TS = 2080
U = 8192
L_H, L_G, L_GP = 17 * U, 155648, 156672
L_EX = 163840 - 256 - 12 * TS
L_GV = 163840 - 256
L_WT = 157696
L_RED = 65536
SPIN_MAX = 1 << 18

class G(Asm):
    def __init__(self):
        super().__init__()
        self.vm, self.lg = [], []
    def vmem(self, text, tag=None):
        self(text); self.vm.append(tag)
    def lds(self, text, tag=None):
        self(text); self.lg.append(tag)
    def _n(self, q, tags):
        if isinstance(tags, str): tags = [tags]
        idx = [i for i, t in enumerate(q) if t in tags]
        if not idx: return None
        return len(q) - 1 - idx[-1]
    def wait(self, vm=None, lg=None):
        parts = []
        if vm is not None:
            n = 0 if vm == "all" else self._n(self.vm, vm)
            if n is not None:
                assert n <= 63
                parts.append(f"vmcnt({n})"); self.vm = self.vm[len(self.vm) - n:] if n else []
        if lg is not None:
            n = 0 if lg == "all" else self._n(self.lg, lg)
            if n is not None:
                n = min(n, 15)
                parts.append(f"lgkmcnt({n})"); self.lg = self.lg[len(self.lg) - n:] if n else []
        if parts: self("s_waitcnt " + " ".join(parts))

def srd(A, d, base, nbytes):
    A(f"s_mov_b32 s{d}, s{base}\ns_mov_b32 s{d+1}, s{base+1}\ns_mov_b32 s{d+2}, {nbytes}\ns_mov_b32 s{d+3}, 0x20000")

NST = [0]
def stamp(A, mode="1", idx=None):
    if INSTR and (INSTR == mode or NST[0] == 0):
        i = NST[0] if idx is None else idx
        NST[0] = max(NST[0], i + 1)
        assert i < 13
        if i == 0: A("s_memrealtime s[98:99]")
        A(f"{'s_memrealtime' if os.environ.get('RT') else 's_memtime'} s[{68+2*i}:{69+2*i}]"); A.wait(lg="all")

S_X, S_WA, S_WB, S_WS, S_DBG, S_T = 16, 20, 24, 28, 32, 36
sW, sRT64, sCG, sCH, sCGQ, sH, sT, sRT, sHD, sN = 40, 41, 42, 43, 44, 45, 46, 47, 48, 49
sXO, sWO, sM1, sRDY, sPASS, sIT = 50, 51, 52, 53, 54, 55
t0, t1, t2, t3, t4, t5 = 56, 57, 58, 59, 60, 61
sKV, sKVL, sWOB, sSTG = 62, 63, 64, 65
sEXP, sOA, sQA = 3, 14, 15
sROT, sWC = sPASS, sIT
sD1, sD2, sAK, sAQ = 4, 5, 6, 7
MF16 = "v_mfma_f32_16x16x32_bf16"
MF32 = "v_mfma_f32_32x32x16_bf16"
SMF = "v_smfmac_f32_32x32x32_bf16"
IDX = 13
WS = f"s[{S_WS}:{S_WS+3}]"

def lanemask(fn):
    m = 0
    for l in range(64):
        if fn(l): m |= 1 << l
    return m

def kernel():
    A = G()
    A(f".globl {KNAME}\n.p2align 8\n.type {KNAME},@function")
    A.label(KNAME)
    A("s_cmp_ge_u32 s2, 256\ns_cbranch_scc1 Lend")
    stamp(A)
    A("""
    s_load_dwordx4 s[4:7], s[0:1], 0
    s_load_dwordx2 s[14:15], s[0:1], 48
    s_load_dwordx2 s[96:97], s[0:1], 72
    s_load_dwordx2 s[8:9], s[0:1], 16
    s_load_dwordx2 s[10:11], s[0:1], 32
    s_load_dwordx2 s[12:13], s[0:1], 40
    s_load_dwordx2 s[66:67], s[0:1], 56
    s_load_dwordx2 s[100:101], s[0:1], 64
    v_lshrrev_b32 v1, 6, v0
    s_and_b32 s56, s2, 7
    v_readfirstlane_b32 s40, v1
    v_and_b32 v1, 63, v0
    s_lshr_b32 s57, s2, 3
    """)
    A(f"""
    s_and_b32 s{sRT64}, s{t0}, 3
    s_lshl_b32 s{sRT64}, s{sRT64}, 3
    s_and_b32 s{t2}, s{t1}, 7
    s_add_u32 s{sRT64}, s{sRT64}, s{t2}
    s_lshr_b32 s{sCH}, s{t0}, 2
    s_lshr_b32 s{sCGQ}, s{t1}, 3
    s_lshl_b32 s{sCG}, s{sCH}, 2
    s_add_u32 s{sCG}, s{sCG}, s{sCGQ}
    s_lshl_b32 s{sH}, s{t0}, 2
    s_add_u32 s{sH}, s{sH}, s{sCGQ}
    s_lshl_b32 s{sT}, s{t2}, 3
    s_add_u32 s{sT}, s{sT}, s{sW}
    s_lshr_b32 s{sRT}, s{sW}, 2
    s_and_b32 s{sHD}, s{sW}, 3
    s_lshl_b32 s{sXO}, s{sRT64}, 16
    s_lshl_b32 s{t2}, s{sW}, 13
    s_add_u32 s{sXO}, s{sXO}, s{t2}
    s_mul_i32 s{sWO}, s{sW}, 8*3072
    s_lshl_b32 s{t2}, s{sCG}, 7
    s_add_u32 s{sWO}, s{sWO}, s{t2}
    s_lshl_b32 s{sM1}, s{sW}, 10
    s_and_b32 s{t3}, s{sW}, 1
    """)
    RM = OPT.get("rot", "4")
    if RM == "4": A(f"s_and_b32 s{sROT}, s{t1}, 3\ns_lshl_b32 s{sROT}, s{sROT}, 1\ns_add_u32 s{sROT}, s{sROT}, s{t0}")
    if RM == "0": A(f"s_mov_b32 s{sROT}, 0")
    if RM == "8": A(f"s_lshr_b32 s{sROT}, s{t1}, 3\ns_lshl_b32 s{sROT}, s{sROT}, 1\ns_add_u32 s{sROT}, s{sROT}, s{t1}\ns_add_u32 s{sROT}, s{sROT}, s{t0}")
    if RM == "2": A(f"s_and_b32 s{sROT}, s{t1}, 1\ns_lshl_b32 s{sROT}, s{sROT}, 2\ns_add_u32 s{sROT}, s{sROT}, s{t0}")
    A(f"""
    v_lshlrev_b32 v2, 4, v1
    v_lshrrev_b32 v9, 3, v1
    v_and_b32 v10, 7, v1
    v_lshrrev_b32 v15, 4, v1                 ; g
    v_xor_b32 v12, v10, v15
    v_lshlrev_b32 v12, 4, v12
    v_lshl_add_u32 v4, v9, 10, v12
    v_xor_b32 v5, 64, v4
    s_lshl_b32 s{t2}, s{t3}, 6
    v_xor_b32 v3, s{t2}, v4
    v_and_b32 v12, 1, v15
    v_lshlrev_b32 v12, 5, v12
    v_xor_b32 v12, s{t2}, v12
    v_lshlrev_b32 v13, 4, v10
    v_xor_b32 v12, v12, v13
    v_mul_u32_u24 v6, 3072, v9
    v_add_u32 v6, v6, v12
    s_waitcnt lgkmcnt(0)
    """)
    srd(A, S_X, 4, 2048 * 1024)
    srd(A, S_WA, 6, 512 * 3072)
    def code_pf():
        if OPT.get("nocpf"): return
        A(f"""
        s_getpc_b64 s[{t0}:{t0+1}]
        """)
        A.label("Lpc")
        A(f"""
        s_lshr_b32 s{t2}, s2, 3
        s_cmp_gt_u32 s{t2}, {int(OPT.get("cpfj", 0))}
        s_cbranch_scc1 Lnocpf
        s_lshl_b32 s{t2}, s{sW}, 13
        v_lshl_add_u32 v18, v1, 7, s{t2}
        v_min_u32 v18, Lcode_end-Lpc-4, v18
        global_load_dword v31, v18, s[{t0}:{t0+1}]
        """)
        A.label("Lnocpf")
    A(f"s_lshl_b32 s{sD2}, s{sCH}, 10\ns_sub_u32 s{sD1}, 1536, s{sD2}\ns_add_u32 s{sD2}, s{sD1}, 1024")

    unit_of = {}
    free_units = list(range(4, 17))
    xfree = {0, 1, 2, 3}
    pending = []
    SEQ = [int(c, 16) for c in OPT.get("seq", "0123456789abcdef")]
    assert sorted(SEQ) == list(range(16))
    PA = SEQ.index(7); PB0 = SEQ.index(8)
    for S in SEQ:
        if S < 8: pending.append(("x", S, 0))
        if S == 8: pending.append(("h", 8, 0))
        for seg in range(3): pending.append(("w", S, seg))
    dmode = ["sym"]
    def dma_item(it):
        kind, S, seg = it
        md = dmode[0]
        if kind == "x":
            xfree.remove(S % 4)
            if md == "none": return
            A(f"""
            s_add_u32 s{t4}, s{sROT}, {S}
            s_and_b32 s{t4}, s{t4}, 7
            s_lshl_b32 s{t4}, s{t4}, 7
            s_add_u32 m0, s{sM1}, {(S%4)*U}
            s_add_u32 s{t4}, s{t4}, s{sXO}
            """)
            A.vmem(f"buffer_load_dwordx4 v3, s[{S_X}:{S_X+3}], s{t4} offen lds", f"st{S}")
            if md == "dbl":
                A(f"s_sub_u32 m0, m0, 4096\ns_sub_u32 s{t4}, s{t4}, 32768")
                A.vmem(f"buffer_load_dwordx4 v3, s[{S_X}:{S_X+3}], s{t4} offen lds", f"st{S}")
        elif kind == "w":
            u = min(free_units)
            free_units.remove(u); unit_of[(S, seg)] = u
            if md == "none": return
            if OPT.get("skip") and seg >= 3 - int(OPT["skip"]): return
            sr = S_WA if S < 8 else S_WB
            if seg == 0:
                A(f"""
                s_add_u32 s{sWC}, s{sROT}, {S%8}
                s_and_b32 s{sWC}, s{sWC}, 7
                s_mul_i32 s{sWC}, s{sWC}, 196608
                s_add_u32 m0, s{sM1}, {u*U}
                s_add_u32 s{sWC}, s{sWC}, s{sWO}
                """)
                A.vmem(f"buffer_load_dwordx4 v6, s[{sr}:{sr+3}], s{sWC} offen lds", f"st{S}")
                if md == "dbl":
                    A(f"s_sub_u32 m0, m0, 4096\ns_sub_u32 s{t4}, s{sWC}, 98304")
                    A.vmem(f"buffer_load_dwordx4 v6, s[{sr}:{sr+3}], s{t4} offen lds", f"st{S}")
            else:
                A(f"s_add_u32 m0, s{sM1}, {u*U}\ns_add_u32 s{t4}, s{sWC}, {seg*1024 if S >= 8 else 's%d' % [0, sD1, sD2][seg]}")
                A.vmem(f"buffer_load_dwordx4 v6, s[{sr}:{sr+3}], s{t4} offen lds", f"st{S}")
                if md == "dbl":
                    A(f"s_sub_u32 m0, m0, 4096\ns_sub_u32 s{t4}, s{t4}, 98304")
                    A.vmem(f"buffer_load_dwordx4 v6, s[{sr}:{sr+3}], s{t4} offen lds", f"st{S}")
        else:
            A(f"""
            s_lshl_b32 s{t0}, s{sRT64}, 16
            s_sub_u32 s{t1}, s{t0}, 16384
            s_cmp_eq_u32 s{sRT64}, 0
            s_cselect_b32 s{t0}, s{t0}, s{t1}
            s_add_u32 s{t1}, s{sW}, s{sROT}
            s_and_b32 s{t1}, s{t1}, 7
            s_lshl_b32 s{t3}, s{t1}, 7
            s_add_u32 s{t0}, s{t0}, s{t3}
            s_lshl_b32 s{t1}, s{sM1}, 1
            s_add_u32 m0, s{t1}, {L_H}
            s_add_u32 s{t2}, s{t0}, 8192
            """)
            A.vmem(f"buffer_load_dwordx4 v4, s[{S_X}:{S_X+3}], s{t0} offen lds", "hl")
            A(f"s_add_u32 m0, s{t1}, {L_H+1024}\ns_lshl_b32 s{t1}, s{sW}, 7")
            A.vmem(f"buffer_load_dwordx4 v5, s[{S_X}:{S_X+3}], s{t2} offen lds", "hl")
            A(f"s_add_u32 m0, s{t1}, {L_G}\ns_mov_b64 exec, 0xff")
            A.vmem(f"buffer_load_dwordx4 v2, s[{S_T}:{S_T+3}], s{t3} offen lds", "hl")
            A("s_mov_b64 exec, -1")
    state = {"minh": PB0 <= 3}
    def next_dma():
        for i, it in enumerate(pending):
            if it[0] == "w" and not free_units: continue
            if it[0] == "x" and it[1] % 4 not in xfree: continue
            if it[0] == "h" and not state["minh"]: continue
            pending.pop(i); dma_item(it); return True
        return False
    if OPT.get("cpf1"): code_pf()
    for _ in range(4): next_dma()
    if not OPT.get("cpf1"): code_pf()
    MPF = OPT.get("mpf", "")
    if MPF:
        srd(A, S_WB, 10, 512 * 3072)
        A(f"""
        s_lshl_b32 s{t2}, s2, 3
        s_add_u32 s{t2}, s{t2}, s{sW}
        s_lshl_b32 s{t3}, s{t2}, 10
        s_mul_i32 s{t2}, s{t2}, 768
        v_lshlrev_b32 v18, 7, v1
        s_mov_b64 exec, 0x3f
        """)
        if "a" in MPF: A.vmem(f"buffer_load_dword v31, v18, s[{S_WA}:{S_WA+3}], s{t2} offen", "pf")
        if "b" in MPF: A.vmem(f"buffer_load_dword v31, v18, s[{S_WB}:{S_WB+3}], s{t2} offen", "pf")
        A("s_mov_b64 exec, 0xff")
        if "x" in MPF: A.vmem(f"buffer_load_dword v31, v18, s[{S_X}:{S_X+3}], s{t3} offen", "pf")
        A("s_mov_b64 exec, -1")
    srd(A, S_WS, 96, WS_BYTES)
    srd(A, S_T, 14, 1024)
    srd(A, S_WB, 10, 512 * 3072)
    A(f"s_lshl_b32 s{t2}, s2, 3\ns_add_u32 s{t2}, s{t2}, s{sW}\ns_cmp_lg_u32 s{t2}, 7\ns_cbranch_scc1 Lnoscan1")
    A(f"s_mov_b32 s{t4}, {FL}")
    for i in range(3):
        A(f"buffer_load_dwordx4 {v(240+4*i,4)}, v2, {WS}, s{t4} offen offset:{i*1024} sc1")
    A.label("Lnoscan1")
    nscan = len(A.vm)
    A("s_barrier")
    for _ in range(4): next_dma()
    srd(A, S_DBG, 100, 256)
    A(f"""
    v_and_b32 v14, 15, v1
    v_lshrrev_b32 v16, 1, v14
    v_xor_b32 v16, v16, v15
    v_lshlrev_b32 v16, 4, v16
    v_lshl_add_u32 v16, v14, 7, v16
    s_lshl_b32 s{t2}, s{sRT}, 12
    v_add_u32 v7, s{t2}, v16
    v_xor_b32 v8, 64, v7
    v_add_u32 v9, {L_H}, v16
    v_xor_b32 v10, 64, v9
    v_lshlrev_b32 v11, 4, v15
    s_lshl_b32 s{t2}, s{sHD}, 8
    s_add_u32 s{t2}, s{t2}, {L_G}
    v_add_u32 v11, s{t2}, v11
    v_bfe_u32 v18, v1, 2, 2                  ; r
    v_lshl_add_u32 v12, v15, 3, v18
    v_lshlrev_b32 v12, 7, v12
    v_bfe_u32 v18, v1, 3, 2
    v_xor_b32 v18, s{sHD}, v18
    v_lshl_add_u32 v12, v18, 5, v12
    v_and_b32 v18, 3, v1
    v_lshl_add_u32 v12, v18, 3, v12
    v_add_u32 v13, 65536, v12
    v_add_u32 v0, 131072, v12
    v_mov_b32 v20, 0
    v_and_b32 v24, 31, v1
    v_lshlrev_b32 v24, 2, v24
    """)
    NPRE = int(OPT.get("npre", 3))
    if NPRE >= 3:
        A("s_barrier")
        for _ in range(4): next_dma()
    A(f"""
    s_lshl_b32 s{t0}, s{sH}, 6
    s_add_u32 s{t1}, s{t0}, s{sT}
    s_lshl_b32 s{sQA}, s{t1}, 10
    s_add_u32 s{t0}, s{t0}, s{sW}
    s_lshl_b32 s{t0}, s{t0}, 11
    s_add_u32 s{sKV}, s{t0}, {KVF}
    s_mul_i32 s{sSTG}, s{sW}, {TS}
    s_mov_b32 s{sRDY}, 0
    s_lshl_b32 s{t0}, s{sT}, 6
    s_add_u32 s{t0}, s{t0}, s{sH}
    s_lshl_b32 s{t0}, s{t0}, 10
    s_add_u32 s{sOA}, s{t0}, {OF}
    s_lshl_b32 s{t2}, s{sRT64}, 1
    s_add_u32 s{t2}, s{t2}, s{sRT}
    s_lshl_b32 s{t1}, s{sCG}, 2
    s_add_u32 s{t1}, s{t1}, s{sHD}
    s_lshl_b32 s{t0}, s{t2}, 6
    s_add_u32 s{t0}, s{t0}, s{t1}
    s_lshl_b32 s{t0}, s{t0}, 10
    s_add_u32 s{sWOB}, s{t0}, {OF + 32768}
    s_lshl_b32 s{t0}, s{t1}, 6
    s_add_u32 s{t0}, s{t0}, s{t2}
    s_lshl_b32 s{sAQ}, s{t0}, 10
    s_xor_b32 s{t0}, s{t0}, 1024
    s_lshl_b32 s{t0}, s{t0}, 11
    s_add_u32 s{sAK}, s{t0}, {KVF}
    s_and_b32 s{sKVL}, s2, 3
    s_lshl_b32 s{sKVL}, s{sKVL}, 8
    s_add_u32 s{sKVL}, s{sKVL}, {FA}
    s_mul_i32 s{t0}, s{sHD}, {3*TS}
    s_mul_i32 s{t1}, s{sRT}, {TS}
    s_add_u32 s{t0}, s{t0}, s{t1}
    s_add_u32 s{sEXP}, s{t0}, {L_EX}
    """)
    A(f"""
    v_lshrrev_b32 v18, 5, v1
    v_lshlrev_b32 v16, 9, v18
    v_lshl_add_u32 v16, v14, 4, v16
    v_add_u32 v16, 1024, v16
    v_add_u32 v17, 256, v16
    v_mov_b32 v19, 2064
    v_mov_b32 v18, 2048
    s_mov_b32 vcc_lo, 0x00110000
    s_mov_b32 vcc_hi, 0x00110000
    v_cndmask_b32 v19, v19, v18, vcc
    s_mov_b32 vcc_lo, 0x0000ffff
    s_mov_b32 vcc_hi, 0x0000ffff
    v_cndmask_b32 v16, v19, v16, vcc
    v_cndmask_b32 v17, v19, v17, vcc
    v_lshrrev_b32 v18, 1, v1
    v_and_b32 v19, 1, v1
    v_mul_u32_u24 v26, {8*TS}, v18
    v_lshl_add_u32 v26, v19, 4, v26
    v_add_u32 v26, s{sSTG}, v26
    v_mul_u32_u24 v27, {TS}, v18
    v_lshl_add_u32 v27, v19, 4, v27
    v_add_u32 v27, {L_EX+2048}, v27
    v_mov_b32 v25, {L_GV}
    """)
    A(f"""
    v_lshrrev_b32 v19, 1, v15
    v_and_b32 v18, 1, v15
    v_lshlrev_b32 v28, 9, v19
    v_lshl_add_u32 v28, v18, 3, v28
    s_mul_i32 s{t2}, s{sRT}, {TS - 1024}
    s_sub_u32 s{t2}, s{sEXP}, s{t2}
    s_add_u32 s{t2}, s{t2}, 256
    v_lshl_add_u32 v28, v14, 4, v28
    v_add_u32 v28, s{t2}, v28
    s_lshl_b32 s{t2}, s{sRT}, 9
    s_add_u32 s{t2}, s{t2}, {L_GP}
    s_lshl_b32 s{t3}, s{sHD}, 2
    s_add_u32 s{t3}, s{t3}, s{t2}
    v_lshl_add_u32 v29, v24, 2, s{t3}
    s_lshl_b32 s{t3}, s{sCH}, 9
    s_add_u32 s{t3}, s{t3}, {L_GP}
    v_mov_b32 v18, s{t2}
    v_mov_b32 v19, s{t3}
    s_mov_b32 vcc_lo, -1
    s_mov_b32 vcc_hi, 0
    v_cndmask_b32 v18, v19, v18, vcc
    v_lshl_add_u32 v30, v24, 2, v18
    """)
    A("v_mov_b32 v21, 0")
    A.lds("ds_write_b64 v25, v[20:21]")
    AC = 32
    SA, SB = 64, 80
    key = lambda i, hh: 8 * (i // 4) + 4 * hh + i % 4
    okd = lambda d: 0 <= d <= 14 and d % 2 == 0
    A(f"""
    v_mov_b32 v18, {hex(NEGBIG)}
    s_or_b32 s{t2}, s{sRT64}, s{sRT}
    s_cmp_eq_u32 s{t2}, 0
    s_cselect_b32 s{t2}, {hex(NEGBIG)}, 0
    v_mov_b32 v19, s{t2}
    """)
    A(f"v_add_u32 v31, {L_WT}, v2" if False else "")
    A(f"s_cmp_lg_u32 s{sW}, 1\ns_cbranch_scc1 Lnomask")
    for i in range(16):
        m = lanemask(lambda l: okd((l & 31) - key(i, l >> 5)))
        A(f"s_mov_b32 vcc_lo, {hex(m & 0xffffffff)}\ns_mov_b32 vcc_hi, {hex(m >> 32)}\nv_cndmask_b32 v{SA+i}, v18, v20, vcc")
    A(f"v_add_u32 v22, {L_WT}, v2")
    for i in range(4): A(f"ds_write_b128 v22, {v(SA+4*i,4)} offset:{i*1024}")
    A("s_waitcnt lgkmcnt(0)")
    A.label("Lnomask")
    for i in range(8, 16):
        m = lanemask(lambda l: okd((l & 31) + 32 - key(i, l >> 5)))
        A(f"s_mov_b32 vcc_lo, {hex(m & 0xffffffff)}\ns_mov_b32 vcc_hi, {hex(m >> 32)}\nv_cndmask_b32 v{SB+i}, v18, v19, vcc")
    A(f"s_lshl_b32 s{t2}, s2, 3\ns_add_u32 s{t2}, s{t2}, s{sW}\ns_cmp_lg_u32 s{t2}, 7\ns_cbranch_scc1 Lnoscan2")
    A(f"s_waitcnt vmcnt({len(A.vm) - nscan})\ns_mov_b32 s{t4}, 0")
    A.label("Lscan")
    A(f"s_add_u32 s{t4}, s{t4}, 1\ns_mov_b64 exec, -1")
    for i in range(12):
        A(f"v_cmpx_ne_u32 vcc, s{t4}, v{240+i}")
    A("s_nop 1\ns_cmp_eq_u64 exec, -1\ns_cbranch_scc0 Lscan")
    A(f"v_mov_b32 v21, s{t4}\ns_mov_b64 exec, 1")
    A(f"buffer_store_dword v21, v20, s[{S_DBG}:{S_DBG+3}], 0 offen sc1")
    A("s_mov_b64 exec, -1")
    A.label("Lnoscan2")
    if NPRE >= 4:
        for _ in range(4): next_dma()

    FB = [96, 112]
    XF = lambda S, u, sub: 128 + 8 * (2 * (S % 8) + u) + 4 * sub
    def reads(S, u):
        if OPT.get("nord"): return []
        b = FB[u]; kc = S % 8
        tg = f"r{S}_{u}"
        L = []
        rd = lambda text, tag: L.append(lambda: A.lds(text, tag))
        def wr(seg):
            un = unit_of.get((S, seg), 8)
            wb, so = [12, 13, 0][un // 8], (un % 8) * U
            for t in range(2):
                rd(f"ds_read_b64_tr_b16 {v(b+4*seg+2*t,2)}, v{wb} offset:{so + u*4096 + t*512}", f"{tg}w{seg}")
        if S < 8:
            rd(f"ds_read_b128 {v(XF(S,u,0),4)}, v{7+u} offset:{(kc%4)*U}", tg + "x0")
            wr(0)
            rd(f"ds_read_b128 {v(XF(S,u,1),4)}, v{7+u} offset:{(kc%4)*U+2048}", tg + "x1")
            wr(1); wr(2)
        else:
            wr(0); wr(1); wr(2)
            rd(f"ds_read_b128 {v(b+12,4)}, v{9+u} offset:{kc*2048}", tg + "e")
        return L
    def mms(S, u, rt):
        b = FB[u]; ac = AC if S >= 8 else 64
        tg = f"r{S}_{u}"
        L = []
        def mm(d, a_, b_, tags):
            def f():
                A.wait(lg=[tg + t for t in tags])
                if not OPT.get("nomm"): A(f"{MF16} {v(d,4)}, {v(a_,4)}, {v(b_,4)}, {0 if (S % 8 == 0 and u == 0) else v(d,4)}")
            L.append(f)
        for sub in range(2): mm(ac + 4 * sub, b, XF(S, u, sub), ["w0", f"x{sub}"])
        for sub in range(2): mm(ac + 8 + 4 * sub, b + 4, XF(S, u, sub), ["w1", f"x{sub}"])
        for sub in range(2): mm(ac + 16 + 4 * sub, XF(S, u, sub), b + 8, ["w2", f"x{sub}"])
        if S < 8: pass
        elif rt == 0: mm(ac + 24, b + 4, b + 12, ["e"])
        else: mm(ac + 24, b + 12, b + 8, ["e"])
        if S % 8 == 7 and u == 1: L = L[2:] + L[0:2]
        return L

    def scale_q(ac, dq):
        A(f"s_mov_b32 s{t5}, {hex(CSCALE)}")
        for i in range(4):
            A(f"""
            v_cvt_pk_bf16_f32 v18, v{ac+2*i}, v{ac+2*i+1}
            v_and_b32 v19, 0xffff0000, v18
            v_lshlrev_b32 v18, 16, v18
            v_mul_f32 v18, s{t5}, v18
            v_mul_f32 v19, s{t5}, v19
            v_cvt_pk_bf16_f32 v{dq+i}, v18, v19
            """)
    GFR = [64, 68, 72, 76]
    GAC = [80, 84]
    def a_epilogue():
        A("s_nop 3")
        for i in range(4): A(f"v_cvt_pk_bf16_f32 v{60+i}, v{72+2*i}, v{73+2*i}")
        for i in range(4): A(f"v_cvt_pk_bf16_f32 v{72+i}, v{80+2*i}, v{81+2*i}")
        A("v_permlane16_swap_b32 v60, v62\nv_permlane16_swap_b32 v61, v63")
        A.vmem(f"buffer_store_dwordx4 v[60:63], v2, {WS}, s{sAK} offen sc1", "ast")
        A("v_permlane16_swap_b32 v72, v74\nv_permlane16_swap_b32 v73, v75")
        A.vmem(f"buffer_store_dwordx4 v[72:75], v2, {WS}, s{sAK} offen offset:1024 sc1", "ast")
        scale_q(64, 76)
        A("s_nop 1\nv_permlane16_swap_b32 v76, v78\nv_permlane16_swap_b32 v77, v79")
        A.vmem(f"buffer_store_dwordx4 v[76:79], v2, {WS}, s{sAQ} offen sc1", "ast")
        A.vmem(f"buffer_load_dword v21, v20, s[{S_DBG}:{S_DBG+3}], 0 offen sc1", "nonce")
    def mask_back():
        A(f"v_add_u32 v22, {L_WT}, v2")
        for i in range(4): A.lds(f"ds_read_b128 {v(SA+4*i,4)}, v22 offset:{i*1024}", "mb")
    def gate_reads():
        for k in range(4):
            A.lds(f"ds_read_b128 {v(GFR[k],4)}, v11 offset:{k*64}", "gf")
    def gate_mm(sfx):
        A.wait(lg="gf")
        for hd in range(4):
            if hd < 3:
                A(f"s_cmp_lg_u32 s{sHD}, {hd}\ns_cbranch_scc1 Lg{hd}{sfx}")
            for k in range(4):
                for sub in range(2):
                    A(f"{MF16} {v(GAC[sub],4)}, {v(GFR[k],4)}, {v(XF(2*hd + k//2, k%2, sub),4)}, {v(GAC[sub],4) if k else 0}")
            if hd < 3:
                A(f"s_branch Lgd{sfx}")
                A.label(f"Lg{hd}{sfx}")
        A.label(f"Lgd{sfx}")
    def gate_part():
        A(f"""
        s_mov_b32 vcc_lo, 0x0000ffff
        s_mov_b32 vcc_hi, 0x0000ffff
        v_cndmask_b32 v18, v{GAC[1]}, v{GAC[0]}, vcc
        """)
        A.lds("ds_write_b32 v29, v18", "gp")
    def gate_fin():
        A.lds("ds_read_b128 v[84:87], v30", "gq")
        A(f"""
        v_mov_b32 v80, {hex(ONES)}
        s_mov_b32 vcc_lo, 0x55555555
        s_mov_b32 vcc_hi, 0x55555555
        v_cndmask_b32 v80, 0, v80, vcc
        v_mov_b32 v81, v80
        v_mov_b32 v82, v80
        v_mov_b32 v83, v80
        v_lshrrev_b32 v3, 5, v1
        v_and_b32 v5, 31, v1
        v_add_u32 v11, s{sEXP}, v2
        v_add_u32 v7, s{sEXP}, v16
        v_add_u32 v8, s{sEXP}, v17
        v_lshl_add_u32 v4, v3, 10, v24
        """)
        A.wait(lg="gq")
        A(f"""
        v_add_f32 v84, v84, v85
        v_add_f32 v86, v86, v87
        v_add_f32 v18, v84, v86
        v_cvt_pk_bf16_f32 v18, v18, v18
        v_lshlrev_b32 v18, 16, v18
        v_mul_f32 v18, {hex(LOG2E ^ 0x80000000)}, v18
        v_exp_f32 v18, v18
        s_nop 0
        v_add_f32 v18, 1.0, v18
        v_rcp_f32 v18, v18
        s_nop 0
        v_cvt_pk_bf16_f32 v18, v18, v18
        v_lshlrev_b32 v23, 16, v18
        v_lshlrev_b32 v22, 16, v18
        s_nop 1
        v_permlane32_swap_b32 v23, v22
        v_sub_f32 v18, 1.0, v23
        v_cvt_pk_bf16_f32 v18, v18, v18
        v_lshlrev_b32 v23, 16, v18               ; 1-g
        """)

    def get_nonce(lbl):
        A(f"s_mov_b32 s{t5}, 0")
        A.label(lbl)
        A(f"""
        v_readfirstlane_b32 s{sN}, v21
        s_add_u32 s{t5}, s{t5}, 1
        s_cmp_lg_u32 s{sN}, 0
        s_cbranch_scc1 {lbl}_ok
        s_cmp_gt_u32 s{t5}, {SPIN_MAX}
        s_cbranch_scc1 {lbl}_ok
        s_sleep 2
        buffer_load_dword v21, v20, s[{S_DBG}:{S_DBG+3}], 0 offen sc1
        s_waitcnt vmcnt(0)
        s_branch {lbl}
        """)
        A.label(lbl + "_ok")

    def capture(fn, *args):
        keep_lines = A.lines
        rec = []
        A.lines = []
        ov, ol, ow = A.vmem, A.lds, A.wait
        def flush():
            for l in A.lines: rec.append(("i", l))
            A.lines = []
        A.vmem = lambda text, tag=None: (flush(), rec.append(("vm", text, tag)))
        A.lds = lambda text, tag=None: (flush(), rec.append(("lg", text, tag)))
        A.wait = lambda vm=None, lg=None: (flush(), rec.append(("w", vm, lg)))
        fn(*args); flush()
        A.vmem, A.lds, A.wait = ov, ol, ow
        A.lines = keep_lines
        out, grp = [], []
        def mk(g):
            def f():
                for r in g:
                    if r[0] == "i": A(r[1])
                    elif r[0] == "vm": A.vmem(r[1], r[2])
                    elif r[0] == "lg": A.lds(r[1], r[2])
                    else: A.wait(r[1], r[2])
            return f
        for r in rec:
            grp.append(r)
            if r[0] == "i" and r[1].strip().startswith("s_"): continue
            if r[0] == "w": continue
            out.append(mk(grp)); grp = []
        if grp: out.append(mk(grp))
        return out
    bg = []
    ASYM = OPT.get('asym', '1') == '1'
    def group(m, rds, ndma, must=()):
        rds, must = list(rds), list(must)
        n = len(m)
        dslots = [int((k + 0.5) * n / ndma) for k in range(ndma)] if ndma else []
        if OPT.get("dpos", "spread") == "front" and ASYM:
            k = len(rds) if dmode[0] == "dbl" and OPT.get("rdfirst", "1") == "1" else 0
            for _ in range(k): rds.pop(0)()
            for _ in range(ndma):
                if not OPT.get("nodma"): next_dma()
            dslots = []
        for i, f in enumerate(m):
            f()
            k = -(-len(rds) // max(1, n - 1 - i)) if i < n - 1 else len(rds)
            for _ in range(k):
                if rds: rds.pop(0)()
            did = False
            if i in dslots and not OPT.get("nodma"): did = next_dma()
            if i >= 1 and must:
                k = -(-len(must) // (n - i))
                for _ in range(k):
                    if must: must.pop(0)()
            elif not did and (i % 2 == 1 or PA >= 10):
                if bg: bg.pop(0)()
        for f in rds + must: f()

    Q, KF, V1, V2 = 28, 96, 100, 104
    def kv_first():
        A(f"s_mov_b32 m0, s{sSTG}")
        A(f"buffer_load_dwordx4 {v(Q,4)}, v2, {WS}, s{sQA} offen sc1")
        A(f"buffer_load_dwordx4 v2, {WS}, s{sKV} offen sc1 lds")
        A(f"buffer_load_dwordx4 v2, {WS}, s{sKV} offen offset:1024 sc1 lds")
        A(f"s_add_u32 m0, s{sSTG}, {8*TS}\ns_add_u32 s{t4}, s{sKV}, {8*2048}")
        A(f"buffer_load_dwordx4 v2, {WS}, s{t4} offen sc1 lds")
        A(f"buffer_load_dwordx4 v2, {WS}, s{t4} offen offset:1024 sc1 lds")
        A(f"s_mov_b32 s{sRDY}, 1")

    PUB = int(OPT.get("pub", 2))
    def rel_stage(S):
        for seg in range(3):
            if (S, seg) in unit_of: free_units.append(unit_of[(S, seg)])
        if S < 4: xfree.add(S)
        elif S < 8: free_units.append(S % 4)
    ND = int(OPT.get("nd", 4))
    HPOS = max(0, PB0 - 4)
    def stage(p, rt=None):
        S = SEQ[p]; N = SEQ[p + 1] if p < 15 else None
        q = p - PA - 1
        sfx = "" if rt is None else f"_{rt}"
        must = []
        if q == 0: must = [lambda: None] * 2 + capture(gate_part) + capture(mask_back)
        PAUSE = int(OPT.get("pause", 3))
        nd0 = 0 if 0 <= 2 * q < PAUSE else ND
        nd1 = 0 if 0 <= 2 * q + 1 < PAUSE else ND
        group(mms(S, 0, rt), reads(S, 1), nd0, must)
        if S == 7:
            A("s_barrier"); rel_stage(SEQ[p - 1])
            group(mms(S, 1, rt), [], ND, [])
            return
        if q == 0: A.wait(lg="gp")
        if q == 1: A.wait(lg="mb")
        if p == 15:
            while bg: bg.pop(0)()
            if rt == 0:
                A.wait(vm="wod")
                A.lds("ds_read_b64_tr_b16 v[60:61], v6", "wt")
                A.lds("ds_read_b64_tr_b16 v[62:63], v6 offset:512", "wt")
        if q == PUB: A.wait(vm=[f"st{N}", "ast", "nonce"])
        elif N == 8 or N == 7: A.wait(vm=[f"st{N}", "hl"])
        elif p < 15: A.wait(vm=f"st{N}")
        else: A.wait(lg="all")
        A("s_barrier")
        if p >= 8: stamp(A, "B", p - 7)
        if p < 8: stamp(A, "A", p + 1)
        if p >= 1 and q != 0: rel_stage(SEQ[p - 1])
        if p == HPOS: state["minh"] = True
        if q == 0: bg.extend(capture(gate_fin))
        if q == PUB:
            get_nonce("Lnonce" + sfx)
            if rt == 0:
                A(f"s_cmp_lg_u32 s{sW}, 0\ns_cbranch_scc1 Lnofa")
                A(f"""
                s_lshl_b32 s{t0}, s{sCG}, 8
                s_lshl_b32 s{t1}, s{sRT64}, 2
                s_add_u32 s{t0}, s{t0}, s{t1}
                s_add_u32 s{t0}, s{t0}, {FA}
                s_mov_b64 exec, 1
                buffer_store_dword v21, v20, {WS}, s{t0} offen sc1
                s_mov_b64 exec, -1
                """)
                A.label("Lnofa")
        if p == max(12, PA + 2) and rt == 0:
            A(f"""
            s_cmp_eq_u32 s{sCH}, 0
            s_cselect_b32 s{S_WA}, s8, s12
            s_cselect_b32 s{S_WA+1}, s9, s13
            s_mov_b32 s{S_WA+2}, 512*1024
            v_and_b32 v60, 3, v1
            v_lshrrev_b32 v61, 2, v1
            v_lshlrev_b32 v61, 10, v61
            v_lshl_add_u32 v61, v60, 4, v61
            s_lshl_b32 s{t0}, s{sRT64}, 14
            s_lshl_b32 s{t1}, s{sCGQ}, 8
            s_add_u32 s{t0}, s{t0}, s{t1}
            s_lshl_b32 s{t1}, s{sHD}, 6
            s_add_u32 m0, s{sM1}, {L_WT}
            s_add_u32 s{t0}, s{t0}, s{t1}
            """)
            assert ASYM
            A.vmem(f"buffer_load_dwordx4 v61, s[{S_WA}:{S_WA+3}], s{t0} offen lds", "wod")
            A(f"""
            v_bfe_u32 v61, v1, 2, 2
            v_lshrrev_b32 v62, 5, v1
            v_lshl_add_u32 v62, v62, 2, v61
            v_lshlrev_b32 v62, 6, v62
            v_bfe_u32 v61, v1, 4, 1
            v_lshl_add_u32 v62, v61, 5, v62
            v_lshl_add_u32 v62, v60, 3, v62
            s_add_u32 s{t2}, s{sM1}, {L_WT}
            v_add_u32 v6, s{t2}, v62
            """)
        if p == 15 and rt == 1:
            A(f"s_cmp_lg_u32 s{sW}, 7\ns_cbranch_scc1 Lnp0\nbuffer_load_dword v0, v4, {WS}, s{sKVL} offen sc1")
            A.label("Lnp0")
        for seg in range(3):
            assert p == 15 or OPT.get("nodma") or (N, seg) in unit_of, (S, seg)
        group(mms(S, 1, rt), reads(N, 0) if p < 15 else [], nd1, [])

    A.wait(vm="st0"); A("s_barrier")
    stamp(A)
    for f in reads(0, 0): f()
    A(f"s_cmp_lg_u32 s{sRT}, 0\ns_cbranch_scc1 LB1")
    save = (list(A.vm), list(A.lg), dict(unit_of), list(free_units), list(pending), set(xfree), NST[0])
    for rt in range(2):
        if rt == 1:
            A.label("LB1")
            A.vm, A.lg = list(save[0]), list(save[1])
            unit_of.clear(); unit_of.update(save[2]); free_units[:] = save[3]; pending[:] = save[4]
            xfree.clear(); xfree.update(save[5]); state["minh"] = PB0 <= 3
            if INSTR == "1": NST[0] = save[6]
            if OPT.get("pprio", "1") == "1": A("s_setprio 1")
        dmode[0] = ("none", "dbl")[rt] if ASYM else "sym"
        for p in range(PA + 1):
            stage(p, rt)
        a_epilogue()
        gate_reads()
        stamp(A)
        gate_mm(f"_{rt}")
        A.wait(vm=f"st{SEQ[PA+1]}"); A("s_barrier")
        rel_stage(7)
        for f in reads(SEQ[PA + 1], 0): f()
        for p in range(PA + 1, 16):
            stage(p, rt)
        if rt == 0: A("s_branch LBdone")
        else: A("s_setprio 0")
    A.label("LBdone")
    assert not pending or OPT.get("nodma")
    stamp(A)
    A.vm = []
    A("s_mov_b64 exec, 0xffff")
    A.lds("ds_write_b128 v26, v[80:83] offset:2048")
    A("s_mov_b64 exec, 0xffffff")
    A.lds("ds_write_b128 v27, v[80:83]")
    A("s_mov_b64 exec, -1")
    for i in range(4): A(f"v_cvt_pk_bf16_f32 v{104+i}, v{40+2*i}, v{41+2*i}")
    for i in range(4): A(f"v_cvt_pk_bf16_f32 v{108+i}, v{48+2*i}, v{49+2*i}")
    A("v_cvt_pk_bf16_f32 v96, v56, v57\nv_cvt_pk_bf16_f32 v97, v58, v59")
    A("""
    v_permlane16_swap_b32 v104, v106
    v_permlane16_swap_b32 v105, v107
    v_permlane16_swap_b32 v108, v110
    v_permlane16_swap_b32 v109, v111
    """)
    A.lds("ds_write_b64 v28, v[96:97]")
    A.lds(f"ds_write_b128 v11, v[104:107] offset:{TS}")
    A.lds(f"ds_write_b128 v11, v[108:111] offset:{TS+1024}")
    scale_q(32, 100)
    A("s_nop 1\nv_permlane16_swap_b32 v100, v102\nv_permlane16_swap_b32 v101, v103")
    A.wait(lg="all"); A("s_barrier")
    A(f"{MF32} {v(SA,16)}, v[104:107], v[100:103], {v(SA,16)}")
    A.lds("ds_read_b128 v[96:99], v11", "kp")
    A.lds(f"ds_read_b128 v[108:111], v7 offset:{TS}", "vb")
    A.lds(f"ds_read_b128 v[120:123], v8 offset:{TS}", "vb")
    A.lds("ds_read_b128 v[124:127], v8", "vb")
    A(f"s_cmp_lg_u32 s{sW}, 7\ns_cbranch_scc1 Lnp1\ns_mov_b32 s{t5}, 0")
    A.label("Lpoll1")
    A(f"""
    s_add_u32 s{t5}, s{t5}, 1
    s_waitcnt vmcnt(0)
    v_cmp_ne_u32 vcc, s{sN}, v0
    s_cmp_gt_u32 s{t5}, {SPIN_MAX}
    s_cbranch_scc1 Lpoll1_ok
    s_cbranch_vccz Lpoll1_ok
    s_sleep 1
    buffer_load_dword v0, v4, {WS}, s{sKVL} offen sc1
    s_branch Lpoll1
    """)
    A.label("Lpoll1_ok")
    A("ds_write_b32 v25, v21")
    kv_first()
    A.label("Lnp1")
    A.wait(lg="kp")
    A(f"{MF32} {v(SB,16)}, v[96:99], v[100:103], {v(SB,16)}")
    A.lds("ds_read_b32 v0, v25", "rd")
    OBA = 32
    A(f"v_mov_b32 v{IDX}, 0xdddddddd")
    for i in range(16): A(f"v_mov_b32 v{OBA+i}, 0")
    regs = [SA + i for i in range(16)] + [SB + i for i in range(8, 16)]
    A(f"v_max3_f32 v9, v{regs[0]}, v{regs[1]}, v{regs[2]}")
    for i in range(3, 23, 2): A(f"v_max3_f32 v9, v9, v{regs[i]}, v{regs[i+1]}")
    A(f"v_max_f32 v9, v9, v{regs[23]}")
    def ldscheck(lbl):
        A(f"""
        s_cmp_lg_u32 s{sRDY}, 0
        s_cbranch_scc1 {lbl}
        s_waitcnt lgkmcnt(0)
        v_readfirstlane_b32 s{t2}, v0
        s_nop 0
        s_cmp_eq_u32 s{t2}, 0
        s_cbranch_scc1 {lbl}
        """)
        kv_first()
        A.label(lbl)
    A("v_mov_b32 v10, v9")
    ldscheck("Lck1")
    A("s_nop 0\nv_permlane32_swap_b32 v9, v10\nv_max_f32 v9, v9, v10")
    A.lds("ds_read_b32 v0, v25", "rd")
    for r in regs: A(f"v_sub_f32 v{r}, v{r}, v9")
    ldscheck("Lck2")
    A.wait(lg="all")
    for k in range(3):
        for r in regs[8*k:8*k+8]: A(f"v_exp_f32 v{r}, v{r}")
        if k: A(f"{SMF} {v(OBA,16)}, {['v[108:111]','v[120:123]'][k-1]}, {v(regs[8*k-8],8)}, v{IDX}")
    for i in range(2): A(f"v_mov_b32 v{48+i}, 0")
    A(f"{SMF} {v(OBA,16)}, v[124:127], {v(regs[16],8)}, v{IDX}")
    stamp(A)
    A(f"s_cmp_lg_u32 s{sRDY}, 0\ns_cbranch_scc1 Lrdy\ns_mov_b32 s{t5}, 0")
    A.label("Lspin")
    A(f"""
    ds_read_b32 v0, v25
    s_add_u32 s{t5}, s{t5}, 1
    s_waitcnt lgkmcnt(0)
    v_readfirstlane_b32 s{t2}, v0
    s_cmp_gt_u32 s{t5}, {SPIN_MAX*16}
    s_cbranch_scc1 Lspin_ok
    s_cmp_lg_u32 s{t2}, 0
    s_cbranch_scc1 Lspin_ok
    s_sleep 1
    s_branch Lspin
    """)
    A.label("Lspin_ok")
    kv_first()
    A.label("Lrdy")
    C, O = 32, 48
    SS = [64, 80, 112]
    srd(A, S_T, 66, 2048 * 1024)
    A(f"""
    s_lshl_b32 s{t0}, s{sCGQ}, 2
    s_add_u32 s{t0}, s{t0}, s{sHD}
    s_lshl_b32 s{t0}, s{t0}, 16
    s_lshl_b32 s{t1}, s{sRT}, 14
    s_add_u32 s{t2}, s{t0}, s{t1}
    s_add_u32 s{sWO}, s{t2}, {WOF}
    s_lshl_b32 s{t2}, s{sCH}, 15
    s_add_u32 s{t0}, s{t0}, s{t2}
    s_lshl_b32 s{t2}, s{sRT64}, 10
    s_add_u32 s{t0}, s{t0}, s{t2}
    s_add_u32 s{sAK}, s{t0}, {WOF}
    s_lshl_b32 s{t0}, s{sRT64}, 1
    s_add_u32 s{t0}, s{t0}, s{sCH}
    s_lshl_b32 s{t0}, s{t0}, 16
    s_add_u32 s{t0}, s{t0}, s{t1}
    s_add_u32 s{sXO}, s{t0}, {OF + 32768}
    """)
    A(f"v_rcp_f32 v9, v{OBA+8}\ns_nop 0\nv_mul_f32 v9, v9, v23")
    for i in range(8): A(f"v_mul_f32 v{OBA+i}, v{OBA+i}, v9")
    for i in range(4): A(f"v_cvt_pk_bf16_f32 v{108+i}, v{OBA+2*i}, v{OBA+2*i+1}")
    A(f"s_cmp_lg_u32 s{sRT}, 0\ns_cbranch_scc1 Lnowt2\nbuffer_store_dwordx4 v[60:63], v2, {WS}, s{sAK} offen sc1")
    A.label("Lnowt2")
    for i in range(4): A(f"v_mov_b32 v{128+i}, -1")
    A.vm = ["kvf"]
    A.vmem(f"buffer_store_dwordx4 v[108:111], v2, {WS}, s{sWOB} offen sc1", "obst")
    A.vmem(f"buffer_store_dwordx4 v[128:131], v2, {WS}, s{sOA} offen sc1", "sent")
    for i in range(2, 16): A(f"v_mov_b32 v{O+i}, 0")
    for i in range(8, 16): A(f"v_mov_b32 v{SS[2]+i}, 0")
    A("v_mov_b32 v7, v16\nv_mov_b32 v8, v17\nv_mov_b32 v14, v2\nv_mov_b32 v15, v16\nv_mov_b32 v16, v17")
    A(f"s_cmp_lg_u32 s{sRT}, 0\ns_cbranch_scc1 Lw2\ns_waitcnt vmcnt(3)\ns_branch Lw3")
    A.label("Lw2")
    A.wait(vm="kvf")
    A.label("Lw3")
    A("s_barrier")
    stamp(A)
    A.lds(f"ds_read_b128 {v(KF,4)}, v2", "k")
    A.lds(f"ds_read_b128 {v(V2,4)}, v8", "v2")
    A.lds(f"ds_read_b128 {v(V1,4)}, v7", "v1")
    A(f"s_mov_b32 s{sPASS}, 0\ns_mov_b32 s{sKVL}, {FOB}")
    A.wait(lg="k")
    A(f"{MF32} {v(SA,16)}, {v(KF,4)}, {v(Q,4)}, 0")
    A("s_nop 1")
    A("s_nop 9")
    A(f"v_max3_f32 v9, v{SA}, v{SA+1}, v{SA+2}")
    for i in range(3, 15, 2): A(f"v_max3_f32 v9, v9, v{SA+i}, v{SA+i+1}")
    A(f"v_max_f32 v9, v9, v{SA+15}")
    A("v_mov_b32 v10, v9\ns_nop 1\nv_permlane32_swap_b32 v9, v10\nv_max_f32 v9, v9, v10")
    A.lds(f"ds_read_b128 {v(KF,4)}, v2 offset:{TS}", "k")
    for i in range(16): A(f"v_sub_f32 v{C+i}, 0, v9")
    for i in range(16): A(f"v_sub_f32 v{SA+i}, v{SA+i}, v9")
    A.wait(lg="all")
    E1, E2 = int(OPT.get("e1", 5)), int(OPT.get("e2", 11))
    def tile(j, jo, hooks=None):
        hooks = hooks or {}
        Sa, Sn, Sp = SS[j % 3], SS[(j + 1) % 3], SS[(j - 1) % 3]
        ex = lambda i: A(f"v_exp_f32 v{Sa+i}, v{Sa+i}")
        A.wait(lg="v2")
        A(f"{MF32} {v(Sn,16)}, {v(KF,4)}, {v(Q,4)}, {v(C,16)}")
        A.lds(f"ds_read_b128 {v(KF,4)}, v14 offset:{(jo+2)*TS}", "k")
        for i in range(E1): ex(i)
        A(f"{SMF} {v(O,16)}, {v(V2,4)}, {v(Sp+8,8)}, v{IDX}")
        A.lds(f"ds_read_b128 {v(V2,4)}, v16 offset:{jo*TS}", "v2")
        for f in hooks.get(0, []): f()
        for i in range(E1, E2): ex(i)
        A.wait(lg="v1")
        A(f"{SMF} {v(O,16)}, {v(V1,4)}, {v(Sa,8)}, v{IDX}")
        A.lds(f"ds_read_b128 {v(V1,4)}, v15 offset:{(jo+1)*TS}", "v1")
        for f in hooks.get(1, []): f()
        for i in range(E2, 14): ex(i)
        for f in hooks.get(2, []): f()
        for i in range(14, 16): ex(i)
    WB_, OB_, ACB, NOB = 128, 192, 240, 12
    def h_kv(i):
        def f():
            A(f"s_add_u32 m0, s{sSTG}, {i*8*TS}\ns_add_u32 s{t4}, s{sKV}, {i*8*2048}")
            A.vmem(f"buffer_load_dwordx4 v2, {WS}, s{t4} offen sc1 lds", f"kv{i}")
            A.vmem(f"buffer_load_dwordx4 v2, {WS}, s{t4} offen offset:1024 sc1 lds", f"kv{i}")
        return f
    def h_st():
        A(f"""
        s_cmp_lg_u32 s{sRT}, 0
        s_cbranch_scc1 Lnowt
        s_lshl_b32 s{t0}, s{sRT64}, 14
        s_lshl_b32 s{t1}, s{sCGQ}, 8
        s_add_u32 s{t0}, s{t0}, s{t1}
        s_lshl_b32 s{t1}, s{sHD}, 6
        s_add_u32 m0, s{sM1}, {L_WT}
        s_add_u32 s{t0}, s{t0}, s{t1}
        buffer_load_dwordx4 v26, s[{S_WA}:{S_WA+3}], s{t0} offen lds
        """)
        A.label("Lnowt")
        A.vmem(f"buffer_store_dwordx4 v[108:111], v2, {WS}, s{sWOB} offen sc1", "obst")
    def h_sent():
        A.vmem(f"buffer_store_dwordx4 v[128:131], v2, {WS}, s{sOA} offen sc1", "sent")
    def h_cnt():
        A.wait(vm="sent")
        A("v_mov_b32 v0, 1\ns_mov_b64 exec, 1")
        A.lds("ds_add_rtn_u32 v0, v25, v0 offset:4", "cnt")
        A("s_mov_b64 exec, -1")
    def h_pub():
        A.wait(lg="cnt")
        A(f"""
        v_readfirstlane_b32 s{t0}, v0
        s_lshl_b32 s{t1}, s2, 2
        s_add_u32 s{t1}, s{t1}, {FOB}
        s_cmp_lg_u32 s{t0}, 7
        s_cbranch_scc1 Lnofob
        s_mov_b64 exec, 1
        buffer_store_dword v21, v20, {WS}, s{t1} offen sc1
        s_mov_b64 exec, -1
        """)
        A.label("Lnofob")
    def h_wt1():
        A.wait(vm="obst")
        A.lds("ds_read_b64_tr_b16 v[132:133], v27", "wt")
        A.lds("ds_read_b64_tr_b16 v[134:135], v27 offset:512", "wt")
    def h_wt2():
        A.wait(lg="wt")
        A(f"s_cmp_lg_u32 s{sRT}, 0\ns_cbranch_scc1 Lnowt2\nbuffer_store_dwordx4 v[132:135], v2, {WS}, s{sAK} offen sc1")
        A.label("Lnowt2")
    def h_poll():
        A.vmem(f"buffer_load_dwordx4 v[192:195], v2, {WS}, s{sKVL} offen sc1", "mp")
    def h_check():
        A(f"s_mov_b32 s{t5}, 0")
        A.wait(vm="mp")
        A.label("Lpollm")
        A(f"""
        v_xor_b32 v192, s{sN}, v192
        v_xor_b32 v193, s{sN}, v193
        v_xor_b32 v194, s{sN}, v194
        v_xor_b32 v195, s{sN}, v195
        v_or3_b32 v192, v192, v193, v194
        v_or_b32 v192, v192, v195
        v_cmp_ne_u32 vcc, 0, v192
        s_add_u32 s{t5}, s{t5}, 1
        s_cmp_gt_u32 s{t5}, {SPIN_MAX}
        s_cbranch_vccz Lpollm_ok
        s_cbranch_scc1 Lpollm_ok
        s_sleep 8
        buffer_load_dwordx4 v[192:195], v2, {WS}, s{sKVL} offen sc1
        s_waitcnt vmcnt(0)
        s_branch Lpollm
        """)
        A.label("Lpollm_ok")
    def ld(dst, sb, off, tag):
        def f():
            A(f"s_add_u32 s{t4}, s{sb}, {off}")
            A.vmem(f"buffer_load_dwordx4 {v(dst,4)}, v2, {WS}, s{t4} offen sc1", tag)
        return f
    def h_bmm(n):
        def f():
            A.wait(vm=[f"wb{n}", f"ob{n}"])
            A(f"{MF32} {v(ACB,16)}, {v(WB_+4*n,4)}, {v(OB_+4*(n%NOB),4)}, {v(ACB,16) if n else 0}")
        return f
    def h_tailprep():
        A(f"""
        s_lshl_b32 s{t0}, s{sRT64}, 1
        s_add_u32 s{t0}, s{t0}, s{sCH}           ; to
        s_lshl_b32 s{t3}, s{t0}, 16
        s_lshl_b32 s{t2}, s{sW}, 12
        s_add_u32 s{t3}, s{t3}, s{t2}
        s_add_u32 s{sKV}, s{t3}, {OF}
        v_add_u32 v26, s{t2}, v2
        s_lshl_b32 s{t3}, s{sRT}, 14
        v_add_u32 v18, s{t3}, v2
        s_lshl_b32 s{t3}, s{sHD}, 12
        s_add_u32 s{t3}, s{t3}, {L_RED}
        v_add_u32 v19, s{t3}, v2
        v_lshlrev_b32 v11, 10, v5
        v_lshl_add_u32 v11, v3, 4, v11
        s_lshl_b32 s{t0}, s{t0}, 15
        s_lshl_b32 s{t3}, s{sCGQ}, 8
        s_add_u32 s{t0}, s{t0}, s{t3}
        s_lshl_b32 s{t3}, s{sHD}, 6
        s_add_u32 s{t0}, s{t0}, s{t3}
        s_lshl_b32 s{t3}, s{sRT}, 5
        s_add_u32 s{sWOB}, s{t0}, s{t3}
        """)
    hooks = {j: {0: [], 1: [], 2: []} for j in range(64)}
    KV0 = int(OPT.get("kv0", 1))
    for i in range(2, 8): hooks[i - 2 + KV0][0].append(h_kv(i))
    CN = int(OPT.get("cn", 6))
    hooks[CN][1].append(h_cnt)
    hooks[CN + 1][1].append(h_pub)
    T0 = int(OPT.get("t0", 38))
    hooks[T0 - 4][0].append(h_poll)
    hooks[T0][0].append(h_check)
    for n in range(16):
        hooks[T0 + n][0].append(ld(WB_ + 4 * n, sWO, 32768 + n * 1024, f"wb{n}"))
        hooks[T0 + n][1].append(ld(OB_ + 4 * (n % NOB), sXO, n * 1024, f"ob{n}"))
        hooks[T0 + 8 + n][2].append(h_bmm(n))
        hooks[T0 + 9 + n][1].append(ld(WB_ + 4 * n, sWO, n * 1024, f"wa{n}"))
    hooks[26][0].append(h_tailprep)
    if OPT.get("nohk"):
        for j in range(24, 64): hooks[j] = {0: [], 1: [], 2: []}
        hooks[26][0].append(h_tailprep)
    prios = {0: 3, CN + 2: 2, 12: 1, 14: 3, 40: 2, 54: 1, 61: 0}
    if OPT.get("prio") == "b": prios = {0: 3, 9: 2, 12: 1, 14: 3, 20: 2, 44: 1, 58: 0}
    if OPT.get("prio") == "c": prios = {0: 3, 10: 2, 14: 3, 20: 2, 54: 1, 62: 0}
    if OPT.get("prio") == "alt":
        prios = {}
    base = 0
    for j in range(64):
        if j in prios: A(f"s_setprio {prios[j]}")
        if OPT.get("prio") == "alt": A(f"s_setprio {3 - (j % 4)}")
        if j - base == 24:
            A(f"v_add_u32 v14, {24*TS}, v14\nv_add_u32 v15, {24*TS}, v15\nv_add_u32 v16, {24*TS}, v16")
            base = j
        tile(j, j - base, hooks[j])
        if j == 13:
            A.wait(vm="kv7"); A("s_barrier")
    A.wait(lg="all")
    A("s_nop 0")
    A(f"{SMF} {v(O,16)}, {v(V2,4)}, {v(SS[63 % 3]+8,8)}, v{IDX}")
    A.label("Lfinish")
    A(f"""
    s_setprio 3
    s_mov_b32 s{t3}, 0x53800000
    s_mov_b32 s{t5}, 0
    s_nop 6
    s_cmp_lg_u32 s{sPASS}, 0
    s_cbranch_scc1 Lfin
    v_cmp_ngt_f32 vcc, s{t3}, v{O+8}
    s_nop 1
    {"" if OPT.get("nofb") else "s_cbranch_vccnz Lfallback"}
    """)
    A.label("Lfin")
    stamp(A)
    A(f"v_rcp_f32 v9, v{O+8}\ns_nop 0")
    for i in range(8): A(f"v_mul_f32 v{O+i}, v{O+i}, v9")
    for i in range(4): A(f"v_cvt_pk_bf16_f32 v{108+i}, v{O+2*i}, v{O+2*i+1}")
    for i in range(4): A(f"v_min_u32 v{108+i}, -2, v{108+i}")
    A(f"buffer_store_dwordx4 v[108:111], v2, {WS}, s{sOA} offen sc1")
    A("s_setprio 0")
    A.label("Lpoll3")
    for i in range(4):
        A(f"buffer_load_dwordx4 {v(32+4*i,4)}, v2, {WS}, s{sKV} offen offset:{i*1024} sc1")
    A(f"s_add_u32 s{t5}, s{t5}, 1")
    A("s_waitcnt vmcnt(0)")
    A("v_max3_u32 v9, v32, v33, v34")
    for i in range(35, 47, 2): A(f"v_max3_u32 v9, v9, v{i}, v{i+1}")
    A(f"""
    v_max_u32 v9, v9, v47
    v_cmp_eq_u32 vcc, -1, v9
    s_cmp_gt_u32 s{t5}, {SPIN_MAX}
    s_cbranch_scc1 Lpoll3_ok
    s_cbranch_vccz Lpoll3_ok
    s_sleep {OPT.get("slp", 2)}
    s_branch Lpoll3
    """)
    A.label("Lpoll3_ok")
    stamp(A)
    A("s_barrier")
    stamp(A)
    for i in range(4):
        A(f"ds_write_b128 v26, {v(32+4*i,4)} offset:{i*1024}")
    A("s_waitcnt lgkmcnt(0)\ns_barrier")
    stamp(A)
    ACA = 48
    A.lg = []
    for n in range(8):
        A.lds(f"ds_read_b128 {v(64+4*n,4)}, v18 offset:{n*1024}", f"o{n}")
    for n in range(16):
        A.wait(lg=f"o{n}")
        A(f"{MF32} {v(ACA,16)}, {v(WB_+4*n,4)}, {v(64+4*(n%8),4)}, {v(ACA,16) if n else 0}")
        if n + 8 < 16:
            A.lds(f"ds_read_b128 {v(64+4*n,4)}, v18 offset:{(n+8)*1024}", f"o{n+8}")
    A("s_nop 9")
    A(f"s_cmp_lg_u32 s{sRT}, 0\ns_cbranch_scc1 Lred1")
    for kh in range(2):
        snd, keep = (8, 0) if kh == 0 else (0, 8)
        if kh: A.label("Lred1")
        for i in range(8): A(f"v_fmac_f32 v{ACB+snd+i}, v22, v{ACA+snd+i}")
        A(f"ds_write_b128 v19, {v(ACB+snd,4)} offset:{snd*256}\nds_write_b128 v19, {v(ACB+snd+4,4)} offset:{snd*256+1024}")
        for i in range(8): A(f"v_fmac_f32 v{ACB+keep+i}, v22, v{ACA+keep+i}")
        A("s_waitcnt lgkmcnt(0)\ns_barrier")
        A(f"ds_read_b128 v[64:67], v19 offset:{keep*256}\nds_read_b128 v[68:71], v19 offset:{keep*256+1024}")
        A("s_waitcnt lgkmcnt(0)")
        for i in range(8): A(f"v_add_f32 v{64+i}, v{64+i}, v{ACB+keep+i}")
        if kh == 0: A("s_branch Lred2")
    A.label("Lred2")
    for i in range(4): A(f"v_cvt_pk_bf16_f32 v{72+i}, v{64+2*i}, v{65+2*i}")
    A("s_nop 1\nv_permlane32_swap_b32 v72, v74\nv_permlane32_swap_b32 v73, v75")
    A(f"buffer_store_dwordx4 v[72:75], v11, s[{S_T}:{S_T+3}], s{sWOB} offen")
    if INSTR:
        stamp(A)
        A("s_waitcnt vmcnt(0)")
        stamp(A)
        A("s_memrealtime s[100:101]\ns_waitcnt lgkmcnt(0)\ns_mov_b64 exec, 1")
        A(f"s_lshl_b32 s56, s2, 3\ns_add_u32 s56, s56, s{sW}\ns_lshl_b32 s56, s56, 6\ns_add_u32 s56, s56, {32<<20}")
        A("v_mov_b32 v0, 0")
        for i in range(NST[0]):
            A(f"v_mov_b32 v1, s{68+2*i}\nbuffer_store_dword v1, v0, {WS}, s56 offen offset:{4*i}")
        A(f"v_mov_b32 v1, s{t5}\nbuffer_store_dword v1, v0, {WS}, s56 offen offset:52")
        A(f"v_mov_b32 v1, s100\nbuffer_store_dword v1, v0, {WS}, s56 offen offset:60")
        A(f"v_mov_b32 v1, s98\nbuffer_store_dword v1, v0, {WS}, s56 offen offset:56")
        if os.environ.get("DBGOUT"):
            A(f"s_cmp_lg_u32 s{sW}, 0\ns_cbranch_scc1 Lend")
            A(f"s_not_b32 s56, s68\nv_mov_b32 v1, s56\nbuffer_atomic_umax v1, v0, s[{S_DBG}:{S_DBG+3}], 0 offen offset:4 sc1")
            for i in range(NST[0]):
                A(f"v_mov_b32 v1, s{68+2*i}\nbuffer_atomic_umax v1, v0, s[{S_DBG}:{S_DBG+3}], 0 offen offset:{8+4*i} sc1")
    A.label("Lend")
    A("s_endpgm")
    A.label("Lfallback")
    A.lg = []; A.vm = []
    A(f"s_setprio 0\ns_mov_b32 s{sPASS}, 1\nv_mov_b32 v14, v2\ns_mov_b32 s{sIT}, 0\nv_mov_b32 v9, 0xff800000")
    A.label("Lmaxloop")
    A(f"ds_read_b128 {v(KF,4)}, v14\nv_add_u32 v14, {TS}, v14\ns_waitcnt lgkmcnt(0)")
    A(f"{MF32} {v(SA,16)}, {v(KF,4)}, {v(Q,4)}, 0")
    A("s_nop 11")
    for i in range(0, 16, 2): A(f"v_max3_f32 v9, v9, v{SA+i}, v{SA+i+1}")
    A(f"s_add_u32 s{sIT}, s{sIT}, 1\ns_cmp_lt_u32 s{sIT}, 64\ns_cbranch_scc1 Lmaxloop")
    A("v_mov_b32 v10, v9\ns_nop 1\nv_permlane32_swap_b32 v9, v10\nv_max_f32 v9, v9, v10")
    for i in range(16): A(f"v_sub_f32 v{C+i}, 0, v9")
    for i in range(16): A(f"v_mov_b32 v{O+i}, 0")
    A("v_mov_b32 v14, v2\nv_mov_b32 v15, v7\nv_mov_b32 v16, v8")
    A(f"s_mov_b32 s{sIT}, 0")
    A.label("Lloop2")
    A(f"ds_read_b128 {v(KF,4)}, v14\nds_read_b128 {v(V1,4)}, v15\nds_read_b128 {v(V2,4)}, v16")
    A(f"v_add_u32 v14, {TS}, v14\nv_add_u32 v15, {TS}, v15\nv_add_u32 v16, {TS}, v16\ns_waitcnt lgkmcnt(0)")
    A(f"{MF32} {v(SA,16)}, {v(KF,4)}, {v(Q,4)}, {v(C,16)}")
    A("s_nop 11")
    for i in range(16): A(f"v_exp_f32 v{SA+i}, v{SA+i}")
    A("s_nop 1")
    A(f"{SMF} {v(O,16)}, {v(V1,4)}, {v(SA,8)}, v{IDX}")
    A(f"{SMF} {v(O,16)}, {v(V2,4)}, {v(SA+8,8)}, v{IDX}")
    A(f"s_nop 7\ns_add_u32 s{sIT}, s{sIT}, 1\ns_cmp_lt_u32 s{sIT}, 64\ns_cbranch_scc1 Lloop2")
    A("s_branch Lfinish")
    A.label("Lcode_end")
    return A.text()

def main():
    ref = open(f"cdna_kernels/{NAME}.s.ref").read().split("\n")
    head = [l for l in ref if l.startswith(";") and "@launch" not in l]
    head += ["; @launch grid=(256,1,1) block=(512,1,1) lds=163840"]
    out = "\n".join(head) + '\n.amdgcn_target "amdgcn-amd-amdhsa--gfx950"\n.text\n'
    t = kernel()
    for e in check(t): print("HAZARD", e)
    out += t + f""".section .rodata,"a"
.p2align 6
.amdhsa_kernel {KNAME}
  .amdhsa_next_free_vgpr 256
  .amdhsa_next_free_sgpr 102
  .amdhsa_accum_offset 256
  .amdhsa_group_segment_fixed_size 0
  .amdhsa_kernarg_size 80
  .amdhsa_user_sgpr_count 2
  .amdhsa_user_sgpr_kernarg_segment_ptr 1
  .amdhsa_system_sgpr_workgroup_id_x 1
.end_amdhsa_kernel
"""
    path = sys.argv[1] if len(sys.argv) > 1 else f"cdna_kernels/{NAME}.s"
    open(path, "w").write(out)
    r = subprocess.run(["clang", "-x", "assembler", "-target", "amdgcn-amd-amdhsa", "-mcpu=gfx950", "-c", path, "-o", "chk.o"], capture_output=True, text=True)
    if r.returncode: print("ASM ERROR", r.stderr[:1500])
    print("wrote", path, len(out), "stamps", NST[0])
main()
```

```python
import sys, os, subprocess
from asmlib import Asm, v, s, check

NAME = "gated_mix__mha_block__sliding_local_dilated__prompt"
KNAME = NAME + "_kernel"
OPT = dict(x.split("=") for x in os.environ.get("OPT", "").split(",") if x)
INSTR = os.environ.get("INSTR")
QF, KVF, OF, FL, WOF = 0, 2 << 20, 6 << 20, 10 << 20, 11 << 20
FOB, FA, FH = FL, FL + 8192, FL + 16384
HB, GF = 12 << 20, 13 << 20
OOB = 0x7ff00000
WS_BYTES = 268435456
CSCALE = 0x3EB8AA3B
LOG2E = 0x3FB8AA3B
NEGBIG = 0xF149F2CA
ONES = 0x3f803f80
TS = 2080
U = 8192
L_WT, L_G, L_GP, L_MK = 147456, 139264, 141312, 141312
L_EX = 147456
L_GV = 140288
L_RED = 65536
SPIN_MAX = 1 << 18

class G(Asm):
    def __init__(self):
        super().__init__()
        self.vm, self.lg = [], []
    def vmem(self, text, tag=None):
        self(text); self.vm.append(tag)
    def lds(self, text, tag=None):
        self(text); self.lg.append(tag)
    def _n(self, q, tags):
        if isinstance(tags, str): tags = [tags]
        idx = [i for i, t in enumerate(q) if t in tags]
        if not idx: return None
        return len(q) - 1 - idx[-1]
    def wait(self, vm=None, lg=None):
        parts = []
        if vm is not None:
            n = 0 if vm == "all" else self._n(self.vm, vm)
            if n is not None:
                assert n <= 63
                parts.append(f"vmcnt({n})"); self.vm = self.vm[len(self.vm) - n:] if n else []
        if lg is not None:
            n = 0 if lg == "all" else self._n(self.lg, lg)
            if n is not None:
                n = min(n, 15)
                parts.append(f"lgkmcnt({n})"); self.lg = self.lg[len(self.lg) - n:] if n else []
        if parts: self("s_waitcnt " + " ".join(parts))

def srd(A, d, base, nbytes):
    A(f"s_mov_b32 s{d}, s{base}\ns_mov_b32 s{d+1}, s{base+1}\ns_mov_b32 s{d+2}, {nbytes}\ns_mov_b32 s{d+3}, 0x20000")

NST = [0]
def stamp(A, mode="1", idx=None):
    if INSTR and (INSTR == mode or NST[0] == 0):
        i = NST[0] if idx is None else idx
        NST[0] = max(NST[0], i + 1)
        assert i < 12
        if i == 0: A("s_memrealtime s[98:99]")
        A(f"{'s_memrealtime' if os.environ.get('RT') else 's_memtime'} s[{68+2*i}:{69+2*i}]"); A.wait(lg="all")

S_X, S_WA, S_WB, S_WS, S_DBG, S_T = 16, 20, 24, 28, 32, 36
sW, sRT128, sBR, sQD, sC4, sH, sT, sRT, sHD, sN = 40, 41, 42, 43, 44, 45, 46, 47, 48, 49
sXO, sWO, sM1, sRDY, sPASS, sIT = 50, 51, 52, 53, 54, 55
t0, t1, t2, t3, t4, t5 = 56, 57, 58, 59, 60, 61
sKV, sKVL, sWOB, sSTG = 62, 63, 64, 65
sEXP, sOA, sQA = 3, 14, 15
sROT, sWC = sPASS, sIT
sWQ, sCGK, sAK, sAQ = 4, 5, 6, 7
sCGQ_, sPM = 10, 11
sAK2, sFLG, sHS, sHF = 92, 93, 94, 95
sMS, sC = 0, 100
MF16 = "v_mfma_f32_16x16x32_bf16"
MF32 = "v_mfma_f32_32x32x16_bf16"
SMF = "v_smfmac_f32_32x32x32_bf16"
IDX = 13
WS = f"s[{S_WS}:{S_WS+3}]"

def lanemask(fn):
    m = 0
    for l in range(64):
        if fn(l): m |= 1 << l
    return m

def kernel():
    A = G()
    A(f".globl {KNAME}\n.p2align 8\n.type {KNAME},@function")
    A.label(KNAME)
    A("s_cmp_ge_u32 s2, 256\ns_cbranch_scc1 Lend")
    stamp(A)
    A("""
    s_load_dwordx4 s[4:7], s[0:1], 0
    s_load_dwordx2 s[10:11], s[0:1], 32
    s_load_dwordx2 s[14:15], s[0:1], 48
    s_load_dwordx2 s[96:97], s[0:1], 72
    s_load_dwordx2 s[8:9], s[0:1], 16
    s_load_dwordx2 s[12:13], s[0:1], 40
    s_load_dwordx2 s[66:67], s[0:1], 56
    s_load_dwordx2 s[100:101], s[0:1], 64
    v_lshrrev_b32 v1, 6, v0
    s_and_b32 s56, s2, 7
    v_readfirstlane_b32 s40, v1
    v_and_b32 v1, 63, v0
    s_lshr_b32 s57, s2, 3
    """)
    A(f"""
    s_and_b32 s{sRT128}, s{t0}, 1
    s_lshl_b32 s{sRT128}, s{sRT128}, 3
    s_and_b32 s{t2}, s{t1}, 7
    s_add_u32 s{sRT128}, s{sRT128}, s{t2}
    s_lshr_b32 s{sQD}, s{t0}, 1
    s_lshr_b32 s{sC4}, s{t1}, 3
    s_lshr_b32 s{sBR}, s{sC4}, 1
    s_lshl_b32 s{sH}, s{t0}, 2
    s_add_u32 s{sH}, s{sH}, s{sC4}
    s_lshl_b32 s{sT}, s{t2}, 3
    s_add_u32 s{sT}, s{sT}, s{sW}
    s_lshr_b32 s{sRT}, s{sW}, 2
    s_and_b32 s{sHD}, s{sW}, 3
    s_lshl_b32 s{sXO}, s{sRT128}, 17
    s_lshl_b32 s{t2}, s{sW}, 13
    s_add_u32 s{sXO}, s{sXO}, s{t2}
    s_lshl_b32 s{sKV}, s{sQD}, 1
    s_and_b32 s{t2}, s{sC4}, 1
    s_add_u32 s{sKV}, s{sKV}, s{t2}
    s_lshl_b32 s{t2}, s{sBR}, 1
    s_add_u32 s{sKV}, s{sKV}, s{t2}
    s_and_b32 s{sKV}, s{sKV}, 7
    s_lshl_b32 s{t2}, s{sBR}, 2
    s_xor_b32 s{sKVL}, s{sKV}, s{t2}
    s_xor_b32 s{sKVL}, s{sKVL}, 4
    s_mul_i32 s{sWOB}, s{sW}, 8*3072
    s_lshl_b32 s{t2}, s{sKV}, 7
    s_add_u32 s{sWO}, s{sWOB}, s{t2}
    s_add_u32 s{sWO}, s{sWO}, 1024
    s_lshl_b32 s{sM1}, s{sW}, 10
    s_and_b32 s{t3}, s{sW}, 1
    """)
    RM = OPT.get("rot", "4")
    if RM == "4": A(f"s_and_b32 s{sROT}, s{t1}, 3\ns_lshl_b32 s{sROT}, s{sROT}, 1\ns_add_u32 s{sROT}, s{sROT}, s{t0}")
    if RM == "4c": A(f"s_add_u32 s{sROT}, s{t1}, s{sC4}\ns_and_b32 s{sROT}, s{sROT}, 3\ns_lshl_b32 s{sROT}, s{sROT}, 1\ns_add_u32 s{sROT}, s{sROT}, s{t0}")
    if RM == "0": A(f"s_mov_b32 s{sROT}, 0")
    if RM == "2": A(f"s_and_b32 s{sROT}, s{t1}, 1\ns_lshl_b32 s{sROT}, s{sROT}, 2\ns_add_u32 s{sROT}, s{sROT}, s{t0}")
    A(f"""
    v_lshlrev_b32 v2, 4, v1
    v_lshrrev_b32 v9, 3, v1
    v_and_b32 v10, 7, v1
    v_lshrrev_b32 v30, 4, v1                 ; g
    v_xor_b32 v12, v10, v30
    v_lshlrev_b32 v12, 4, v12
    v_lshl_add_u32 v4, v9, 10, v12
    s_lshl_b32 s{t2}, s{t3}, 6
    v_xor_b32 v3, s{t2}, v4
    v_and_b32 v12, 1, v30
    v_lshlrev_b32 v12, 5, v12
    v_xor_b32 v12, s{t2}, v12
    v_lshlrev_b32 v13, 4, v10
    v_xor_b32 v12, v12, v13
    v_mul_u32_u24 v6, 3072, v9
    v_add_u32 v6, v6, v12
    """)
    if not OPT.get("nocpf"):
        A(f"s_getpc_b64 s[{t4}:{t4+1}]")
        A.label("Lpc")
        A(f"""
        s_cmp_lg_u32 s{sW}, 0
        s_cbranch_scc1 Lnocpf
        s_mul_i32 s{t2}, s{t1}, 1536
        v_lshl_add_u32 v18, v1, 7, s{t2}
        v_min_u32 v18, Lcode_end-Lpc-4, v18
        s_mov_b64 exec, 0xfff
        global_load_dword v31, v18, s[{t4}:{t4+1}]
        s_mov_b64 exec, -1
        """)
        A.label("Lnocpf")
    A("s_waitcnt lgkmcnt(0)")
    srd(A, S_X, 4, 2048 * 1024)
    A(f"s_cmp_eq_u32 s{sBR}, 0\ns_cselect_b32 s{S_WA}, s6, s10\ns_cselect_b32 s{S_WA+1}, s7, s11\ns_mov_b32 s{S_WA+2}, 512*3072\ns_mov_b32 s{S_WA+3}, 0x20000")
    W_ = f"s[{S_WA}:{S_WA+3}]"
    X_ = f"s[{S_X}:{S_X+3}]"

    dunit = {}
    xfree, wfree, qfree = [0, 2, 4, 6], [8, 10, 12, 14], []
    pending = []
    for S in range(8):
        pending += [("x", S, 0), ("w", S, 0), ("x", S, 1), ("w", S, 1)]
    for n in range(4):
        pending += [("q", 8 + n, 0), ("q", 8 + n, 1)]
    dmode = ["sym"]
    def two(srd_, vr, sreg, stride32, tag):
        A.vmem(f"buffer_load_dwordx4 v{vr}, {srd_}, s{sreg} offen lds", tag)
        if dmode[0] == "dbl":
            A(f"s_sub_u32 m0, m0, 4096\ns_sub_u32 s{t4}, s{sreg}, {stride32}")
            A.vmem(f"buffer_load_dwordx4 v{vr}, {srd_}, s{t4} offen lds", tag)
    def dma_item(it):
        kind, S, hf = it
        if hf == 0:
            dunit[(kind, S)] = {"x": xfree, "w": wfree, "q": qfree}[kind].pop(0)
        if dmode[0] == "none": return
        u = dunit[(kind, S)] + hf
        if kind == "x":
            A(f"""
            s_add_u32 s{t4}, s{sROT}, {S}
            s_and_b32 s{t4}, s{t4}, 7
            s_lshl_b32 s{t4}, s{t4}, 7
            s_add_u32 m0, s{sM1}, {u*U}
            s_add_u32 s{t4}, s{t4}, s{sXO}
            """)
            if hf: A(f"s_add_u32 s{t4}, s{t4}, 65536")
            two(X_, 3, t4, 32768, f"st{S}")
        elif kind == "w":
            if hf == 0:
                A(f"""
                s_add_u32 s{sWC}, s{sROT}, {S}
                s_and_b32 s{sWC}, s{sWC}, 7
                s_mul_i32 s{sWC}, s{sWC}, 196608
                s_add_u32 m0, s{sM1}, {u*U}
                s_add_u32 s{sWC}, s{sWC}, s{sWO}
                """)
                two(W_, 6, sWC, 98304, f"st{S}")
            else:
                A(f"s_add_u32 m0, s{sM1}, {u*U}\ns_add_u32 s{t4}, s{sWC}, 1024")
                two(W_, 6, t4, 98304, f"st{S}")
        else:
            A(f"""
            s_add_u32 s{t4}, s{sROT}, {2*(S-8)+hf}
            s_and_b32 s{t4}, s{t4}, 7
            s_mul_i32 s{t4}, s{t4}, 196608
            s_add_u32 m0, s{sM1}, {u*U}
            s_add_u32 s{t4}, s{t4}, s{sWQ}
            """)
            two(W_, 6, t4, 98304, f"st{S}")
    def next_dma():
        if not pending: return False
        it = pending[0]
        if it[2] == 0 and not {"x": xfree, "w": wfree, "q": qfree}[it[0]]: return False
        pending.pop(0); dma_item(it); return True
    for _ in range(4): next_dma()
    srd(A, S_WS, 96, WS_BYTES)
    srd(A, S_T, 14, 1024)
    A(f"""
    s_mov_b32 s{sCGK}, s{sKV}
    s_mov_b32 s{sCGQ_}, s{sKVL}
    s_lshl_b32 s{t2}, s{sKVL}, 7
    s_add_u32 s{sWQ}, s{sWOB}, s{t2}
    """)
    A(f"s_lshl_b32 s{t2}, s2, 3\ns_add_u32 s{t2}, s{t2}, s{sW}\ns_cmp_lg_u32 s{t2}, 1027\ns_cbranch_scc1 Lnoscan1")
    A(f"""
    s_mov_b32 s{t4}, {FOB}
    s_mov_b32 s{t3}, {FA}
    s_mov_b32 s{t2}, {FH}
    v_lshlrev_b32 v18, 7, v1
    buffer_load_dwordx4 v[240:243], v2, {WS}, s{t4} offen sc1
    buffer_load_dwordx4 v[244:247], v18, {WS}, s{t2} offen sc1
    buffer_load_dwordx2 v[248:249], v18, {WS}, s{t3} offen sc1
    """)
    A.label("Lnoscan1")
    nscan = len(A.vm)
    A("s_barrier")
    for _ in range(4): next_dma()
    A(f"""
    s_add_u32 s{t4}, s{sW}, s{sROT}
    s_and_b32 s{t4}, s{t4}, 7
    s_lshl_b32 s{t4}, s{t4}, 7
    s_lshl_b32 s{t3}, s{sW}, 7
    s_add_u32 m0, s{t3}, {L_G}
    s_mov_b64 exec, 0xff
    """)
    A.vmem(f"buffer_load_dwordx4 v2, s[{S_T}:{S_T+3}], s{t4} offen lds", "st1")
    A("s_mov_b64 exec, -1")
    srd(A, S_DBG, 100, 256)
    A(f"""
    v_and_b32 v29, 15, v1
    v_lshrrev_b32 v16, 1, v29
    v_xor_b32 v16, v16, v30
    v_lshlrev_b32 v16, 4, v16
    v_lshl_add_u32 v16, v29, 7, v16
    s_lshl_b32 s{t2}, s{sHD}, 12
    v_add_u32 v7, s{t2}, v16
    v_xor_b32 v8, 64, v7
    v_lshlrev_b32 v11, 4, v30
    s_lshl_b32 s{t2}, s{sRT}, 9
    s_add_u32 s{t2}, s{t2}, {L_G}
    v_add_u32 v11, s{t2}, v11
    v_bfe_u32 v18, v1, 2, 2                  ; r
    v_lshl_add_u32 v14, v30, 3, v18
    v_lshlrev_b32 v14, 7, v14
    v_bfe_u32 v18, v1, 3, 2
    s_lshl_b32 s{t2}, s{sRT}, 1
    v_xor_b32 v18, s{t2}, v18
    v_lshl_add_u32 v14, v18, 5, v14
    v_and_b32 v18, 3, v1
    v_lshl_add_u32 v14, v18, 3, v14
    v_xor_b32 v15, 32, v14                   ; head b
    v_add_u32 v12, 65536, v14
    v_add_u32 v13, 65536, v15
    v_mov_b32 v20, 0
    v_and_b32 v24, 31, v1
    v_lshlrev_b32 v24, 2, v24
    """)
    NPRE = int(OPT.get("npre", 2))
    if NPRE >= 3:
        A("s_barrier")
        for _ in range(4): next_dma()
    A(f"""
    s_lshl_b32 s{t0}, s{sH}, 6
    s_add_u32 s{t1}, s{t0}, s{sT}
    s_lshl_b32 s{sQA}, s{t1}, 10
    s_add_u32 s{t0}, s{t0}, s{sW}
    s_lshl_b32 s{t0}, s{t0}, 11
    s_add_u32 s{sKV}, s{t0}, {KVF}
    s_mul_i32 s{sSTG}, s{sW}, {TS}
    s_mov_b32 s{sRDY}, 0
    s_lshl_b32 s{t0}, s{sT}, 6
    s_add_u32 s{t0}, s{t0}, s{sH}
    s_lshl_b32 s{t0}, s{t0}, 10
    s_add_u32 s{sOA}, s{t0}, {OF}
    s_lshl_b32 s{t2}, s{sRT128}, 2
    s_add_u32 s{t2}, s{t2}, s{sHD}
    s_lshl_b32 s{t3}, s{sRT}, 1
    s_lshl_b32 s{t1}, s{sCGK}, 2
    s_add_u32 s{t1}, s{t1}, s{t3}
    s_lshl_b32 s{t0}, s{t2}, 6
    s_add_u32 s{t0}, s{t0}, s{t1}
    s_lshl_b32 s{t0}, s{t0}, 10
    s_add_u32 s{sWOB}, s{t0}, {OF + 32768}
    s_lshl_b32 s{t0}, s{t1}, 6
    s_add_u32 s{t0}, s{t0}, s{t2}
    s_lshl_b32 s{t0}, s{t0}, 11
    s_add_u32 s{sAK}, s{t0}, {KVF}
    s_add_u32 s{sAK2}, s{sAK}, 131072
    s_lshl_b32 s{t0}, s{sCGK}, 10
    s_lshr_b32 s{t4}, s{sRT128}, 1
    s_lshl_b32 s{t4}, s{t4}, 7
    s_add_u32 s{t0}, s{t0}, s{t4}
    s_and_b32 s{t4}, s{sRT128}, 1
    s_lshl_b32 s{t4}, s{t4}, 2
    s_add_u32 s{t0}, s{t0}, s{t4}
    s_add_u32 s{t0}, s{t0}, {FA}
    s_cmp_eq_u32 s{sW}, 0
    s_cselect_b32 s{sFLG}, s{t0}, 0
    s_mov_b32 s{sHF}, 0
    s_mov_b32 s{sMS}, {hex(OOB)}
    s_mov_b32 s{sC}, {hex(CSCALE)}
    s_cmp_eq_u32 s{sBR}, 0
    s_cbranch_scc1 Lisa
    s_lshl_b32 s{t0}, s{sCGK}, 4
    s_add_u32 s{t0}, s{t0}, s{sRT128}
    s_lshl_b32 s{t0}, s{t0}, 1
    s_add_u32 s{t0}, s{t0}, s{sRT}
    s_lshl_b32 s{t4}, s{t0}, 11
    s_add_u32 s{t4}, s{t4}, {HB}
    s_sub_u32 s{sHF}, s{t0}, 2
    s_lshr_b32 s{t5}, s{t0}, 2
    s_lshl_b32 s{t5}, s{t5}, 5
    s_and_b32 s{t0}, s{t0}, 3
    s_add_u32 s{t0}, s{t0}, s{t5}
    s_lshl_b32 s{t0}, s{t0}, 2
    s_add_u32 s{t0}, s{t0}, {FH}
    s_lshr_b32 s{t5}, s{sHF}, 2
    s_lshl_b32 s{t5}, s{t5}, 5
    s_and_b32 s{sHF}, s{sHF}, 3
    s_add_u32 s{sHF}, s{sHF}, s{t5}
    s_lshl_b32 s{sHF}, s{sHF}, 2
    s_add_u32 s{sHF}, s{sHF}, {FH}
    s_sub_u32 s{sHS}, s{t4}, 4096
    s_cmp_eq_u32 s{sRT128}, 0
    s_cselect_b32 s{sHS}, {hex(OOB)}, s{sHS}
    s_cselect_b32 s{sHF}, 0, s{sHF}
    s_cmp_eq_u32 s{sHD}, 0
    s_cselect_b32 s{sHF}, s{sHF}, 0
    s_cmp_eq_u32 s{sHD}, 3
    s_cselect_b32 s{sMS}, s{t4}, {hex(OOB)}
    s_cselect_b32 s{sFLG}, s{t0}, 0
    s_mov_b32 s{sAK}, {hex(OOB)}
    s_mov_b32 s{sAK2}, {hex(OOB)}
    Lisa:
    s_lshl_b32 s{t1}, s{sCGQ_}, 2
    s_add_u32 s{t1}, s{t1}, s{t3}
    s_lshl_b32 s{t0}, s{t1}, 6
    s_add_u32 s{t0}, s{t0}, s{t2}
    s_lshl_b32 s{sAQ}, s{t0}, 10
    s_cmp_eq_u32 s{sBR}, 0
    s_cselect_b32 s{sAQ}, s{sAQ}, {hex(OOB)}
    s_mov_b32 s{sKVL}, {FA}
    s_lshl_b32 s{t0}, s{sRT}, 11
    s_lshl_b32 s{t1}, s{sHD}, 12
    s_add_u32 s{t0}, s{t0}, s{t1}
    s_add_u32 s{sEXP}, s{t0}, {L_EX - 4096}
    s_and_b32 s{t0}, s2, 7
    s_lshl_b32 s{t1}, s{t0}, 10
    s_xor_b32 s{t0}, s{t1}, 4096
    s_lshr_b32 s{t4}, s{sT}, 3
    s_lshl_b32 s{t4}, s{t4}, 7
    s_add_u32 s{t0}, s{t0}, s{t4}
    v_lshrrev_b32 v18, 1, v29
    v_lshl_add_u32 v18, v18, 7, s{t1}
    v_mov_b32 v19, s{t0}
    s_mov_b32 vcc_lo, -1
    s_mov_b32 vcc_hi, 0
    v_cndmask_b32 v18, v19, v18, vcc
    v_and_b32 v19, 1, v1
    v_lshl_add_u32 v9, v19, 2, v18
    v_add_u32 v10, s{sEXP}, v2
    v_add_u32 v23, {L_MK}, v2
    v_mov_b32 v64, -1
    v_mov_b32 v65, -1
    v_mov_b32 v66, -1
    v_mov_b32 v67, -1
    """)
    A(f"""
    v_lshrrev_b32 v18, 5, v1
    v_lshlrev_b32 v16, 9, v18
    v_lshl_add_u32 v16, v29, 4, v16
    v_add_u32 v16, 1024, v16
    v_add_u32 v17, 256, v16
    v_mov_b32 v19, 2064
    v_mov_b32 v18, 2048
    s_mov_b32 vcc_lo, 0x00110000
    s_mov_b32 vcc_hi, 0x00110000
    v_cndmask_b32 v19, v19, v18, vcc
    s_mov_b32 vcc_lo, 0x0000ffff
    s_mov_b32 vcc_hi, 0x0000ffff
    v_cndmask_b32 v16, v19, v16, vcc
    v_cndmask_b32 v17, v19, v17, vcc
    v_mov_b32 v25, {L_GV}
    s_lshl_b32 s{t2}, s{sHD}, 8
    s_add_u32 s{t2}, s{t2}, {L_GP}
    s_lshl_b32 s{t3}, s{sRT}, 2
    s_add_u32 s{t3}, s{t3}, s{t2}
    v_lshl_add_u32 v27, v24, 1, s{t3}
    v_mov_b32 v21, 0
    """)
    A.lds("ds_write_b64 v25, v[20:21]")
    key = lambda i, hh: 8 * (i // 4) + 4 * hh + i % 4
    okd = lambda d: 0 <= d <= 14 and d % 2 == 0
    for k in range(3):
        A(f"s_lshl_b32 s{t2}, s{sBR}, 3\ns_add_u32 s{t2}, s{t2}, s{sW}\ns_cmp_lg_u32 s{t2}, {9+k}\ns_cbranch_scc1 Lnomask{k}")
        A(f"v_mov_b32 v18, {hex(NEGBIG)}")
        for i in range(8):
            if k < 2: m = lanemask(lambda l: okd((l & 31) - key(8*k+i, l >> 5)))
            else: m = lanemask(lambda l: okd((l & 31) + 32 - key(8+i, l >> 5)))
            A(f"s_mov_b32 vcc_lo, {hex(m & 0xffffffff)}\ns_mov_b32 vcc_hi, {hex(m >> 32)}\nv_cndmask_b32 v{32+i}, v18, v20, vcc")
        A(f"v_add_u32 v22, {L_MK + k*2048}, v2")
        A("ds_write_b128 v22, v[32:35]\nds_write_b128 v22, v[36:39] offset:1024\ns_waitcnt lgkmcnt(0)")
        A.label(f"Lnomask{k}")
    A(f"s_lshl_b32 s{t2}, s2, 3\ns_add_u32 s{t2}, s{t2}, s{sW}\ns_cmp_lg_u32 s{t2}, 1027\ns_cbranch_scc1 Lnoscan2")
    A(f"s_waitcnt vmcnt({len(A.vm) - nscan})\ns_mov_b32 s{t4}, 0")
    A.label("Lscan")
    A(f"s_add_u32 s{t4}, s{t4}, 1\ns_mov_b64 exec, -1")
    for i in range(10):
        A(f"v_cmpx_ne_u32 vcc, s{t4}, v{240+i}")
    A("s_nop 1\ns_cmp_eq_u64 exec, -1\ns_cbranch_scc0 Lscan")
    A(f"v_mov_b32 v21, s{t4}\ns_mov_b64 exec, 1")
    A(f"buffer_store_dword v21, v20, s[{S_DBG}:{S_DBG+3}], 0 offen sc1")
    A("s_mov_b64 exec, -1")
    A.label("Lnoscan2")

    FB = [68, 92]
    XF = lambda S, u, sub: 128 + 8 * (2 * S + u) + 4 * sub
    KA, VA, HA, QA = 32, 48, 64, 48
    def reads(S, g_, br):
        b = FB[g_]; tg = f"r{S}_{g_}"
        L = []
        rd = lambda text, tag: L.append(lambda: A.lds(text, tag))
        if S < 8:
            u = g_
            xo = dunit.get(("x", S), 0) * U
            wo = (dunit.get(("w", S), 8) - 8) * U + u * 4096
            def wr(k):
                seg, hd = k // 2, k % 2
                for t in range(2):
                    rd(f"ds_read_b64_tr_b16 {v(b+4*k+2*t,2)}, v{12+hd} offset:{wo + seg*U + t*512}", f"{tg}w{k}")
            rd(f"ds_read_b128 {v(XF(S,u,0),4)}, v{7+u} offset:{xo}", tg + "x0")
            wr(0)
            rd(f"ds_read_b128 {v(XF(S,u,1),4)}, v{7+u} offset:{xo+2048}", tg + "x1")
            wr(1); wr(2); wr(3)
        else:
            un = dunit.get(("q", S), 0) + g_
            wb, so = (14, un * U) if un < 8 else (12, (un - 8) * U)
            for k in range(4):
                u, hd = k // 2, k % 2
                for t in range(2):
                    rd(f"ds_read_b64_tr_b16 {v(b+4*k+2*t,2)}, v{wb+hd} offset:{so + u*4096 + t*512}", f"{tg}w{k}")
        return L
    def mms(S, g_, br):
        b = FB[g_]; tg = f"r{S}_{g_}"
        L = []
        def mm(d, a_, b_, tags, first):
            def f():
                A.wait(lg=[tg + t for t in tags])
                A(f"{MF16} {v(d,4)}, {v(a_,4)}, {v(b_,4)}, {0 if first else v(d,4)}")
            L.append(f)
        if S < 8:
            u = g_; first = S == 0 and u == 0
            for hd in range(2):
                for sub in range(2): mm(KA + 8*hd + 4*sub, b + 4*hd, XF(S, u, sub), [f"w{hd}", f"x{sub}"], first)
            for hd in range(2):
                for sub in range(2): mm(VA + 8*hd + 4*sub, XF(S, u, sub), b + 8 + 4*hd, [f"w{2+hd}"], first)
        else:
            c = 2 * (S - 8) + g_
            for k in range(4):
                u, hd = k // 2, k % 2
                for sub in range(2): mm(QA + 8*hd + 4*sub, b + 4*k, XF(c, u, sub), [f"w{k}"], c == 0 and u == 0)
        return L

    def scale_q(ac, dq):
        A(f"s_mov_b32 s{t5}, {hex(CSCALE)}")
        for i in range(4):
            A(f"""
            v_cvt_pk_bf16_f32 v18, v{ac+2*i}, v{ac+2*i+1}
            v_and_b32 v19, 0xffff0000, v18
            v_lshlrev_b32 v18, 16, v18
            v_mul_f32 v18, s{t5}, v18
            v_mul_f32 v19, s{t5}, v19
            v_cvt_pk_bf16_f32 v{dq+i}, v18, v19
            """)
    PK = [116, 120]; PV = [124, 32]; PH = 36
    def pack4(src_, dst):
        for i in range(4): A(f"v_cvt_pk_bf16_f32 v{dst+i}, v{src_+2*i}, v{src_+2*i+1}")
    def swap(d): A(f"v_permlane16_swap_b32 v{d}, v{d+2}\nv_permlane16_swap_b32 v{d+1}, v{d+3}")
    VF1 = [36, 40]; MM = [84, 88]; VP = [108, 112]
    def kv_epilogue(sfx):
        A("s_nop 1")
        pack4(KA, PK[0]); pack4(KA + 8, PK[1])
        swap(PK[0])
        A.vmem(f"buffer_store_dwordx4 {v(PK[0],4)}, v2, {WS}, s{sAK} offen sc1", "ast")
        pack4(VA, PV[0])
        swap(PK[1])
        A.vmem(f"buffer_store_dwordx4 {v(PK[1],4)}, v2, {WS}, s{sAK2} offen sc1", "ast")
        pack4(VA + 8, PV[1])
        swap(PV[0])
        A.vmem(f"buffer_store_dwordx4 {v(PV[0],4)}, v2, {WS}, s{sAK} offen offset:1024 sc1", "ast")
        swap(PV[1])
        A.vmem(f"buffer_store_dwordx4 {v(PV[1],4)}, v2, {WS}, s{sAK2} offen offset:1024 sc1", "ast")
        A(f"s_cmp_eq_u32 s{sBR}, 0\ns_cbranch_scc1 Lnbp{sfx}")
        A(f"""
        v_mov_b32 v44, {hex(ONES)}
        s_mov_b32 vcc_lo, 0x00110011
        s_mov_b32 vcc_hi, 0x00110011
        v_cndmask_b32 v44, 0, v44, vcc
        """)
        for i in range(8): A(f"v_mov_b32 v{VF1[0]+i}, v44")
        A("s_mov_b32 vcc_lo, 0xffff0000\ns_mov_b32 vcc_hi, 0xffff0000")
        for hd in range(2):
            for i in range(4): A(f"v_permlane16_swap_b32 v{PV[hd]+i}, v{VF1[hd]+i}")
        for hd in range(2):
            for i in range(4): A(f"v_cndmask_b32 v{MM[hd]+i}, v{VF1[hd]+i}, v{PK[hd]+i}, vcc")
            A(f"ds_write_b128 v10, {v(MM[hd],4)} offset:{4096 + hd*1024}")
        A("s_waitcnt lgkmcnt(0)")
        A.label("Lnbp" + sfx)
        A.vmem(f"buffer_store_dwordx4 {v(MM[0],4)}, v2, {WS}, s{sMS} offen sc1", "ast")
        A.vmem(f"buffer_store_dwordx4 {v(MM[1],4)}, v2, {WS}, s{sMS} offen offset:1024 sc1", "ast")
        A.vmem(f"buffer_load_dword v21, v20, s[{S_DBG}:{S_DBG+3}], 0 offen sc1", "nonce")
    GFR, GAC = 84, 40
    def gate_reads():
        for k in range(8):
            A.lds(f"ds_read_b128 {v(GFR+4*k,4)}, v11 offset:{k*64}", f"gf{k}")
    def gate_mm(ch):
        for k in range(8):
            A.wait(lg=f"gf{k}")
            for sub in range(2):
                A(f"{MF16} {v(GAC+4*sub,4)}, {v(GFR+4*k,4)}, {v(XF(4*ch + k//2, k%2, sub),4)}, {v(GAC+4*sub,4) if k else 0}")
    def gate_part():
        A(f"""
        s_mov_b32 vcc_lo, 0x0000ffff
        s_mov_b32 vcc_hi, 0x0000ffff
        v_cndmask_b32 v18, v{GAC+4}, v{GAC}, vcc
        """)
        A.lds("ds_write_b32 v27, v18", "gp")
    def gate_fin():
        A.lds(f"ds_read_b64 v[{GAC}:{GAC+1}], v27", "gq")
        A(f"""
        s_lshl_b32 s{t0}, s{sRT128}, 2
        s_add_u32 s{t0}, s{t0}, s{sHD}
        s_lshl_b32 s{t0}, s{t0}, 7
        s_add_u32 s{t0}, s{t0}, {GF}
        """)
        A.wait(lg="gq")
        A(f"""
        v_add_f32 v18, v{GAC}, v{GAC+1}
        v_cvt_pk_bf16_f32 v18, v18, v18
        v_lshlrev_b32 v18, 16, v18
        v_mul_f32 v18, {hex(LOG2E ^ 0x80000000)}, v18
        v_exp_f32 v18, v18
        s_nop 0
        v_add_f32 v18, 1.0, v18
        v_rcp_f32 v18, v18
        s_nop 0
        v_cvt_pk_bf16_f32 v18, v18, v18
        v_lshlrev_b32 v22, 16, v18
        s_mov_b64 exec, 0xffffffff
        buffer_store_dword v22, v24, {WS}, s{t0} offen sc1
        s_mov_b64 exec, -1
        """)
    GC = 64
    def gap_prep():
        A(f"""
        v_mov_b32 v{GC}, {hex(ONES)}
        s_mov_b32 vcc_lo, 0x55555555
        s_mov_b32 vcc_hi, 0x55555555
        v_cndmask_b32 v{GC}, 0, v{GC}, vcc
        v_mov_b32 v{GC+1}, v{GC}
        v_mov_b32 v{GC+2}, v{GC}
        v_mov_b32 v{GC+3}, v{GC}
        v_lshrrev_b32 v7, 1, v1
        v_and_b32 v8, 1, v1
        v_mul_u32_u24 v4, {8*TS}, v7
        v_lshl_add_u32 v4, v8, 4, v4
        v_add_u32 v4, s{sSTG}, v4
        v_lshrrev_b32 v3, 5, v1
        v_mov_b32 v7, v16
        v_mov_b32 v8, v17
        """)
        for hd in range(2): A.lds(f"ds_read_b128 {v(MM[hd],4)}, v10 offset:{hd*1024}", "pm")

    def get_nonce(lbl):
        A(f"s_mov_b32 s{t5}, 0")
        A.label(lbl)
        A(f"""
        v_readfirstlane_b32 s{sN}, v21
        s_add_u32 s{t5}, s{t5}, 1
        s_cmp_lg_u32 s{sN}, 0
        s_cbranch_scc1 {lbl}_ok
        s_cmp_gt_u32 s{t5}, {SPIN_MAX}
        s_cbranch_scc1 {lbl}_ok
        s_sleep 2
        buffer_load_dword v21, v20, s[{S_DBG}:{S_DBG+3}], 0 offen sc1
        s_waitcnt vmcnt(0)
        s_branch {lbl}
        """)
        A.label(lbl + "_ok")
    def publish(lbl, cgreg, off):
        A(f"s_cmp_lg_u32 s{sW}, 0\ns_cbranch_scc1 {lbl}")
        A(f"""
        s_lshl_b32 s{t0}, s{cgreg}, 8
        s_lshl_b32 s{t1}, s{sRT128}, 2
        s_add_u32 s{t0}, s{t0}, s{t1}
        s_add_u32 s{t0}, s{t0}, {FA + off}
        s_mov_b64 exec, 1
        buffer_store_dword v21, v20, {WS}, s{t0} offen sc1
        s_mov_b64 exec, -1
        """)
        A.label(lbl)
    def capture(fn, *args):
        keep_lines = A.lines
        rec = []
        A.lines = []
        ov, ol, ow = A.vmem, A.lds, A.wait
        def flush():
            for l in A.lines: rec.append(("i", l))
            A.lines = []
        A.vmem = lambda text, tag=None: (flush(), rec.append(("vm", text, tag)))
        A.lds = lambda text, tag=None: (flush(), rec.append(("lg", text, tag)))
        A.wait = lambda vm=None, lg=None: (flush(), rec.append(("w", vm, lg)))
        fn(*args); flush()
        A.vmem, A.lds, A.wait = ov, ol, ow
        A.lines = keep_lines
        out, grp = [], []
        def mk(g):
            def f():
                for r in g:
                    if r[0] == "i": A(r[1])
                    elif r[0] == "vm": A.vmem(r[1], r[2])
                    elif r[0] == "lg": A.lds(r[1], r[2])
                    else: A.wait(r[1], r[2])
            return f
        for r in rec:
            grp.append(r)
            if r[0] == "i" and r[1].strip().startswith("s_"): continue
            if r[0] == "w": continue
            out.append(mk(grp)); grp = []
        if grp: out.append(mk(grp))
        return out
    bg = []
    def group(m, rds, ndma, must=()):
        rds, must = list(rds), list(must)
        n = len(m)
        dslots = [int((k + 0.5) * n / ndma) for k in range(ndma)] if ndma else []
        for i, f in enumerate(m):
            f()
            k = -(-len(rds) // max(1, n - 1 - i)) if i < n - 1 else len(rds)
            for _ in range(k):
                if rds: rds.pop(0)()
            did = False
            if i in dslots: did = next_dma() and dmode[0] != "none"
            if i >= 1 and must:
                k = -(-len(must) // (n - i))
                for _ in range(k):
                    if must: must.pop(0)()
            elif not did:
                if bg: bg.pop(0)()
        for f in rds + must: f()

    Q, KF, V1, V2 = 28, 96, 100, 104
    def kv_first(withq=False):
        A(f"s_mov_b32 m0, s{sSTG}\ns_nop 0")
        A(f"buffer_load_dwordx4 v2, {WS}, s{sKV} offen sc1 lds")
        A(f"buffer_load_dwordx4 v2, {WS}, s{sKV} offen offset:1024 sc1 lds")
        A(f"s_add_u32 m0, s{sSTG}, {8*TS}\ns_add_u32 s{t4}, s{sKV}, {8*2048}")
        A(f"buffer_load_dwordx4 v2, {WS}, s{t4} offen sc1 lds")
        A(f"buffer_load_dwordx4 v2, {WS}, s{t4} offen offset:1024 sc1 lds")
        A(f"s_mov_b32 s{sRDY}, 1")
        if withq: A(f"buffer_load_dwordx4 {v(Q,4)}, v2, {WS}, s{sQA} offen sc1\ns_mov_b32 s{sRDY}, 2")

    nck = [0]
    def check(withq=False):
        n = nck[0]; nck[0] += 1
        A(f"""
        s_cmp_lg_u32 s{sRDY}, 0
        s_cbranch_scc1 Lck{n}
        s_cmp_lg_u32 s{sW}, 7
        s_cbranch_scc1 Lck{n}_l
        s_waitcnt vmcnt(0)
        v_cmp_ne_u32 vcc, s{sN}, v0
        s_nop 1
        s_cbranch_vccz Lck{n}_y
        buffer_load_dword v0, v9, {WS}, s{sKVL} offen sc1
        s_branch Lck{n}
        """)
        A.label(f"Lck{n}_l")
        A(f"""
        ds_read_b32 v6, v25
        s_waitcnt lgkmcnt(0)
        v_readfirstlane_b32 s{t2}, v6
        s_nop 0
        s_cmp_eq_u32 s{t2}, 0
        s_cbranch_scc1 Lck{n}
        """)
        A.label(f"Lck{n}_y")
        A("ds_write_b32 v25, v21")
        kv_first(withq)
        A.label(f"Lck{n}")
    PUB = int(OPT.get("pub", 9))
    def rel_stage(S):
        if S < 4:
            xfree.append(dunit[("x", S)]); wfree.append(dunit[("w", S)])
        elif S < 8:
            qfree.append(dunit[("x", S)]); qfree.append(dunit[("w", S)])
    ND = int(OPT.get("nd", 4))
    def wo_dma():
        A(f"""
        s_and_b32 s{t0}, s2, 7
        s_lshl_b32 s{t0}, s{t0}, 3
        s_bfe_u32 s{t1}, s2, 0x30003
        s_add_u32 s{t0}, s{t0}, s{t1}            ; kidx
        s_cmp_lt_u32 s{t0}, 32
        s_cselect_b32 s{S_WB}, s8, s12
        s_cselect_b32 s{S_WB+1}, s9, s13
        s_mov_b32 s{S_WB+2}, 512*1024
        s_mov_b32 s{S_WB+3}, 0x20000
        s_lshl_b32 s{t1}, s{sC4}, 3
        s_add_u32 s{t1}, s{t1}, s{sW}            ; ct16
        s_lshl_b32 s{t2}, s{t1}, 6
        s_add_u32 s{t2}, s{t2}, s{t0}
        s_lshl_b32 s{t2}, s{t2}, 10
        s_add_u32 s{t2}, s{t2}, {WOF}
        s_and_b32 s{t0}, s{t0}, 31
        s_lshl_b32 s{t0}, s{t0}, 14
        s_lshl_b32 s{t1}, s{t1}, 6
        s_add_u32 s{t0}, s{t0}, s{t1}
        s_cmp_eq_u32 s{sBR}, 0
        s_cselect_b32 s{sWOB}, s{t2}, s{sWOB}
        s_cselect_b32 s{sAK}, s{t0}, {hex(OOB)}
        """)
    def stage(S, ch):
        br = 0
        sfx = f"_{ch}"
        group(mms(S, 0, br), reads(S, 1, br), ND, [])
        if S == 7:
            group(mms(S, 1, br), [], 0, [])
            return
        if S == 11:
            while bg: bg.pop(0)()
            A(f"s_cmp_eq_u32 s{sBR}, 0\ns_cbranch_scc1 Lnomk{sfx}")
            for i in range(6): A(f"ds_read_b128 {v(128+4*i,4)}, v23 offset:{i*1024}")
            A.label("Lnomk" + sfx)
        if S == PUB: A.wait(vm=[f"st{S+1}", "ast", "nonce"])
        elif S < 11: A.wait(vm=f"st{S+1}")
        if S == 11: A.wait(lg="all")
        A("s_barrier")
        if S < 7: stamp(A, "A", S + 1)
        if 8 <= S < 11: stamp(A, "A", S + 1)
        if S >= 1: rel_stage(S - 1)
        if S == int(OPT.get("qs", 2)):
            A(f"s_add_u32 s{t0}, s{sAQ}, 65536")
            A.vmem(f"buffer_store_dwordx4 v[64:67], v2, {WS}, s{sAQ} offen sc1", "qs")
            A.vmem(f"buffer_store_dwordx4 v[64:67], v2, {WS}, s{t0} offen sc1", "qs")
        if S == 8:
            wo_dma()
            bg.extend(capture(gap_prep))
        if S == PUB:
            get_nonce("Lnonce" + sfx)
            A(f"""
            s_cmp_eq_u32 s{sFLG}, 0
            s_cbranch_scc1 Lnofl{sfx}
            s_mov_b64 exec, 1
            buffer_store_dword v21, v20, {WS}, s{sFLG} offen sc1
            s_mov_b64 exec, -1
            """)
            A.label("Lnofl" + sfx)
        if S == 10:
            A(f"s_cmp_eq_u32 s{sHF}, 0\ns_cbranch_scc1 Lnohp{sfx}\nbuffer_load_dword v0, v20, {WS}, s{sHF} offen sc1")
            A.label("Lnohp" + sfx)
            if ch == 1:
                A(f"s_cmp_lg_u32 s{sW}, 7\ns_cbranch_scc1 Lnp0")
                A(f"buffer_load_dword v0, v9, {WS}, s{sKVL} offen sc1")
                A.label("Lnp0")
        if S == 11:
            A(f"""
            s_cmp_eq_u32 s{sHF}, 0
            s_cbranch_scc1 Lnohq{sfx}
            s_waitcnt vmcnt(0)
            v_readfirstlane_b32 s{t2}, v0
            s_nop 0
            s_cmp_eq_u32 s{t2}, s{sN}
            s_cselect_b32 s{sHF}, 0, s{sHF}
            s_cbranch_scc1 Lnohq{sfx}
            buffer_load_dword v0, v20, {WS}, s{sHF} offen sc1
            """)
            A.label("Lnohq" + sfx)
            if ch == 1:
                A(f"s_cmp_lg_u32 s{sW}, 7\ns_cbranch_scc1 Lnp7")
                check()
                A.label("Lnp7")
        group(mms(S, 1, br), reads(S + 1, 0, br) if S < 11 else [], ND, [])

    A(f"""
    v_and_b32 v18, 3, v1
    v_lshrrev_b32 v5, 2, v1
    v_lshlrev_b32 v5, 10, v5
    v_lshl_add_u32 v5, v18, 4, v5
    v_bfe_u32 v19, v1, 2, 2
    v_lshrrev_b32 v26, 5, v1
    v_lshl_add_u32 v26, v26, 2, v19
    v_lshlrev_b32 v26, 6, v26
    v_bfe_u32 v19, v1, 4, 1
    v_lshl_add_u32 v26, v19, 5, v26
    v_lshl_add_u32 v26, v18, 3, v26
    s_add_u32 s{t2}, s{sM1}, {L_WT}
    v_add_u32 v26, s{t2}, v26
    """)
    A.wait(vm="st0"); A("s_barrier")
    stamp(A)
    for f in reads(0, 0, 0): f()
    A(f"s_cmp_lg_u32 s{sRT}, 0\ns_cbranch_scc1 LV1")
    save = (list(A.vm), list(A.lg), dict(dunit), list(xfree), list(wfree), list(pending), NST[0])
    def poll_issue():
        A(f"buffer_load_dword v0, v24, {WS}, s{sKVL} offen sc1")
    for ch in range(2):
        A.label(f"LV{ch}")
        A.vm, A.lg = list(save[0]), list(save[1])
        dunit.clear(); dunit.update(save[2]); xfree[:] = save[3]; wfree[:] = save[4]; pending[:] = save[5]; qfree[:] = []
        if INSTR == "1": NST[0] = save[6]
        if ch: A("s_setprio 1")
        dmode[0] = ("none", "dbl")[ch]
        for S in range(8): stage(S, ch)
        assert not pending
        kv_epilogue(f"_{ch}")
        stamp(A); stamp(A, "A", 8)
        A.wait(vm="st8"); A("s_barrier")
        for f in reads(8, 0, 0): f()
        for S in range(8, 12): stage(S, ch)
        if ch: A("s_setprio 0")
        if ch == 0: A("s_branch LPdone")
    A.label("LPdone")
    A.vm = []; A.lg = []
    stamp(A)
    A("s_mov_b64 exec, 0xffff")
    A(f"ds_write_b128 v4, {v(GC,4)} offset:2048")
    A("s_mov_b64 exec, -1")
    A(f"v_mov_b32 v{IDX}, 0xdddddddd")
    A(f"s_cmp_lg_u32 s{sBR}, 0\ns_cbranch_scc1 LBdone")
    A("s_nop 2")
    for i in range(8): A(f"v_pk_mul_f32 {v(QA+2*i,2)}, {v(QA+2*i,2)}, s[{sC}:{sC+1}] op_sel_hi:[1,0]")
    pack4(QA, 116); pack4(QA + 8, 120)
    for i in range(8): A(f"v_min_u32 v{116+i}, -2, v{116+i}")
    swap(116)
    A(f"s_add_u32 s{t0}, s{sAQ}, 65536")
    check()
    A(f"buffer_store_dwordx4 v[116:119], v2, {WS}, s{sAQ} offen sc1")
    swap(120)
    A(f"buffer_store_dwordx4 v[120:123], v2, {WS}, s{t0} offen sc1")
    check()
    A(f"s_cmp_lg_u32 s{sCGK}, 0\ns_cbranch_scc1 Lnog1")
    gate_reads()
    A(f"s_cmp_lg_u32 s{sRT}, 0\ns_cbranch_scc1 Lgm1")
    lg0 = list(A.lg)
    gate_mm(0)
    A("s_branch Lgm2")
    A.label("Lgm1")
    A.lg = lg0
    gate_mm(1)
    A.label("Lgm2")
    A("s_nop 5")
    gate_part()
    A.wait(lg="all"); A("s_barrier")
    A(f"s_cmp_lg_u32 s{sRT}, 0\ns_cbranch_scc1 Lnog1")
    gate_fin()
    A.label("Lnog1")
    if INSTR == "1": stamp(A, "1", save[6] + 2); NST[0] = save[6] + 2
    A("s_branch Lwait")
    A.label("LBdone")
    A.vm = []; A.lg = []
    A(f"s_cmp_lg_u32 s{sHD}, 0\ns_cbranch_scc1 Lnoh\ns_mov_b32 s{t5}, 0\ns_cmp_eq_u32 s{sHF}, 0\ns_cbranch_scc1 Lhok")
    A.label("Lhp")
    A(f"""
    s_waitcnt vmcnt(0)
    v_readfirstlane_b32 s{t2}, v0
    s_add_u32 s{t5}, s{t5}, 1
    s_cmp_eq_u32 s{t2}, s{sN}
    s_cbranch_scc1 Lhok
    s_cmp_gt_u32 s{t5}, {SPIN_MAX}
    s_cbranch_scc1 Lhok
    buffer_load_dword v0, v20, {WS}, s{sHF} offen sc1
    s_branch Lhp
    """)
    A.label("Lhok")
    A(f"""
    buffer_load_dwordx4 {v(MM[0],4)}, v2, {WS}, s{sHS} offen sc1
    buffer_load_dwordx4 {v(MM[1],4)}, v2, {WS}, s{sHS} offen offset:1024 sc1
    s_cmp_lg_u32 s{sRT128}, 0
    s_cbranch_scc1 Lnoh
    """)
    for i in range(8): A(f"v_mov_b32 v{144+i}, {hex(NEGBIG)}")
    A.label("Lnoh")
    QB = [68, 72]
    SO = [160, 192]; SPv = [176, 208]; OBA = [224, 240]
    pack4(QA, QB[0]); pack4(QA + 8, QB[1])
    swap(QB[0])
    for i in range(2): A(f"v_mov_b64 {v(OBA[0]+2*i,2)}, 0")
    swap(QB[1])
    A(f"{MF32} {v(SO[0],16)}, {v(PK[0],4)}, {v(QB[0],4)}, v[128:143]")
    for i in range(2, 8): A(f"v_mov_b64 {v(OBA[0]+2*i,2)}, 0")
    A(f"{MF32} {v(SO[1],16)}, {v(PK[1],4)}, {v(QB[1],4)}, v[128:143]")
    for i in range(8): A(f"v_mov_b64 {v(OBA[1]+2*i,2)}, 0")
    regs = [[SO[hd] + i for i in range(16)] + [SPv[hd] + i for i in range(8, 16)] for hd in range(2)]
    MX = [76, 78]
    A(f"s_cmp_eq_u32 s{sHD}, 0\ns_cbranch_scc1 Lq2")
    check()
    A.label("Lq2")
    for hd in range(2):
        r = regs[hd]; m = MX[hd]
        A(f"v_max3_f32 v{m}, v{r[0]}, v{r[1]}, v{r[2]}")
        for i in range(3, 15, 2): A(f"v_max3_f32 v{m}, v{m}, v{r[i]}, v{r[i+1]}")
    A(f"s_cmp_lg_u32 s{sHD}, 0\ns_cbranch_scc1 Lnoh2\ns_waitcnt vmcnt(0)")
    A.label("Lnoh2")
    for hd in range(2):
        A(f"{MF32} {v(SPv[hd],16)}, {v(MM[hd],4)}, {v(QB[hd],4)}, v[136:151]")
    A("s_mov_b32 vcc_lo, 0xffff0000\ns_mov_b32 vcc_hi, 0xffff0000")
    for hd in range(2):
        for i in range(4): A(f"v_cndmask_b32 v{VP[hd]+i}, v{MM[hd]+i}, v44, vcc")
    check()
    A("s_nop 1")
    for hd in range(2):
        r = regs[hd]; m = MX[hd]
        for i in range(15, 23, 2): A(f"v_max3_f32 v{m}, v{m}, v{r[i]}, v{r[i+1]}")
        A(f"v_max_f32 v{m}, v{m}, v{r[23]}")
        A(f"v_mov_b32 v{m+1}, v{m}")
    A("s_nop 0")
    for hd in range(2): A(f"v_permlane32_swap_b32 v{MX[hd]}, v{MX[hd]+1}")
    for hd in range(2): A(f"v_max_f32 v{MX[hd]}, v{MX[hd]}, v{MX[hd]+1}")
    for hd in range(2): A(f"v_mul_f32 v{MX[hd]}, {hex(CSCALE ^ 0x80000000)}, v{MX[hd]}")
    VFS = [[PV[hd], VF1[hd], VP[hd]] for hd in range(2)]
    for hd in range(2):
        r = regs[hd]
        for x in r[::2]: A(f"v_pk_fma_f32 {v(x,2)}, {v(x,2)}, s[{sC}:{sC+1}], {v(MX[hd],2)} op_sel_hi:[1,0,0]")
        if hd: A(f"{SMF} {v(OBA[0],16)}, {v(VFS[0][2],4)}, {v(regs[0][16],8)}, v{IDX}")
        for k in range(3):
            for x in r[8*k:8*k+8]: A(f"v_exp_f32 v{x}, v{x}")
            if k: A(f"{SMF} {v(OBA[hd],16)}, {v(VFS[hd][k-1],4)}, {v(r[8*k-8],8)}, v{IDX}")
        if hd == 0:
            check()
            A(f"s_cmp_lg_u32 s{sRDY}, 1\ns_cbranch_scc1 Lnq\nbuffer_load_dwordx4 {v(Q,4)}, v2, {WS}, s{sQA} offen sc1\ns_mov_b32 s{sRDY}, 2")
            A.label("Lnq")
    A(f"v_rcp_f32 v76, v{OBA[0]+8}\ns_nop 0")
    A(f"{SMF} {v(OBA[1],16)}, {v(VFS[1][2],4)}, {v(regs[1][16],8)}, v{IDX}")
    for i in range(4): A(f"v_pk_mul_f32 {v(OBA[0]+2*i,2)}, {v(OBA[0]+2*i,2)}, v[76:77] op_sel_hi:[1,0]")
    pack4(OBA[0], 136)
    A("s_nop 3")
    A(f"v_rcp_f32 v76, v{OBA[1]+8}\ns_nop 0")
    for i in range(4): A(f"v_pk_mul_f32 {v(OBA[1]+2*i,2)}, {v(OBA[1]+2*i,2)}, v[76:77] op_sel_hi:[1,0]")
    pack4(OBA[1], 140)
    stamp(A)
    A.label("Lwait")
    C, O = 32, 48
    SS = [64, 80, 112]
    SA = SS[0]
    for i in range(2): A(f"v_mov_b64 {v(128+2*i,2)}, -1")
    srd(A, S_T, 66, 2048 * 1024)
    A(f"""
    s_lshl_b32 s{t0}, s{sC4}, 2
    s_add_u32 s{t0}, s{t0}, s{sHD}
    s_lshl_b32 s{t0}, s{t0}, 16
    s_lshl_b32 s{t1}, s{sRT}, 14
    s_add_u32 s{t2}, s{t0}, s{t1}
    s_add_u32 s{sWO}, s{t2}, {WOF}
    s_lshl_b32 s{t0}, s{sRT128}, 2
    s_add_u32 s{t0}, s{t0}, s{sQD}
    s_lshl_b32 s{t0}, s{t0}, 16
    s_add_u32 s{t0}, s{t0}, s{t1}
    s_add_u32 s{sXO}, s{t0}, {OF + 32768}
    s_cmp_eq_u32 s{sBR}, 0
    s_cselect_b32 s{sMS}, {hex(OOB)}, s{sWOB}
    s_cselect_b32 s{sWOB}, s{sWOB}, {hex(OOB)}
    """)
    for i in range(8): A(f"v_mov_b64 {v(O+2*i,2)}, 0")
    for i in range(4, 8): A(f"v_mov_b64 {v(SS[2]+2*i,2)}, 0")
    A("v_mov_b32 v14, v2\nv_mov_b32 v15, v16\nv_mov_b32 v16, v17")
    A(f"s_mov_b32 s{t5}, 0")
    A.label("Lspin")
    check()
    A(f"""
    s_cmp_lg_u32 s{sRDY}, 0
    s_cbranch_scc1 Lrdy
    s_add_u32 s{t5}, s{t5}, 1
    s_sleep 1
    s_cmp_lt_u32 s{t5}, {SPIN_MAX}
    s_cbranch_scc1 Lspin
    """)
    A.label("Lrdy")
    A(f"s_cmp_eq_u32 s{sRDY}, 2\ns_cbranch_scc1 Lnq2\nbuffer_load_dwordx4 {v(Q,4)}, v2, {WS}, s{sQA} offen sc1")
    A.label("Lnq2")
    A("s_waitcnt vmcnt(1)")
    A("s_waitcnt lgkmcnt(0)\ns_barrier")
    A.vm = []; A.lg = []
    A.lds(f"ds_read_b128 {v(KF,4)}, v2", "k")
    A.lds(f"ds_read_b128 {v(V2,4)}, v8", "v2")
    A.lds(f"ds_read_b128 {v(V1,4)}, v7", "v1")
    A(f"s_mov_b32 s{t5}, 0")
    A.label("Lqp")
    A(f"""
    s_waitcnt vmcnt(0)
    v_max3_u32 v9, v{Q}, v{Q+1}, v{Q+2}
    v_max_u32 v9, v9, v{Q+3}
    v_cmp_eq_u32 vcc, -1, v9
    s_add_u32 s{t5}, s{t5}, 1
    s_cmp_gt_u32 s{t5}, {SPIN_MAX}
    s_cbranch_vccz Lqok
    s_cbranch_scc1 Lqok
    buffer_load_dwordx4 {v(Q,4)}, v2, {WS}, s{sQA} offen sc1
    s_branch Lqp
    """)
    A.label("Lqok")
    stamp(A)
    A(f"s_mov_b32 s{sPASS}, 0\ns_mov_b32 s{sKVL}, {FOB}")
    A.wait(lg="k")
    A(f"{MF32} {v(SA,16)}, {v(KF,4)}, {v(Q,4)}, 0")
    A("s_nop 1")
    A("s_nop 9")
    A(f"v_max3_f32 v9, v{SA}, v{SA+1}, v{SA+2}")
    for i in range(3, 15, 2): A(f"v_max3_f32 v9, v9, v{SA+i}, v{SA+i+1}")
    A(f"v_max_f32 v9, v9, v{SA+15}")
    A("v_mov_b32 v10, v9\ns_nop 1\nv_permlane32_swap_b32 v9, v10\nv_max_f32 v9, v9, v10")
    A.lds(f"ds_read_b128 {v(KF,4)}, v2 offset:{TS}", "k")
    for i in range(16): A(f"v_sub_f32 v{C+i}, 0, v9")
    for i in range(16): A(f"v_sub_f32 v{SA+i}, v{SA+i}, v9")
    A.wait(lg="all")
    E1, E2 = int(OPT.get("e1", 5)), int(OPT.get("e2", 11))
    def tile(j, jo, hooks=None):
        hooks = hooks or {}
        Sa, Sn, Sp = SS[j % 3], SS[(j + 1) % 3], SS[(j - 1) % 3]
        ex = lambda i: A(f"v_exp_f32 v{Sa+i}, v{Sa+i}")
        A.wait(lg="v2")
        A(f"{MF32} {v(Sn,16)}, {v(KF,4)}, {v(Q,4)}, {v(C,16)}")
        A.lds(f"ds_read_b128 {v(KF,4)}, v14 offset:{(jo+2)*TS}", "k")
        for i in range(E1): ex(i)
        A(f"{SMF} {v(O,16)}, {v(V2,4)}, {v(Sp+8,8)}, v{IDX}")
        A.lds(f"ds_read_b128 {v(V2,4)}, v16 offset:{jo*TS}", "v2")
        for f in hooks.get(0, []): f()
        for i in range(E1, E2): ex(i)
        A.wait(lg="v1")
        A(f"{SMF} {v(O,16)}, {v(V1,4)}, {v(Sa,8)}, v{IDX}")
        A.lds(f"ds_read_b128 {v(V1,4)}, v15 offset:{(jo+1)*TS}", "v1")
        for f in hooks.get(1, []): f()
        for i in range(E2, 14): ex(i)
        for f in hooks.get(2, []): f()
        for i in range(14, 16): ex(i)
    WB_, OB_, ACB, NOB = 128, 192, 240, 12
    def h_kv(i):
        def f():
            A(f"s_add_u32 m0, s{sSTG}, {i*8*TS}\ns_add_u32 s{t4}, s{sKV}, {i*8*2048}")
            A.vmem(f"buffer_load_dwordx4 v2, {WS}, s{t4} offen sc1 lds", f"kv{i}")
            A.vmem(f"buffer_load_dwordx4 v2, {WS}, s{t4} offen offset:1024 sc1 lds", f"kv{i}")
        return f
    def h_st():
        A.vmem(f"buffer_store_dwordx4 v[136:139], v2, {WS}, s{sMS} offen sc1", "obst")
        A.vmem(f"buffer_store_dwordx4 v[140:143], v2, {WS}, s{sMS} offen offset:1024 sc1", "obst")
        A.vmem(f"buffer_store_dwordx4 v[128:131], v2, {WS}, s{sOA} offen sc1", "sent")
    def h_wd():
        A(f"s_add_u32 m0, s{sM1}, {L_WT}\ns_nop 0")
        A.vmem(f"buffer_load_dwordx4 v5, s[{S_WB}:{S_WB+3}], s{sAK} offen lds", "wod")
        A("v_and_b32 v5, 31, v1")
    def h_wt1():
        A.wait(vm="wod")
        A.lds("ds_read_b64_tr_b16 v[132:133], v26", "wt")
        A.lds("ds_read_b64_tr_b16 v[134:135], v26 offset:512", "wt")
    def h_wt2():
        A.wait(lg="wt")
        A.vmem(f"buffer_store_dwordx4 v[132:135], v2, {WS}, s{sWOB} offen sc1", "sent")
    def h_cnt():
        A.wait(vm="sent")
        A("v_mov_b32 v0, 1\ns_mov_b64 exec, 1")
        A.lds("ds_add_rtn_u32 v0, v25, v0 offset:4", "cnt")
        A("s_mov_b64 exec, -1")
    def h_pub():
        A.wait(lg="cnt")
        A(f"""
        v_readfirstlane_b32 s{t0}, v0
        s_lshl_b32 s{t1}, s2, 2
        s_add_u32 s{t1}, s{t1}, {FOB}
        s_cmp_lg_u32 s{t0}, 7
        s_cbranch_scc1 Lnofob
        s_mov_b64 exec, 1
        buffer_store_dword v21, v20, {WS}, s{t1} offen sc1
        s_mov_b64 exec, -1
        """)
        A.label("Lnofob")
    def h_poll():
        A.vmem(f"buffer_load_dwordx4 v[192:195], v2, {WS}, s{sKVL} offen sc1", "mp")
    def h_check():
        A(f"s_mov_b32 s{t5}, 0")
        A.wait(vm="mp")
        A.label("Lpollm")
        A(f"""
        v_xor_b32 v192, s{sN}, v192
        v_xor_b32 v193, s{sN}, v193
        v_xor_b32 v194, s{sN}, v194
        v_xor_b32 v195, s{sN}, v195
        v_or3_b32 v192, v192, v193, v194
        v_or_b32 v192, v192, v195
        v_cmp_ne_u32 vcc, 0, v192
        s_add_u32 s{t5}, s{t5}, 1
        s_cmp_gt_u32 s{t5}, {SPIN_MAX}
        s_cbranch_vccz Lpollm_ok
        s_cbranch_scc1 Lpollm_ok
        s_sleep 8
        buffer_load_dwordx4 v[192:195], v2, {WS}, s{sKVL} offen sc1
        s_waitcnt vmcnt(0)
        s_branch Lpollm
        """)
        A.label("Lpollm_ok")
    def ld(dst, sb, off, tag):
        def f():
            A(f"s_add_u32 s{t4}, s{sb}, {off}")
            A.vmem(f"buffer_load_dwordx4 {v(dst,4)}, v2, {WS}, s{t4} offen sc1", tag)
        return f
    def h_bmm(n):
        def f():
            A.wait(vm=[f"wb{n}", f"ob{n}"])
            A(f"{MF32} {v(ACB,16)}, {v(WB_+4*n,4)}, {v(OB_+4*(n%NOB),4)}, {v(ACB,16) if n else 0}")
        return f
    def h_tailprep():
        A(f"""
        s_lshl_b32 s{t0}, s{sRT128}, 2
        s_add_u32 s{t0}, s{t0}, s{sQD}           ; to
        s_lshl_b32 s{t3}, s{t0}, 16
        s_lshl_b32 s{t2}, s{sW}, 12
        s_add_u32 s{t3}, s{t3}, s{t2}
        s_add_u32 s{sKV}, s{t3}, {OF}
        v_add_u32 v26, s{t2}, v2
        s_lshl_b32 s{t3}, s{sRT}, 14
        v_add_u32 v18, s{t3}, v2
        s_lshl_b32 s{t3}, s{sHD}, 12
        s_add_u32 s{t3}, s{t3}, {L_RED}
        v_add_u32 v19, s{t3}, v2
        v_lshlrev_b32 v11, 10, v5
        v_lshl_add_u32 v11, v3, 4, v11
        s_lshl_b32 s{t0}, s{t0}, 15
        s_lshl_b32 s{t3}, s{sC4}, 8
        s_add_u32 s{t0}, s{t0}, s{t3}
        s_lshl_b32 s{t3}, s{sHD}, 6
        s_add_u32 s{t0}, s{t0}, s{t3}
        s_lshl_b32 s{t3}, s{sRT}, 5
        s_add_u32 s{sWOB}, s{t0}, s{t3}
        """)
    hooks = {j: {0: [], 1: [], 2: []} for j in range(64)}
    for i in range(2, 8): hooks[i - 2][0].append(h_kv(i))
    hooks[6][0].append(h_wd)
    hooks[7][0].append(h_st)
    hooks[14][0].append(h_wt1)
    hooks[15][0].append(h_wt2)
    CN = int(OPT.get("cn", 18))
    hooks[CN][1].append(h_cnt)
    hooks[CN + 1][1].append(h_pub)
    T0 = int(OPT.get("t0", 38))
    hooks[T0 - 4][0].append(h_poll)
    hooks[T0][0].append(h_check)
    def h_g():
        A(f"s_lshl_b32 s{t0}, s{sRT128}, 2\ns_add_u32 s{t0}, s{t0}, s{sQD}\ns_lshl_b32 s{t0}, s{t0}, 7\ns_add_u32 s{t0}, s{t0}, {GF}")
        A.vmem(f"buffer_load_dword v22, v24, {WS}, s{t0} offen sc1", "g")
    hooks[T0][0].append(h_g)
    for n in range(16):
        hooks[T0 + n][0].append(ld(WB_ + 4 * n, sWO, 32768 + n * 1024, f"wb{n}"))
        hooks[T0 + n][1].append(ld(OB_ + 4 * (n % NOB), sXO, n * 1024, f"ob{n}"))
        hooks[T0 + 8 + n][2].append(h_bmm(n))
        hooks[T0 + 9 + n][1].append(ld(WB_ + 4 * n, sWO, n * 1024, f"wa{n}"))
    hooks[26][0].append(h_tailprep)
    if OPT.get("nohk"):
        for j in range(24, 64): hooks[j] = {0: [], 1: [], 2: []}
        hooks[26][0].append(h_tailprep)
    prios = {0: 3, 10: 2, 14: 3, CN + 2: 2, 50: 1, 60: 0}
    if OPT.get("prio") == "b": prios = {0: 3, 9: 2, 12: 1, 14: 3, 20: 2, 44: 1, 58: 0}
    if OPT.get("prio") == "c": prios = {0: 3, 10: 2, 14: 3, 20: 2, 54: 1, 62: 0}
    if OPT.get("prio") == "alt":
        prios = {}
    base = 0
    for j in range(64):
        if j in prios: A(f"s_setprio {prios[j]}")
        if OPT.get("prio") == "alt": A(f"s_setprio {3 - (j % 4)}")
        if j - base == 24:
            A(f"v_add_u32 v14, {24*TS}, v14\nv_add_u32 v15, {24*TS}, v15\nv_add_u32 v16, {24*TS}, v16")
            base = j
        tile(j, j - base, hooks[j])
        if j == 13:
            A.wait(vm="kv7"); A("s_barrier")
    A.wait(lg="all")
    A("s_nop 0")
    A(f"{SMF} {v(O,16)}, {v(V2,4)}, {v(SS[63 % 3]+8,8)}, v{IDX}")
    A.label("Lfinish")
    A(f"""
    s_setprio 3
    s_mov_b32 s{t3}, 0x53800000
    s_mov_b32 s{t5}, 0
    s_nop 6
    s_cmp_lg_u32 s{sPASS}, 0
    s_cbranch_scc1 Lfin
    v_cmp_ngt_f32 vcc, s{t3}, v{O+8}
    s_nop 1
    {"" if OPT.get("nofb") else "s_cbranch_vccnz Lfallback"}
    """)
    A.label("Lfin")
    stamp(A)
    A(f"v_rcp_f32 v9, v{O+8}\ns_nop 0")
    for i in range(8): A(f"v_mul_f32 v{O+i}, v{O+i}, v9")
    for i in range(4): A(f"v_cvt_pk_bf16_f32 v{108+i}, v{O+2*i}, v{O+2*i+1}")
    for i in range(4): A(f"v_min_u32 v{108+i}, -2, v{108+i}")
    A(f"buffer_store_dwordx4 v[108:111], v2, {WS}, s{sOA} offen sc1")
    A("s_setprio 0")
    A.label("Lpoll3")
    for i in range(4):
        A(f"buffer_load_dwordx4 {v(32+4*i,4)}, v2, {WS}, s{sKV} offen offset:{i*1024} sc1")
    A(f"s_add_u32 s{t5}, s{t5}, 1\ns_cmp_lg_u32 s{t5}, 1\ns_cbranch_scc1 Lnsc")
    A("v_sub_f32 v23, 1.0, v22\nv_cvt_pk_bf16_f32 v23, v23, v23\nv_lshlrev_b32 v23, 16, v23")
    for i in range(16): A(f"v_mul_f32 v{ACB+i}, v23, v{ACB+i}")
    A.label("Lnsc")
    A("s_waitcnt vmcnt(0)")
    A("v_max3_u32 v9, v32, v33, v34")
    for i in range(35, 47, 2): A(f"v_max3_u32 v9, v9, v{i}, v{i+1}")
    A(f"""
    v_max_u32 v9, v9, v47
    v_cmp_eq_u32 vcc, -1, v9
    s_cmp_gt_u32 s{t5}, {SPIN_MAX}
    s_cbranch_scc1 Lpoll3_ok
    s_cbranch_vccz Lpoll3_ok
    s_sleep {OPT.get("slp", 2)}
    s_branch Lpoll3
    """)
    A.label("Lpoll3_ok")
    stamp(A)
    A("s_barrier")
    stamp(A)
    for i in range(4):
        A(f"ds_write_b128 v26, {v(32+4*i,4)} offset:{i*1024}")
    A("s_waitcnt lgkmcnt(0)\ns_barrier")
    stamp(A)
    ACA = 48
    A.lg = []
    for n in range(8):
        A.lds(f"ds_read_b128 {v(64+4*n,4)}, v18 offset:{n*1024}", f"o{n}")
    for n in range(16):
        A.wait(lg=f"o{n}")
        A(f"{MF32} {v(ACA,16)}, {v(WB_+4*n,4)}, {v(64+4*(n%8),4)}, {v(ACA,16) if n else 0}")
        if n + 8 < 16:
            A.lds(f"ds_read_b128 {v(64+4*n,4)}, v18 offset:{(n+8)*1024}", f"o{n+8}")
    A("s_nop 9")
    A(f"s_cmp_lg_u32 s{sRT}, 0\ns_cbranch_scc1 Lred1")
    for kh in range(2):
        snd, keep = (8, 0) if kh == 0 else (0, 8)
        if kh: A.label("Lred1")
        for i in range(8): A(f"v_fmac_f32 v{ACB+snd+i}, v22, v{ACA+snd+i}")
        A(f"ds_write_b128 v19, {v(ACB+snd,4)} offset:{snd*256}\nds_write_b128 v19, {v(ACB+snd+4,4)} offset:{snd*256+1024}")
        for i in range(8): A(f"v_fmac_f32 v{ACB+keep+i}, v22, v{ACA+keep+i}")
        A("s_waitcnt lgkmcnt(0)\ns_barrier")
        A(f"ds_read_b128 v[64:67], v19 offset:{keep*256}\nds_read_b128 v[68:71], v19 offset:{keep*256+1024}")
        A("s_waitcnt lgkmcnt(0)")
        for i in range(8): A(f"v_add_f32 v{64+i}, v{64+i}, v{ACB+keep+i}")
        if kh == 0: A("s_branch Lred2")
    A.label("Lred2")
    for i in range(4): A(f"v_cvt_pk_bf16_f32 v{72+i}, v{64+2*i}, v{65+2*i}")
    A("s_nop 1\nv_permlane32_swap_b32 v72, v74\nv_permlane32_swap_b32 v73, v75")
    A(f"buffer_store_dwordx4 v[72:75], v11, s[{S_T}:{S_T+3}], s{sWOB} offen")
    if INSTR:
        stamp(A)
        A("s_waitcnt vmcnt(0)")
        stamp(A)
        A("s_memrealtime s[100:101]\ns_waitcnt lgkmcnt(0)\ns_mov_b64 exec, 1")
        A(f"s_lshl_b32 s56, s2, 3\ns_add_u32 s56, s56, s{sW}\ns_lshl_b32 s56, s56, 6\ns_add_u32 s56, s56, {32<<20}")
        A("v_mov_b32 v0, 0")
        for i in range(NST[0]):
            A(f"v_mov_b32 v1, s{68+2*i}\nbuffer_store_dword v1, v0, {WS}, s56 offen offset:{4*i}")
        A(f"v_mov_b32 v1, s{t5}\nbuffer_store_dword v1, v0, {WS}, s56 offen offset:52")
        A(f"v_mov_b32 v1, s100\nbuffer_store_dword v1, v0, {WS}, s56 offen offset:60")
        A(f"v_mov_b32 v1, s98\nbuffer_store_dword v1, v0, {WS}, s56 offen offset:56")
        if os.environ.get("DBGOUT"):
            A(f"s_cmp_lg_u32 s{sW}, 0\ns_cbranch_scc1 Lend")
            A(f"s_not_b32 s56, s68\nv_mov_b32 v1, s56\nbuffer_atomic_umax v1, v0, s[{S_DBG}:{S_DBG+3}], 0 offen offset:4 sc1")
            for i in range(NST[0]):
                A(f"v_mov_b32 v1, s{68+2*i}\nbuffer_atomic_umax v1, v0, s[{S_DBG}:{S_DBG+3}], 0 offen offset:{8+4*i} sc1")
    A.label("Lend")
    A("s_endpgm")
    A.label("Lfallback")
    A.lg = []; A.vm = []
    A(f"s_setprio 0\ns_mov_b32 s{sPASS}, 1\nv_mov_b32 v14, v2\ns_mov_b32 s{sIT}, 0\nv_mov_b32 v9, 0xff800000")
    A.label("Lmaxloop")
    A(f"ds_read_b128 {v(KF,4)}, v14\nv_add_u32 v14, {TS}, v14\ns_waitcnt lgkmcnt(0)")
    A(f"{MF32} {v(SA,16)}, {v(KF,4)}, {v(Q,4)}, 0")
    A("s_nop 11")
    for i in range(0, 16, 2): A(f"v_max3_f32 v9, v9, v{SA+i}, v{SA+i+1}")
    A(f"s_add_u32 s{sIT}, s{sIT}, 1\ns_cmp_lt_u32 s{sIT}, 64\ns_cbranch_scc1 Lmaxloop")
    A("v_mov_b32 v10, v9\ns_nop 1\nv_permlane32_swap_b32 v9, v10\nv_max_f32 v9, v9, v10")
    for i in range(16): A(f"v_sub_f32 v{C+i}, 0, v9")
    for i in range(16): A(f"v_mov_b32 v{O+i}, 0")
    A("v_mov_b32 v14, v2\nv_mov_b32 v15, v7\nv_mov_b32 v16, v8")
    A(f"s_mov_b32 s{sIT}, 0")
    A.label("Lloop2")
    A(f"ds_read_b128 {v(KF,4)}, v14\nds_read_b128 {v(V1,4)}, v15\nds_read_b128 {v(V2,4)}, v16")
    A(f"v_add_u32 v14, {TS}, v14\nv_add_u32 v15, {TS}, v15\nv_add_u32 v16, {TS}, v16\ns_waitcnt lgkmcnt(0)")
    A(f"{MF32} {v(SA,16)}, {v(KF,4)}, {v(Q,4)}, {v(C,16)}")
    A("s_nop 11")
    for i in range(16): A(f"v_exp_f32 v{SA+i}, v{SA+i}")
    A("s_nop 1")
    A(f"{SMF} {v(O,16)}, {v(V1,4)}, {v(SA,8)}, v{IDX}")
    A(f"{SMF} {v(O,16)}, {v(V2,4)}, {v(SA+8,8)}, v{IDX}")
    A(f"s_nop 7\ns_add_u32 s{sIT}, s{sIT}, 1\ns_cmp_lt_u32 s{sIT}, 64\ns_cbranch_scc1 Lloop2")
    A("s_branch Lfinish")
    A.label("Lcode_end")
    return A.text()

def main():
    ref = open(f"cdna_kernels/{NAME}.s.ref").read().split("\n")
    head = [l for l in ref if l.startswith(";") and "@launch" not in l]
    head += ["; @launch grid=(256,1,1) block=(512,1,1) lds=163840"]
    out = "\n".join(head) + '\n.amdgcn_target "amdgcn-amd-amdhsa--gfx950"\n.text\n'
    t = kernel()
    for e in check(t): print("HAZARD", e)
    out += t + f""".section .rodata,"a"
.p2align 6
.amdhsa_kernel {KNAME}
  .amdhsa_next_free_vgpr 256
  .amdhsa_next_free_sgpr 102
  .amdhsa_accum_offset 256
  .amdhsa_group_segment_fixed_size 0
  .amdhsa_kernarg_size 80
  .amdhsa_user_sgpr_count 2
  .amdhsa_user_sgpr_kernarg_segment_ptr 1
  .amdhsa_system_sgpr_workgroup_id_x 1
.end_amdhsa_kernel
"""
    path = sys.argv[1] if len(sys.argv) > 1 else f"cdna_kernels/{NAME}.s"
    open(path, "w").write(out)
    r = subprocess.run(["clang", "-x", "assembler", "-target", "amdgcn-amd-amdhsa", "-mcpu=gfx950", "-c", path, "-o", "chk.o"], capture_output=True, text=True)
    if r.returncode: print("ASM ERROR", r.stderr[:1500])
    print("wrote", path, len(out), "stamps", NST[0])
main()
```

```python
import sys, os
from asmlib import Asm, v, s, check

NAME = "gated_mix__mha_block__sliding_local_dilated__prompt"
KNAME = NAME + "_kernel"
OPT = dict(x.split("=") for x in os.environ.get("OPT", "").split(",") if x)
INSTR = os.environ.get("INSTR")
QF, KVF, OF, FL, WOF = 0, 2 << 20, 6 << 20, 10 << 20, 11 << 20
FA, FOB = FL, FL + 2048
WS_BYTES = 268435456
CSCALE = 0x3EB8AA3B
LOG2E = 0x3FB8AA3B
NEGBIG = 0xF149F2CA
ONES = 0x3f803f80
TS = 2080
U = 8192
L_H, L_G, L_WT = 17 * U, 155648, 156672
L_EX = 163840 - 256 - 12 * TS
L_GV = 163840 - 256
L_RED = 65536
SPIN_MAX = 1 << 18

class G(Asm):
    def __init__(self):
        super().__init__()
        self.vm, self.lg = [], []
    def vmem(self, text, tag=None):
        self(text); self.vm.append(tag)
    def lds(self, text, tag=None):
        self(text); self.lg.append(tag)
    def _n(self, q, tags):
        if isinstance(tags, str): tags = [tags]
        idx = [i for i, t in enumerate(q) if t in tags]
        if not idx: return None
        return len(q) - 1 - idx[-1]
    def wait(self, vm=None, lg=None):
        parts = []
        if vm is not None:
            n = 0 if vm == "all" else self._n(self.vm, vm)
            if n is not None:
                assert n <= 63
                parts.append(f"vmcnt({n})"); self.vm = self.vm[len(self.vm) - n:] if n else []
        if lg is not None:
            n = 0 if lg == "all" else self._n(self.lg, lg)
            if n is not None:
                n = min(n, 15)
                parts.append(f"lgkmcnt({n})"); self.lg = self.lg[len(self.lg) - n:] if n else []
        if parts: self("s_waitcnt " + " ".join(parts))

def srd(A, d, base, nbytes):
    A(f"s_mov_b32 s{d}, s{base}\ns_mov_b32 s{d+1}, s{base+1}\ns_mov_b32 s{d+2}, {nbytes}\ns_mov_b32 s{d+3}, 0x20000")

NST = [0]
def stamp(A, mode="1", idx=None):
    if INSTR and (INSTR == mode or NST[0] == 0):
        i = NST[0] if idx is None else idx
        NST[0] = max(NST[0], i + 1)
        assert i < 14
        if i == 0: A("s_memrealtime s[98:99]")
        A(f"{'s_memrealtime' if os.environ.get('RT') else 's_memtime'} s[{68+2*i}:{69+2*i}]"); A.wait(lg="all")

S_X, S_WA, S_WB, S_WS, S_DBG, S_T = 16, 20, 24, 28, 32, 36
sW, sRT64, sCG, sCH, sCGQ, sH, sT, sRT, sHD, sN = 40, 41, 42, 43, 44, 45, 46, 47, 48, 49
sXO, sWO, sM1, sRDY, sPASS, sIT = 50, 51, 52, 53, 54, 55
t0, t1, t2, t3, t4, t5 = 56, 57, 58, 59, 60, 61
sKV, sKVL, sWOB, sSTG = 62, 63, 64, 65
sEXP, sFL2, sOA = 3, 14, 15
sROT, sWC = sPASS, sIT
MF16 = "v_mfma_f32_16x16x32_bf16"
MF32 = "v_mfma_f32_32x32x16_bf16"
WS = f"s[{S_WS}:{S_WS+3}]"

def lanemask(fn):
    m = 0
    for l in range(64):
        if fn(l): m |= 1 << l
    return m

def kernel():
    A = G()
    A(f".globl {KNAME}\n.p2align 8\n.type {KNAME},@function")
    A.label(KNAME)
    A("s_cmp_ge_u32 s2, 256\ns_cbranch_scc1 Lend")
    stamp(A)
    A("""
    s_load_dwordx4 s[4:7], s[0:1], 0
    s_load_dwordx2 s[14:15], s[0:1], 48
    s_load_dwordx2 s[96:97], s[0:1], 72
    s_load_dwordx2 s[8:9], s[0:1], 16
    s_load_dwordx2 s[10:11], s[0:1], 32
    s_load_dwordx2 s[12:13], s[0:1], 40
    s_load_dwordx2 s[66:67], s[0:1], 56
    s_load_dwordx2 s[100:101], s[0:1], 64
    v_lshrrev_b32 v1, 6, v0
    s_and_b32 s56, s2, 7
    v_readfirstlane_b32 s40, v1
    v_and_b32 v1, 63, v0
    s_lshr_b32 s57, s2, 3
    """)
    A(f"""
    s_and_b32 s{sRT64}, s{t0}, 3
    s_lshl_b32 s{sRT64}, s{sRT64}, 3
    s_and_b32 s{t2}, s{t1}, 7
    s_add_u32 s{sRT64}, s{sRT64}, s{t2}
    s_lshr_b32 s{sCH}, s{t0}, 2
    s_lshr_b32 s{sCGQ}, s{t1}, 3
    s_lshl_b32 s{sCG}, s{sCH}, 2
    s_add_u32 s{sCG}, s{sCG}, s{sCGQ}
    s_lshl_b32 s{sH}, s{t0}, 2
    s_add_u32 s{sH}, s{sH}, s{sCGQ}
    s_lshl_b32 s{sT}, s{t2}, 3
    s_add_u32 s{sT}, s{sT}, s{sW}
    s_lshr_b32 s{sRT}, s{sW}, 2
    s_and_b32 s{sHD}, s{sW}, 3
    s_lshl_b32 s{sXO}, s{sRT64}, 16
    s_lshl_b32 s{t2}, s{sW}, 13
    s_add_u32 s{sXO}, s{sXO}, s{t2}
    s_mul_i32 s{sWO}, s{sW}, 8*3072
    s_lshl_b32 s{t2}, s{sCG}, 7
    s_add_u32 s{sWO}, s{sWO}, s{t2}
    s_lshl_b32 s{sM1}, s{sW}, 10
    s_and_b32 s{t3}, s{sW}, 1
    s_and_b32 s{sROT}, s{t1}, 3
    s_lshl_b32 s{sROT}, s{sROT}, 1
    s_add_u32 s{sROT}, s{sROT}, s{t0}
    """)
    if OPT.get("norot"): A(f"s_mov_b32 s{sROT}, 0")
    A(f"""
    v_lshlrev_b32 v2, 4, v1
    v_lshrrev_b32 v9, 3, v1
    v_and_b32 v10, 7, v1
    v_lshrrev_b32 v15, 4, v1                 ; g
    v_xor_b32 v12, v10, v15
    v_lshlrev_b32 v12, 4, v12
    v_lshl_add_u32 v4, v9, 10, v12
    v_xor_b32 v5, 64, v4
    s_lshl_b32 s{t2}, s{t3}, 6
    v_xor_b32 v3, s{t2}, v4
    v_and_b32 v12, 1, v15
    v_lshlrev_b32 v12, 5, v12
    v_xor_b32 v12, s{t2}, v12
    v_lshlrev_b32 v13, 4, v10
    v_xor_b32 v12, v12, v13
    v_mul_u32_u24 v6, 3072, v9
    v_add_u32 v6, v6, v12
    s_waitcnt lgkmcnt(0)
    """)
    srd(A, S_X, 4, 2048 * 1024)
    srd(A, S_WA, 6, 512 * 3072)
    srd(A, S_T, 14, 1024)
    srd(A, S_WS, 96, WS_BYTES)
    A(f"s_lshl_b32 s{t2}, s2, 3\ns_add_u32 s{t2}, s{t2}, s{sW}\ns_cmp_lg_u32 s{t2}, 7\ns_cbranch_scc1 Lnoscan1")
    A(f"s_mov_b32 s{t4}, {FL}")
    for i in range(3):
        A(f"buffer_load_dwordx4 {v(240+4*i,4)}, v2, {WS}, s{t4} offen offset:{i*1024} sc1")
    A.label("Lnoscan1")

    unit_of = {}
    free_units = list(range(4, 19))
    xfree = {0, 1, 2, 3}
    pending = []
    for S in range(16):
        if S < 8: pending.append(("x", S, 0))
        if S == 7: pending.append(("h", 8, 0))
        for seg in range(3): pending.append(("w", S, seg))
    state = {"halo": 0}
    def dma_item(it):
        kind, S, seg = it
        if kind == "x":
            xfree.remove(S % 4)
            A(f"""
            s_add_u32 s{t4}, s{sROT}, {S}
            s_and_b32 s{t4}, s{t4}, 7
            s_lshl_b32 s{t4}, s{t4}, 7
            s_add_u32 m0, s{sM1}, {(S%4)*U}
            s_add_u32 s{t4}, s{t4}, s{sXO}
            """)
            A.vmem(f"buffer_load_dwordx4 v3, s[{S_X}:{S_X+3}], s{t4} offen lds", f"st{S}")
        elif kind == "w":
            u = max(free_units) if S >= 14 else min(free_units)
            free_units.remove(u); unit_of[(S, seg)] = u
            assert not (S >= 14 and u < 5)
            sr = S_WA if S < 8 else S_WB
            if seg == 0:
                A(f"""
                s_add_u32 s{sWC}, s{sROT}, {S%8}
                s_and_b32 s{sWC}, s{sWC}, 7
                s_mul_i32 s{sWC}, s{sWC}, 196608
                s_add_u32 m0, s{sM1}, {u*U}
                s_add_u32 s{sWC}, s{sWC}, s{sWO}
                """)
                A.vmem(f"buffer_load_dwordx4 v6, s[{sr}:{sr+3}], s{sWC} offen lds", f"st{S}")
            else:
                A(f"s_add_u32 m0, s{sM1}, {u*U}\ns_add_u32 s{t4}, s{sWC}, {seg*1024}")
                A.vmem(f"buffer_load_dwordx4 v6, s[{sr}:{sr+3}], s{t4} offen lds", f"st{S}")
        else:
            A(f"""
            s_lshl_b32 s{t0}, s{sRT64}, 16
            s_sub_u32 s{t1}, s{t0}, 16384
            s_cmp_eq_u32 s{sRT64}, 0
            s_cselect_b32 s{t0}, s{t0}, s{t1}
            s_add_u32 s{t1}, s{sW}, s{sROT}
            s_and_b32 s{t1}, s{t1}, 7
            s_lshl_b32 s{t1}, s{t1}, 7
            s_add_u32 s{t0}, s{t0}, s{t1}
            s_lshl_b32 s{t1}, s{sM1}, 1
            s_add_u32 m0, s{t1}, {L_H}
            s_add_u32 s{t2}, s{t0}, 8192
            """)
            A.vmem(f"buffer_load_dwordx4 v4, s[{S_X}:{S_X+3}], s{t0} offen lds", "st8")
            A(f"s_add_u32 m0, s{t1}, {L_H+1024}\ns_nop 0")
            A.vmem(f"buffer_load_dwordx4 v5, s[{S_X}:{S_X+3}], s{t2} offen lds", "st8")
            A(f"""
            s_cmp_lg_u32 s{sRT}, 0
            s_cbranch_scc1 Lnowt
            s_lshl_b32 s{t0}, s{sRT64}, 14
            s_lshl_b32 s{t1}, s{sCGQ}, 8
            s_add_u32 s{t0}, s{t0}, s{t1}
            s_lshl_b32 s{t1}, s{sHD}, 6
            s_add_u32 m0, s{sM1}, {L_WT}
            s_add_u32 s{t0}, s{t0}, s{t1}
            buffer_load_dwordx4 v26, s[{S_T}:{S_T+3}], s{t0} offen lds
            """)
            A.label("Lnowt")
    def next_dma():
        for i, it in enumerate(pending):
            if it[0] == "w" and not free_units: continue
            if it[0] == "w" and it[1] >= 14 and max(free_units) < 5: continue
            if it[0] == "h" and state["halo"] < 2: continue
            if it[0] == "x" and it[1] % 4 not in xfree: continue
            pending.pop(i); dma_item(it); return True
        return False
    def release(u):
        if u in (17, 18): state["halo"] += 1
        else: free_units.append(u)
    for _ in range(4): next_dma()
    A(f"""
    s_add_u32 s{t4}, s{sW}, s{sROT}
    s_and_b32 s{t4}, s{t4}, 7
    s_lshl_b32 s{t4}, s{t4}, 7
    s_lshl_b32 s{t3}, s{sW}, 7
    s_add_u32 m0, s{t3}, {L_G}
    s_mov_b64 exec, 0xff
    """)
    A.vmem(f"buffer_load_dwordx4 v2, s[{S_T}:{S_T+3}], s{t4} offen lds", "st0")
    A("s_mov_b64 exec, -1")
    A("s_barrier")
    for _ in range(4): next_dma()
    srd(A, S_WB, 10, 512 * 3072)
    srd(A, S_DBG, 100, 256)
    A(f"s_cmp_eq_u32 s{sCH}, 0\ns_cselect_b32 s{S_T}, s8, s12\ns_cselect_b32 s{S_T+1}, s9, s13\ns_mov_b32 s{S_T+2}, 512*1024")
    NPRE = int(OPT.get("npre", 3))
    if NPRE >= 3:
        A("s_barrier")
        for _ in range(4): next_dma()
    A(f"""
    s_lshl_b32 s{t0}, s{sT}, 6
    s_add_u32 s{t0}, s{t0}, s{sH}
    s_lshl_b32 s{t0}, s{t0}, 10
    s_add_u32 s{sOA}, s{t0}, {OF}
    v_mov_b32 v28, -1
    v_mov_b32 v29, -1
    v_mov_b32 v30, -1
    v_mov_b32 v31, -1
    """)
    A.vmem(f"buffer_store_dwordx4 v[28:31], v2, {WS}, s{sOA} offen sc1", "sent")
    A(f"""
    v_and_b32 v14, 15, v1
    v_lshrrev_b32 v16, 1, v14
    v_xor_b32 v16, v16, v15
    v_lshlrev_b32 v16, 4, v16
    v_lshl_add_u32 v16, v14, 7, v16
    s_lshl_b32 s{t2}, s{sRT}, 12
    v_add_u32 v7, s{t2}, v16
    v_xor_b32 v8, 64, v7
    v_add_u32 v9, {L_H}, v16
    v_xor_b32 v10, 64, v9
    v_lshlrev_b32 v11, 4, v15
    v_add_u32 v11, {L_G}, v11
    v_bfe_u32 v18, v1, 2, 2                  ; r
    v_lshl_add_u32 v12, v15, 3, v18
    v_lshlrev_b32 v12, 7, v12
    v_bfe_u32 v18, v1, 3, 2
    v_xor_b32 v18, s{sHD}, v18
    v_lshl_add_u32 v12, v18, 5, v12
    v_and_b32 v18, 3, v1
    v_lshl_add_u32 v12, v18, 3, v12
    v_add_u32 v13, 65536, v12
    v_add_u32 v0, 131072, v12
    v_mov_b32 v20, 0
    v_and_b32 v24, 31, v1
    v_lshlrev_b32 v24, 2, v24
    v_lshrrev_b32 v26, 2, v1
    v_lshlrev_b32 v26, 10, v26
    v_lshl_add_u32 v26, v18, 4, v26
    v_lshrrev_b32 v27, 5, v1
    v_bfe_u32 v16, v1, 2, 2
    v_lshl_add_u32 v27, v27, 2, v16
    v_lshlrev_b32 v27, 6, v27
    v_bfe_u32 v16, v1, 4, 1
    v_lshl_add_u32 v27, v16, 5, v27
    v_lshl_add_u32 v27, v18, 3, v27
    s_add_u32 s{t2}, s{sM1}, {L_WT}
    v_add_u32 v27, s{t2}, v27
    """)
    A(f"""
    s_lshl_b32 s{t0}, s{sH}, 6
    s_add_u32 s{t0}, s{t0}, s{sW}
    s_lshl_b32 s{t0}, s{t0}, 11
    s_add_u32 s{sKV}, s{t0}, {KVF}
    s_mul_i32 s{sSTG}, s{sW}, {TS}
    s_mov_b32 s{sRDY}, 0
    s_lshl_b32 s{t0}, s{sRT64}, 1
    s_add_u32 s{t0}, s{t0}, s{sRT}
    s_lshl_b32 s{t0}, s{t0}, 6
    s_lshl_b32 s{t1}, s{sCG}, 2
    s_add_u32 s{t0}, s{t0}, s{t1}
    s_add_u32 s{t0}, s{t0}, s{sHD}
    s_lshl_b32 s{t0}, s{t0}, 10
    s_add_u32 s{sWOB}, s{t0}, {OF + 32768}
    s_and_b32 s{sKVL}, s2, 7
    s_lshl_b32 s{sKVL}, s{sKVL}, 8
    s_add_u32 s{sKVL}, s{sKVL}, {FA}
    s_mul_i32 s{t0}, s{sHD}, {3*TS}
    s_mul_i32 s{t1}, s{sRT}, {TS}
    s_add_u32 s{t0}, s{t0}, s{t1}
    s_add_u32 s{sEXP}, s{t0}, {L_EX}
    """)
    A(f"""
    v_lshrrev_b32 v18, 5, v1
    v_lshlrev_b32 v16, 8, v18
    v_lshl_add_u32 v16, v14, 4, v16
    v_add_u32 v16, 1024, v16
    v_add_u32 v17, 512, v16
    v_mov_b32 v19, 2064
    v_mov_b32 v18, 2048
    s_mov_b32 vcc_lo, 0x00110000
    s_mov_b32 vcc_hi, 0x00110000
    v_cndmask_b32 v19, v19, v18, vcc
    s_mov_b32 vcc_lo, 0x0000ffff
    s_mov_b32 vcc_hi, 0x0000ffff
    v_cndmask_b32 v16, v19, v16, vcc
    v_cndmask_b32 v17, v19, v17, vcc
    """)
    for i in range(32, 92):
        A(f"v_mov_b32 v{i}, 0")
    A(f"s_lshl_b32 s{t2}, s2, 3\ns_add_u32 s{t2}, s{t2}, s{sW}\ns_cmp_lg_u32 s{t2}, 7\ns_cbranch_scc1 Lnoscan2")
    A(f"s_waitcnt vmcnt({len(A.vm)})\ns_mov_b32 s{t4}, 0")
    A.label("Lscan")
    A(f"s_add_u32 s{t4}, s{t4}, 1\ns_mov_b64 exec, -1")
    for i in range(12):
        A(f"v_cmpx_ne_u32 vcc, s{t4}, v{240+i}")
    A("s_nop 1\ns_cmp_eq_u64 exec, -1\ns_cbranch_scc0 Lscan")
    A(f"v_mov_b32 v21, s{t4}\ns_mov_b64 exec, 1")
    A(f"buffer_store_dword v21, v20, s[{S_DBG}:{S_DBG+3}], 0 offen sc1")
    A("s_mov_b64 exec, -1")
    A.label("Lnoscan2")

    FB = [96, 112]
    XF = lambda S, u, sub: 128 + 8 * (2 * (S % 8) + u) + 4 * sub
    def reads(S, u):
        if OPT.get("nord"): return []
        b = FB[u]; kc = S % 8
        tg = f"r{S}_{u}"
        L = []
        rd = lambda text, tag: L.append(lambda: A.lds(text, tag))
        def wr(seg):
            un = unit_of.get((S, seg), 8)
            wb, so = [12, 13, 0][un // 8], (un % 8) * U
            for t in range(2):
                rd(f"ds_read_b64_tr_b16 {v(b+4*seg+2*t,2)}, v{wb} offset:{so + u*4096 + t*512}", f"{tg}w{seg}")
        if S < 8:
            rd(f"ds_read_b128 {v(XF(S,u,0),4)}, v{7+u} offset:{(kc%4)*U}", tg + "x0")
            wr(0)
            rd(f"ds_read_b128 {v(XF(S,u,1),4)}, v{7+u} offset:{(kc%4)*U+2048}", tg + "x1")
            wr(1); wr(2)
            rd(f"ds_read_b128 {v(b+12,4)}, v11 offset:{kc*128+u*64}", tg + "e")
        else:
            wr(0); wr(1); wr(2)
            rd(f"ds_read_b128 {v(b+12,4)}, v{9+u} offset:{kc*2048}", tg + "e")
        return L
    def mms(S, u, rt):
        b = FB[u]; ac = 32 if S < 8 else 64
        tg = f"r{S}_{u}"
        L = []
        def mm(d, a_, b_, tags):
            def f():
                A.wait(lg=[tg + t for t in tags])
                if not OPT.get("nomm"): A(f"{MF16} {v(d,4)}, {v(a_,4)}, {v(b_,4)}, {v(d,4)}")
            L.append(f)
        for sub in range(2): mm(ac + 4 * sub, b, XF(S, u, sub), ["w0", f"x{sub}"])
        for sub in range(2): mm(ac + 8 + 4 * sub, b + 4, XF(S, u, sub), ["w1"])
        for sub in range(2): mm(ac + 16 + 4 * sub, XF(S, u, sub), b + 8, ["w2"])
        if S < 8:
            for sub in range(2): mm(56 + 4 * sub, b + 12, XF(S, u, sub), ["e"])
        elif rt == 0: mm(88, b + 4, b + 12, ["e"])
        else: mm(88, b + 12, b + 8, ["e"])
        return L

    def scale_q(ac, dq):
        A(f"s_mov_b32 s{t5}, {hex(CSCALE)}")
        for i in range(4):
            A(f"""
            v_cvt_pk_bf16_f32 v18, v{ac+2*i}, v{ac+2*i+1}
            v_and_b32 v19, 0xffff0000, v18
            v_lshlrev_b32 v18, 16, v18
            v_mul_f32 v18, s{t5}, v18
            v_mul_f32 v19, s{t5}, v19
            v_cvt_pk_bf16_f32 v{dq+i}, v18, v19
            """)
    def a_epilogue(rt):
        A(f"""
        s_lshl_b32 s{t0}, s{sCG}, 2
        s_add_u32 s{t0}, s{t0}, s{sHD}
        s_lshl_b32 s{t0}, s{t0}, 6
        s_lshl_b32 s{t1}, s{sRT64}, 1
        s_add_u32 s{t1}, s{t1}, s{sRT}
        s_add_u32 s{t0}, s{t0}, s{t1}
        s_lshl_b32 s{t1}, s{t0}, 11
        s_add_u32 s{t1}, s{t1}, {KVF}
        s_lshl_b32 s{t0}, s{t0}, 10
        """)
        for i in range(4): A(f"v_cvt_pk_bf16_f32 v{92+i}, v{40+2*i}, v{41+2*i}")
        for i in range(4): A(f"v_cvt_pk_bf16_f32 v{40+i}, v{48+2*i}, v{49+2*i}")
        A("v_permlane16_swap_b32 v92, v94\nv_permlane16_swap_b32 v93, v95")
        A.vmem(f"buffer_store_dwordx4 v[92:95], v2, {WS}, s{t1} offen sc1", "ast")
        A("v_permlane32_swap_b32 v40, v42\nv_permlane32_swap_b32 v41, v43")
        A.vmem(f"buffer_store_dwordx4 v[40:43], v2, {WS}, s{t1} offen offset:1024 sc1", "ast")
        scale_q(32, 44)
        if rt == 0:
            A(f"""
            s_lshl_b32 s{t1}, s{sCGQ}, 2
            s_add_u32 s{t1}, s{t1}, s{sHD}
            s_lshl_b32 s{t1}, s{t1}, 1
            s_add_u32 s{t1}, s{t1}, s{sCH}
            s_lshl_b32 s{t1}, s{t1}, 5
            s_add_u32 s{t1}, s{t1}, s{sRT64}
            s_lshl_b32 s{t1}, s{t1}, 10
            s_add_u32 s{t1}, s{t1}, {WOF}
            """)
        else:
            A("s_nop 1")
        A("v_permlane16_swap_b32 v44, v46\nv_permlane16_swap_b32 v45, v47")
        A.vmem(f"buffer_store_dwordx4 v[44:47], v2, {WS}, s{t0} offen sc1", "ast")
        if rt == 0:
            A.wait(lg="wt")
            A.vmem(f"buffer_store_dwordx4 v[28:31], v2, {WS}, s{t1} offen sc1", "ast")
        A.vmem(f"buffer_load_dword v21, v20, s[{S_DBG}:{S_DBG+3}], 0 offen sc1", "nonce")
    def gate_fin():
        A(f"""
        s_mov_b32 vcc_lo, 0x0000ffff
        s_mov_b32 vcc_hi, 0x0000ffff
        v_cndmask_b32 v18, v60, v56, vcc
        v_cvt_pk_bf16_f32 v18, v18, v18
        v_lshlrev_b32 v18, 16, v18
        v_mul_f32 v18, {hex(LOG2E ^ 0x80000000)}, v18
        v_exp_f32 v18, v18
        s_nop 0
        v_add_f32 v18, 1.0, v18
        v_rcp_f32 v18, v18
        s_nop 0
        v_cvt_pk_bf16_f32 v18, v18, v18
        v_lshlrev_b32 v22, 16, v18               ; g
        v_sub_f32 v18, 1.0, v22
        v_cvt_pk_bf16_f32 v18, v18, v18
        v_lshlrev_b32 v23, 16, v18               ; 1-g
        s_lshl_b32 s{t2}, s{sRT}, 7
        s_add_u32 s{t2}, s{t2}, {L_GV}
        v_add_u32 v19, s{t2}, v24
        """)
        A.lds("ds_write_b32 v19, v22")

    def get_nonce(lbl):
        A(f"s_mov_b32 s{t5}, 0")
        A.label(lbl)
        A(f"""
        v_readfirstlane_b32 s{sN}, v21
        s_add_u32 s{t5}, s{t5}, 1
        s_cmp_lg_u32 s{sN}, 0
        s_cbranch_scc1 {lbl}_ok
        s_cmp_gt_u32 s{t5}, {SPIN_MAX}
        s_cbranch_scc1 {lbl}_ok
        s_sleep 2
        buffer_load_dword v21, v20, s[{S_DBG}:{S_DBG+3}], 0 offen sc1
        s_waitcnt vmcnt(0)
        s_branch {lbl}
        """)
        A.label(lbl + "_ok")

    Q, KF, V1, V2 = 28, 96, 100, 104
    SP, SA, SB, P, O, C = 32, 48, 112, 64, 80, 32
    key = lambda i, hh: 8 * (i // 4) + 4 * hh + i % 4
    okd = lambda d: 0 <= d <= 14 and d % 2 == 0
    def pre_masks_own():
        A(f"v_mov_b32 v3, {hex(NEGBIG)}")
        for i in range(16):
            m = lanemask(lambda l: okd((l & 31) - key(i, l >> 5)))
            A(f"s_mov_b32 vcc_lo, {hex(m & 0xffffffff)}\ns_mov_b32 vcc_hi, {hex(m >> 32)}\nv_cndmask_b32 v{SA+i}, v3, v20, vcc")
    def pre_masks_prev():
        A(f"""
        s_or_b32 s{t2}, s{sRT64}, s{sRT}
        s_cmp_eq_u32 s{t2}, 0
        s_cselect_b32 s{t2}, {hex(NEGBIG)}, 0
        v_mov_b32 v5, s{t2}
        """)
        for i in range(8, 16):
            m = lanemask(lambda l: okd((l & 31) + 32 - key(i, l >> 5)))
            A(f"s_mov_b32 vcc_lo, {hex(m & 0xffffffff)}\ns_mov_b32 vcc_hi, {hex(m >> 32)}\nv_cndmask_b32 v{SP+i}, v3, v5, vcc")
    def pre_addr(rt):
        A(f"""
        v_add_u32 v11, s{sEXP}, v2
        v_add_u32 v7, s{sEXP}, v16
        v_add_u32 v8, s{sEXP}, v17
        v_lshrrev_b32 v19, 1, v15
        v_and_b32 v18, 1, v15
        """)
        if rt == 0:
            A(f"v_lshlrev_b32 v4, 9, v19\nv_lshl_add_u32 v4, v18, 3, v4\ns_add_u32 s{t2}, s{sEXP}, 256")
        else:
            A(f"v_lshlrev_b32 v4, 8, v18\nv_lshl_add_u32 v4, v19, 3, v4\ns_add_u32 s{t2}, s{sEXP}, {1536 - TS}")
        A(f"""
        v_lshl_add_u32 v4, v14, 4, v4
        v_add_u32 v4, s{t2}, v4
        v_lshrrev_b32 v18, 1, v1
        v_and_b32 v19, 1, v1
        v_mul_u32_u24 v26, {8*TS}, v18
        v_lshl_add_u32 v26, v19, 4, v26
        v_add_u32 v26, s{sSTG}, v26
        v_mul_u32_u24 v27, {TS}, v18
        v_lshl_add_u32 v27, v19, 4, v27
        v_add_u32 v27, {L_EX+2048}, v27
        """)
    def pre_consts():
        A(f"""
        v_mov_b32 v92, {hex(ONES)}
        s_mov_b32 vcc_lo, 0x55555555
        s_mov_b32 vcc_hi, 0x55555555
        v_cndmask_b32 v92, 0, v92, vcc
        v_mov_b32 v93, v92
        v_mov_b32 v94, v92
        v_mov_b32 v95, v92
        v_lshrrev_b32 v3, 5, v1
        v_and_b32 v5, 31, v1
        s_lshl_b32 s{t2}, s{sCH}, 7
        s_add_u32 s{t2}, s{t2}, {L_GV}
        v_add_u32 v19, s{t2}, v24
        """)
        A.lds("ds_read_b32 v22, v19", "gv")

    def capture(fn, *args):
        keep_lines = A.lines
        rec = []
        A.lines = []
        ov, ol, ow = A.vmem, A.lds, A.wait
        def flush():
            for l in A.lines: rec.append(("i", l))
            A.lines = []
        A.vmem = lambda text, tag=None: (flush(), rec.append(("vm", text, tag)))
        A.lds = lambda text, tag=None: (flush(), rec.append(("lg", text, tag)))
        A.wait = lambda vm=None, lg=None: (flush(), rec.append(("w", vm, lg)))
        fn(*args); flush()
        A.vmem, A.lds, A.wait = ov, ol, ow
        A.lines = keep_lines
        out, grp = [], []
        def mk(g):
            def f():
                for r in g:
                    if r[0] == "i": A(r[1])
                    elif r[0] == "vm": A.vmem(r[1], r[2])
                    elif r[0] == "lg": A.lds(r[1], r[2])
                    else: A.wait(r[1], r[2])
            return f
        for r in rec:
            grp.append(r)
            if r[0] == "i" and r[1].strip().startswith("s_"): continue
            if r[0] == "w": continue
            out.append(mk(grp)); grp = []
        if grp: out.append(mk(grp))
        return out
    bg = []
    NBG = int(OPT.get("nbg", 1))
    def group(m, rds, ndma, must=()):
        rds, must = list(rds), list(must)
        n = len(m)
        dslots = [int((k + 0.5) * n / ndma) for k in range(ndma)] if ndma else []
        for i, f in enumerate(m):
            f()
            k = -(-len(rds) // max(1, n - 1 - i)) if i < n - 1 else len(rds)
            for _ in range(k):
                if rds: rds.pop(0)()
            did = False
            if i in dslots and not OPT.get("nodma"): did = next_dma()
            if i >= 1 and must:
                k = -(-len(must) // (n - i))
                for _ in range(k):
                    if must: must.pop(0)()
            elif not did:
                for _ in range(NBG):
                    if bg: bg.pop(0)()
        for f in rds + must: f()

    def kv_first():
        A(f"s_lshl_b32 s{t0}, s{sH}, 6\ns_add_u32 s{t1}, s{t0}, s{sT}\ns_lshl_b32 s{t1}, s{t1}, 10")
        A(f"buffer_load_dwordx4 {v(Q,4)}, v2, {WS}, s{t1} offen sc1")
        for i in range(2):
            A(f"s_add_u32 m0, s{sSTG}, {i*8*TS}\ns_add_u32 s{t4}, s{sKV}, {i*8*2048}")
            A(f"buffer_load_dwordx4 v2, {WS}, s{t4} offen sc1 lds")
            A(f"buffer_load_dwordx4 v2, {WS}, s{t4} offen offset:1024 sc1 lds")
        A(f"s_mov_b32 s{sRDY}, 1")
    def try_kv(lbl, repoll):
        A(f"s_cmp_lg_u32 s{sRDY}, 0\ns_cbranch_scc1 {lbl}_e")
        A(f"s_waitcnt vmcnt(0)\nv_cmp_ne_u32 vcc, s{sN}, v25\ns_nop 1\ns_cbranch_vccnz {lbl}_n")
        kv_first()
        A(f"s_branch {lbl}_e")
        A.label(lbl + "_n")
        if repoll: A(f"buffer_load_dword v25, v24, {WS}, s{sKVL} offen sc1")
        A.label(lbl + "_e")

    PUB = int(OPT.get("pub", 10))
    def stage(S, rt=None):
        sfx = "" if rt is None else f"_{rt}"
        must = []
        if S == 8: must = capture(a_epilogue, rt)
        if S == 9: bg.extend(capture(gate_fin) + capture(pre_masks_own) + capture(pre_addr, rt))
        ND = int(OPT.get("nd", 3))
        group(mms(S, 0, rt), reads(S, 1), 0 if S == 8 else ND, must)
        if S == 15:
            while bg: bg.pop(0)()
        if S == PUB: A.wait(vm=[f"st{S+1}", "ast", "nonce"])
        elif S < 15: A.wait(vm=f"st{S+1}")
        else: A.wait(lg="all")
        A("s_barrier")
        if S >= 7: stamp(A, "B", S - 6)
        if S < 8: stamp(A, "A", S + 1)
        if S >= 1:
            for seg in range(3):
                if (S - 1, seg) in unit_of: release(unit_of[(S - 1, seg)])
            if S - 1 < 4: xfree.add(S - 1)
            elif S - 1 < 8: release((S - 1) % 4)
        extra = []
        if S == PUB:
            get_nonce("Lnonce" + sfx)
            if rt == 0:
                A(f"s_cmp_lg_u32 s{sW}, 0\ns_cbranch_scc1 Lnofa")
                A(f"""
                s_lshl_b32 s{t0}, s{sCG}, 8
                s_lshl_b32 s{t1}, s{sRT64}, 2
                s_add_u32 s{t0}, s{t0}, s{t1}
                s_add_u32 s{t0}, s{t0}, {FA}
                s_mov_b64 exec, 1
                buffer_store_dword v21, v20, {WS}, s{t0} offen sc1
                s_mov_b64 exec, -1
                """)
                A.label("Lnofa")
            bg.extend(capture(pre_masks_prev) + capture(pre_consts))
        if S == 13:
            assert not pending or OPT.get("nodma"), pending
            extra.append(lambda: A.vmem(f"buffer_load_dword v25, v24, {WS}, s{sKVL} offen sc1", "poll"))
        if S == 14:
            A.vm = []
            extra.append(lambda: try_kv("Ltry14" + sfx, True))
        for seg in range(3):
            assert S == 15 or OPT.get("nodma") or (S + 1, seg) in unit_of, (S, seg)
        group(mms(S, 1, rt), reads(S + 1, 0) if S < 15 else [], ND, extra)

    A.wait(vm="st0"); A("s_barrier")
    stamp(A)
    for f in reads(0, 0): f()
    for S in range(8):
        stage(S)
    stamp(A)
    A(f"s_cmp_lg_u32 s{sRT}, 0\ns_cbranch_scc1 LB1")
    save = (list(A.vm), list(A.lg), dict(unit_of), list(free_units), list(pending))
    A.lds("ds_read_b64_tr_b16 v[28:29], v27", "wt")
    A.lds("ds_read_b64_tr_b16 v[30:31], v27 offset:512", "wt")
    for S in range(8, 16):
        stage(S, 0)
    A("s_branch LBdone")
    A.label("LB1")
    A.vm, A.lg = list(save[0]), list(save[1])
    unit_of.clear(); unit_of.update(save[2]); free_units[:] = save[3]; pending[:] = save[4]
    for S in range(8, 16):
        stage(S, 1)
    A.label("LBdone")
    stamp(A)
    try_kv("Ltry15", True)
    A("s_mov_b64 exec, 0xffff")
    A.lds("ds_write_b128 v26, v[92:95] offset:2048")
    A("s_mov_b64 exec, 0xffffff")
    A.lds("ds_write_b128 v27, v[92:95]")
    A("s_mov_b64 exec, -1\ns_nop 2")
    for i in range(4): A(f"v_cvt_pk_bf16_f32 v{104+i}, v{72+2*i}, v{73+2*i}")
    for i in range(4): A(f"v_cvt_pk_bf16_f32 v{108+i}, v{80+2*i}, v{81+2*i}")
    A("v_cvt_pk_bf16_f32 v96, v88, v89\nv_cvt_pk_bf16_f32 v97, v90, v91")
    A("""
    v_permlane16_swap_b32 v104, v106
    v_permlane16_swap_b32 v105, v107
    v_permlane32_swap_b32 v108, v110
    v_permlane32_swap_b32 v109, v111
    """)
    A.lds("ds_write_b64 v4, v[96:97]")
    A.lds(f"ds_write_b128 v11, v[104:107] offset:{TS}")
    A.lds(f"ds_write_b128 v11, v[108:111] offset:{TS+1024}")
    scale_q(64, 100)
    A("s_nop 1\nv_permlane16_swap_b32 v100, v102\nv_permlane16_swap_b32 v101, v103")
    A.wait(lg="all"); A("s_barrier")
    A(f"{MF32} {v(SA,16)}, v[104:107], v[100:103], {v(SA,16)}")
    A.lds("ds_read_b128 v[96:99], v11", "kp")
    A.lds(f"ds_read_b128 v[108:111], v7 offset:{TS}", "vb")
    A.lds(f"ds_read_b128 v[88:91], v8 offset:{TS}", "vb")
    A.lds("ds_read_b128 v[92:95], v8", "vb")
    try_kv("Ltry16", True)
    for i in range(8): A(f"v_mov_b32 v{O+i}, 0")
    A.wait(lg="kp")
    A(f"{MF32} {v(SP,16)}, v[96:99], v[100:103], {v(SP,16)}")
    regs = [SA + i for i in range(16)] + [SP + i for i in range(8, 16)]
    A(f"v_max3_f32 v9, v{regs[0]}, v{regs[1]}, v{regs[2]}")
    for i in range(3, 15, 2): A(f"v_max3_f32 v9, v9, v{regs[i]}, v{regs[i+1]}")
    A("s_nop 4")
    for i in range(15, 23, 2): A(f"v_max3_f32 v9, v9, v{regs[i]}, v{regs[i+1]}")
    A(f"v_max_f32 v9, v9, v{regs[23]}")
    A("v_mov_b32 v10, v9\ns_nop 1\nv_permlane32_swap_b32 v9, v10\nv_max_f32 v9, v9, v10")
    for r in regs: A(f"v_sub_f32 v{r}, v{r}, v9")
    for k in range(3):
        for r in regs[8*k:8*k+8]: A(f"v_exp_f32 v{r}, v{r}")
        A("s_nop 0")
        for i in range(4*k, 4*k+4): A(f"v_cvt_pk_bf16_f32 v{P+i}, v{regs[2*i]}, v{regs[2*i+1]}")
        A.wait(lg="all"); A("s_nop 0")
        A(f"{MF32} {v(SB,16)}, {['v[108:111]','v[88:91]','v[92:95]'][k]}, {v(P+4*k,4)}, {v(SB,16) if k else 0}")
    stamp(A)
    A(f"s_cmp_lg_u32 s{sRDY}, 0\ns_cbranch_scc1 Lrdy\ns_mov_b32 s{t5}, 0")
    A.label("Lpoll1")
    A(f"""
    s_add_u32 s{t5}, s{t5}, 1
    s_waitcnt vmcnt(0)
    v_cmp_ne_u32 vcc, s{sN}, v25
    s_cmp_gt_u32 s{t5}, {SPIN_MAX}
    s_cbranch_scc1 Lpoll1_ok
    s_cbranch_vccz Lpoll1_ok
    buffer_load_dword v25, v24, {WS}, s{sKVL} offen sc1
    s_branch Lpoll1
    """)
    A.label("Lpoll1_ok")
    kv_first()
    A.label("Lrdy")
    srd(A, S_T, 66, 2048 * 1024)
    A(f"""
    s_lshl_b32 s{t0}, s{sCGQ}, 2
    s_add_u32 s{t0}, s{t0}, s{sHD}
    s_lshl_b32 s{t0}, s{t0}, 16
    s_lshl_b32 s{t1}, s{sRT}, 14
    s_add_u32 s{t0}, s{t0}, s{t1}
    s_add_u32 s{sWO}, s{t0}, {WOF}
    s_lshl_b32 s{t0}, s{sRT64}, 1
    s_add_u32 s{t0}, s{t0}, s{sCH}
    s_lshl_b32 s{t0}, s{t0}, 16
    s_add_u32 s{t0}, s{t0}, s{t1}
    s_add_u32 s{sXO}, s{t0}, {OF + 32768}
    """)
    A(f"v_rcp_f32 v9, v{SB+8}\ns_nop 0\nv_mul_f32 v9, v9, v23")
    for i in range(8): A(f"v_mul_f32 v{SB+i}, v{SB+i}, v9")
    for i in range(4): A(f"v_cvt_pk_bf16_f32 v{108+i}, v{SB+2*i}, v{SB+2*i+1}")
    for i in range(8, 16): A(f"v_mov_b32 v{O+i}, 0")
    for i in range(4): A(f"v_mov_b32 v{P+4+i}, 0")
    A("v_mov_b32 v7, v16\nv_mov_b32 v8, v17\nv_mov_b32 v14, v2\nv_mov_b32 v15, v16\nv_mov_b32 v16, v17")
    A.wait(vm="all")
    A.vmem(f"buffer_store_dwordx4 v[108:111], v2, {WS}, s{sWOB} offen sc1", "obst")
    A("s_barrier")
    stamp(A)
    A.lds(f"ds_read_b128 {v(KF,4)}, v2", "k")
    A.lds(f"ds_read_b128 {v(V2,4)}, v8", "v2")
    A.lds(f"ds_read_b128 {v(V1,4)}, v7", "v1")
    A(f"s_mov_b32 s{sPASS}, 0")
    A(f"""
    v_lshlrev_b32 v12, 10, v3
    v_add_u32 v12, v12, v24
    s_lshl_b32 s{t0}, s{sCGQ}, 8
    s_add_u32 s{sFL2}, s{t0}, {FA}
    """)
    A.wait(lg="k")
    A(f"{MF32} {v(SA,16)}, {v(KF,4)}, {v(Q,4)}, 0")
    A(f"""
    v_lshrrev_b32 v13, 2, v1
    v_lshlrev_b32 v13, 8, v13
    v_and_b32 v18, 3, v1
    v_lshl_add_u32 v13, v18, 5, v13
    s_lshr_b32 s{t0}, s{sRT64}, 2
    s_lshl_b32 s{t0}, s{t0}, 2
    v_add_u32 v13, s{t0}, v13
    v_and_b32 v18, 7, v1
    v_lshlrev_b32 v18, 2, v18
    s_lshl_b32 s{t0}, s{sRT64}, 5
    s_add_u32 s{sEXP}, s{t0}, {FOB}
    s_add_u32 s{t0}, s{t0}, 2048
    v_add_u32 v18, s{t0}, v18
    s_mov_b32 vcc_lo, -1
    s_mov_b32 vcc_hi, 0
    v_cndmask_b32 v13, v18, v13, vcc
    s_mov_b32 s{sKVL}, {FA}
    """)
    A(f"v_max3_f32 v9, v{SA}, v{SA+1}, v{SA+2}")
    for i in range(3, 15, 2): A(f"v_max3_f32 v9, v9, v{SA+i}, v{SA+i+1}")
    A(f"v_max_f32 v9, v9, v{SA+15}")
    def setup_pass(first):
        A("v_mov_b32 v10, v9\ns_nop 1\nv_permlane32_swap_b32 v9, v10\nv_max_f32 v9, v9, v10")
        if first:
            A.lds(f"ds_read_b128 {v(KF,4)}, v2 offset:{TS}", "k")
            for i in range(16): A(f"v_sub_f32 v{SA+i}, v{SA+i}, v9")
            for i in range(16): A(f"v_sub_f32 v{C+i}, 0, v9")
            A.wait(lg="all")
        else:
            A.lds(f"ds_read_b128 {v(V2,4)}, v8", "v2")
            A.lds(f"ds_read_b128 {v(V1,4)}, v7", "v1")
            for i in range(16): A(f"v_sub_f32 v{C+i}, 0, v9")
            for i in range(16): A(f"v_mov_b32 v{O+i}, 0")
            for i in range(4): A(f"v_mov_b32 v{P+4+i}, 0")
            A(f"{MF32} {v(SA,16)}, {v(KF,4)}, {v(Q,4)}, {v(C,16)}")
            A.lds(f"ds_read_b128 {v(KF,4)}, v2 offset:{TS}", "k")
            A.wait(lg="all")
            A("s_nop 9")
    setup_pass(True)
    A("s_nop 0")
    def tile(j, jo, hooks=None):
        hooks = hooks or {}
        Sa, Sb = (SA, SB) if j % 2 == 0 else (SB, SA)
        ex = lambda i: A(f"v_exp_f32 v{Sa+i}, v{Sa+i}")
        cv = lambda i: A(f"v_cvt_pk_bf16_f32 v{P+i}, v{Sa+2*i}, v{Sa+2*i+1}")
        A.wait(lg="v2")
        A(f"{MF32} {v(Sb,16)}, {v(KF,4)}, {v(Q,4)}, {v(C,16)}")
        A.lds(f"ds_read_b128 {v(KF,4)}, v14 offset:{(jo+2)*TS}", "k")
        for i in range(5): ex(i)
        A(f"{MF32} {v(O,16)}, {v(V2,4)}, {v(P+4,4)}, {v(O,16)}")
        A.lds(f"ds_read_b128 {v(V2,4)}, v16 offset:{jo*TS}", "v2")
        for f in hooks.get(0, []): f()
        for i in range(5, 8): ex(i)
        for i in range(4): cv(i)
        for i in range(8, 10): ex(i)
        A.wait(lg="v1")
        A(f"{MF32} {v(O,16)}, {v(V1,4)}, {v(P,4)}, {v(O,16)}")
        A.lds(f"ds_read_b128 {v(V1,4)}, v15 offset:{(jo+1)*TS}", "v1")
        for f in hooks.get(1, []): f()
        for i in range(10, 14): ex(i)
        for f in hooks.get(2, []): f()
        for i in range(14, 16): ex(i)
        for i in range(4, 8): cv(i)
    WB_, OB_, ACB, NOB = 128, 192, 240, 12
    def h_kv(i):
        def f():
            A(f"s_add_u32 m0, s{sSTG}, {i*8*TS}\ns_add_u32 s{t4}, s{sKV}, {i*8*2048}")
            A.vmem(f"buffer_load_dwordx4 v2, {WS}, s{t4} offen sc1 lds", "kv")
            A.vmem(f"buffer_load_dwordx4 v2, {WS}, s{t4} offen offset:1024 sc1 lds", "kv")
        return f
    def h_poll():
        A.vmem(f"buffer_load_dword v25, v12, {WS}, s{sFL2} offen sc1", "mp")
        A.vmem(f"buffer_load_dword v17, v13, {WS}, s{sKVL} offen sc1", "mp")
    def h_check():
        A(f"s_mov_b32 s{t5}, 0")
        A.wait(vm="mp")
        A.label("Lpollm")
        A(f"""
        v_cmp_ne_u32 vcc, s{sN}, v25
        v_cmp_ne_u32 s[{t0}:{t0+1}], s{sN}, v17
        s_add_u32 s{t5}, s{t5}, 1
        s_or_b64 vcc, vcc, s[{t0}:{t0+1}]
        s_cbranch_scc0 Lpollm_ok
        s_cmp_gt_u32 s{t5}, {SPIN_MAX}
        s_cbranch_scc1 Lpollm_ok
        s_sleep 4
        buffer_load_dword v25, v12, {WS}, s{sFL2} offen sc1
        buffer_load_dword v17, v13, {WS}, s{sKVL} offen sc1
        s_waitcnt vmcnt(0)
        s_branch Lpollm
        """)
        A.label("Lpollm_ok")
    def ld(dst, sb, off, tag):
        def f():
            A(f"s_add_u32 s{t4}, s{sb}, {off}")
            A.vmem(f"buffer_load_dwordx4 {v(dst,4)}, v2, {WS}, s{t4} offen sc1", tag)
        return f
    def h_bmm(n):
        def f():
            A.wait(vm=[f"wb{n}", f"ob{n}"])
            A(f"{MF32} {v(ACB,16)}, {v(WB_+4*n,4)}, {v(OB_+4*(n%NOB),4)}, {v(ACB,16) if n else 0}")
        return f
    def h_tailprep():
        A(f"""
        s_lshl_b32 s{t0}, s{sRT64}, 1
        s_add_u32 s{t0}, s{t0}, s{sCH}           ; to
        s_lshl_b32 s{t3}, s{t0}, 16
        s_lshl_b32 s{t2}, s{sW}, 12
        s_add_u32 s{t3}, s{t3}, s{t2}
        s_add_u32 s{sKV}, s{t3}, {OF}
        v_add_u32 v26, s{t2}, v2
        s_lshl_b32 s{t3}, s{sRT}, 14
        v_add_u32 v18, s{t3}, v2
        s_lshl_b32 s{t3}, s{sHD}, 12
        s_add_u32 s{t3}, s{t3}, {L_RED}
        v_add_u32 v19, s{t3}, v2
        v_lshlrev_b32 v11, 10, v5
        v_lshl_add_u32 v11, v3, 4, v11
        s_lshl_b32 s{t0}, s{t0}, 15
        s_lshl_b32 s{t3}, s{sCGQ}, 8
        s_add_u32 s{t0}, s{t0}, s{t3}
        s_lshl_b32 s{t3}, s{sHD}, 6
        s_add_u32 s{t0}, s{t0}, s{t3}
        s_lshl_b32 s{t3}, s{sRT}, 5
        s_add_u32 s{sWOB}, s{t0}, s{t3}
        """)
    hooks = {j: {0: [], 1: [], 2: []} for j in range(64)}
    for i in range(2, 8): hooks[i - 2][0].append(h_kv(i))
    T0 = 26
    hooks[T0 - 4][0].append(h_poll)
    hooks[T0][0].append(h_check)
    for n in range(16):
        hooks[T0 + n][0].append(ld(WB_ + 4 * n, sWO, 32768 + n * 1024, f"wb{n}"))
        hooks[T0 + n][1].append(ld(OB_ + 4 * (n % NOB), sXO, n * 1024, f"ob{n}"))
        hooks[T0 + 8 + n][2].append(h_bmm(n))
        hooks[T0 + 9 + n][1].append(ld(WB_ + 4 * n, sWO, n * 1024, f"wa{n}"))
    hooks[52][0].append(h_tailprep)
    prios = {0: 3, 10: 2, 14: 3, 40: 2, 54: 1, 61: 0}
    base = 0
    for j in range(64):
        if j in prios: A(f"s_setprio {prios[j]}")
        if j - base == 24:
            A(f"v_add_u32 v14, {24*TS}, v14\nv_add_u32 v15, {24*TS}, v15\nv_add_u32 v16, {24*TS}, v16")
            base = j
        tile(j, j - base, hooks[j])
        if j == 13:
            A.wait(vm="all"); A("s_barrier")
            A(f"s_cmp_lg_u32 s{sW}, 0\ns_cbranch_scc1 Lnofob")
            A(f"""
            s_lshl_b32 s{t1}, s{sCG}, 2
            s_add_u32 s{t0}, s{sEXP}, s{t1}
            s_mov_b64 exec, 1
            buffer_store_dword v21, v20, {WS}, s{t0} offen sc1
            s_mov_b64 exec, -1
            """)
            A.label("Lnofob")
    A.label("Lfinish")
    A.wait(lg="all")
    A("s_nop 0")
    A(f"{MF32} {v(O,16)}, {v(V2,4)}, {v(P+4,4)}, {v(O,16)}")
    A(f"""
    s_setprio 3
    s_mov_b32 s{t3}, 0x53800000
    s_mov_b32 s{t5}, 0
    s_nop 6
    s_cmp_lg_u32 s{sPASS}, 0
    s_cbranch_scc1 Lfin
    v_cmp_ngt_f32 vcc, s{t3}, v{O+8}
    s_nop 1
    {"" if OPT.get("nofb") else "s_cbranch_vccnz Lfallback"}
    """)
    A.label("Lfin")
    stamp(A)
    A(f"v_rcp_f32 v9, v{O+8}\ns_nop 0")
    for i in range(8): A(f"v_mul_f32 v{O+i}, v{O+i}, v9")
    for i in range(4): A(f"v_cvt_pk_bf16_f32 v{108+i}, v{O+2*i}, v{O+2*i+1}")
    for i in range(4): A(f"v_min_u32 v{108+i}, -2, v{108+i}")
    A(f"buffer_store_dwordx4 v[108:111], v2, {WS}, s{sOA} offen sc1")
    A("s_setprio 0")
    A.label("Lpoll3")
    for i in range(4):
        A(f"buffer_load_dwordx4 {v(32+4*i,4)}, v2, {WS}, s{sKV} offen offset:{i*1024} sc1")
    A(f"s_add_u32 s{t5}, s{t5}, 1")
    A("s_waitcnt vmcnt(0)")
    A("v_max3_u32 v9, v32, v33, v34")
    for i in range(35, 47, 2): A(f"v_max3_u32 v9, v9, v{i}, v{i+1}")
    A(f"""
    v_max_u32 v9, v9, v47
    v_cmp_eq_u32 vcc, -1, v9
    s_cmp_gt_u32 s{t5}, {SPIN_MAX}
    s_cbranch_scc1 Lpoll3_ok
    s_cbranch_vccz Lpoll3_ok
    s_sleep {OPT.get("slp", 2)}
    s_branch Lpoll3
    """)
    A.label("Lpoll3_ok")
    stamp(A)
    A("s_barrier")
    stamp(A)
    for i in range(4):
        A(f"ds_write_b128 v26, {v(32+4*i,4)} offset:{i*1024}")
    A("s_waitcnt lgkmcnt(0)\ns_barrier")
    stamp(A)
    ACA = 48
    A.lg = []
    for n in range(8):
        A.lds(f"ds_read_b128 {v(64+4*n,4)}, v18 offset:{n*1024}", f"o{n}")
    for n in range(16):
        A.wait(lg=f"o{n}")
        A(f"{MF32} {v(ACA,16)}, {v(WB_+4*n,4)}, {v(64+4*(n%8),4)}, {v(ACA,16) if n else 0}")
        if n + 8 < 16:
            A.lds(f"ds_read_b128 {v(64+4*n,4)}, v18 offset:{(n+8)*1024}", f"o{n+8}")
    A("s_nop 9")
    A(f"s_cmp_lg_u32 s{sRT}, 0\ns_cbranch_scc1 Lred1")
    for kh in range(2):
        snd, keep = (8, 0) if kh == 0 else (0, 8)
        if kh: A.label("Lred1")
        for i in range(8): A(f"v_fmac_f32 v{ACB+snd+i}, v22, v{ACA+snd+i}")
        A(f"ds_write_b128 v19, {v(ACB+snd,4)} offset:{snd*256}\nds_write_b128 v19, {v(ACB+snd+4,4)} offset:{snd*256+1024}")
        for i in range(8): A(f"v_fmac_f32 v{ACB+keep+i}, v22, v{ACA+keep+i}")
        A("s_waitcnt lgkmcnt(0)\ns_barrier")
        A(f"ds_read_b128 v[64:67], v19 offset:{keep*256}\nds_read_b128 v[68:71], v19 offset:{keep*256+1024}")
        A("s_waitcnt lgkmcnt(0)")
        for i in range(8): A(f"v_add_f32 v{64+i}, v{64+i}, v{ACB+keep+i}")
        if kh == 0: A("s_branch Lred2")
    A.label("Lred2")
    for i in range(4): A(f"v_cvt_pk_bf16_f32 v{72+i}, v{64+2*i}, v{65+2*i}")
    A("s_nop 1\nv_permlane32_swap_b32 v72, v74\nv_permlane32_swap_b32 v73, v75")
    A(f"buffer_store_dwordx4 v[72:75], v11, s[{S_T}:{S_T+3}], s{sWOB} offen")
    if INSTR:
        stamp(A)
        A("s_waitcnt vmcnt(0)")
        stamp(A)
        A("s_memrealtime s[100:101]\ns_waitcnt lgkmcnt(0)\ns_mov_b64 exec, 1")
        A(f"s_lshl_b32 s56, s2, 3\ns_add_u32 s56, s56, s{sW}\ns_lshl_b32 s56, s56, 6\ns_add_u32 s56, s56, {32<<20}")
        A("v_mov_b32 v0, 0")
        for i in range(NST[0]):
            A(f"v_mov_b32 v1, s{68+2*i}\nbuffer_store_dword v1, v0, {WS}, s56 offen offset:{4*i}")
        A(f"v_mov_b32 v1, s{t5}\nbuffer_store_dword v1, v0, {WS}, s56 offen offset:52")
        A(f"v_mov_b32 v1, s100\nbuffer_store_dword v1, v0, {WS}, s56 offen offset:60")
        A(f"v_mov_b32 v1, s98\nbuffer_store_dword v1, v0, {WS}, s56 offen offset:56")
    A.label("Lend")
    A("s_endpgm")
    A.label("Lfallback")
    A.lg = []; A.vm = []
    A(f"s_setprio 0\ns_mov_b32 s{sPASS}, 1\nv_mov_b32 v14, v2\ns_mov_b32 s{sIT}, 0\nv_mov_b32 v9, 0xff800000")
    A.label("Lmaxloop")
    A(f"ds_read_b128 {v(KF,4)}, v14\nv_add_u32 v14, {TS}, v14\ns_waitcnt lgkmcnt(0)")
    A(f"{MF32} {v(SA,16)}, {v(KF,4)}, {v(Q,4)}, 0")
    A("s_nop 11")
    for i in range(0, 16, 2): A(f"v_max3_f32 v9, v9, v{SA+i}, v{SA+i+1}")
    A(f"s_add_u32 s{sIT}, s{sIT}, 1\ns_cmp_lt_u32 s{sIT}, 64\ns_cbranch_scc1 Lmaxloop")
    A(f"ds_read_b128 {v(KF,4)}, v2\ns_waitcnt lgkmcnt(0)")
    setup_pass(False)
    A("v_mov_b32 v14, v2\nv_mov_b32 v15, v7\nv_mov_b32 v16, v8")
    A(f"s_mov_b32 s{sIT}, 0")
    A.label("Lloop2")
    A.lg = ["k", "v2", "v1"]
    for j in range(2): tile(j, j)
    A(f"v_add_u32 v14, {2*TS}, v14\nv_add_u32 v15, {2*TS}, v15\nv_add_u32 v16, {2*TS}, v16")
    A(f"s_add_u32 s{sIT}, s{sIT}, 1\ns_cmp_lt_u32 s{sIT}, 32\ns_cbranch_scc1 Lloop2")
    A("s_branch Lfinish")
    return A.text()

def main():
    ref = open(f"cdna_kernels/{NAME}.s.ref").read().split("\n")
    head = [l for l in ref if l.startswith(";") and "@launch" not in l]
    head += ["; @launch grid=(256,1,1) block=(512,1,1) lds=163840"]
    out = "\n".join(head) + '\n.amdgcn_target "amdgcn-amd-amdhsa--gfx950"\n.text\n'
    t = kernel()
    for e in check(t): print("HAZARD", e)
    out += t + f""".section .rodata,"a"
.p2align 6
.amdhsa_kernel {KNAME}
  .amdhsa_next_free_vgpr 256
  .amdhsa_next_free_sgpr 102
  .amdhsa_accum_offset 256
  .amdhsa_group_segment_fixed_size 0
  .amdhsa_kernarg_size 80
  .amdhsa_user_sgpr_count 2
  .amdhsa_user_sgpr_kernarg_segment_ptr 1
  .amdhsa_system_sgpr_workgroup_id_x 1
.end_amdhsa_kernel
"""
    path = sys.argv[1] if len(sys.argv) > 1 else f"cdna_kernels/{NAME}.s"
    open(path, "w").write(out)
    print("wrote", path, len(out), "stamps", NST[0])
main()
```
